```python
import torch

def _softmax(x, axis=-1):
    return torch.softmax(x, dim=axis)
def _gelu(x):
    return torch.nn.functional.gelu(x, approximate="tanh")
def _silu(x):
    return torch.nn.functional.silu(x)
def _sigmoid(x):
    return torch.sigmoid(x)
def _layernorm(x, axis=-1, eps=1e-5):
    m = x.mean(dim=axis, keepdim=True)
    v = x.var(dim=axis, keepdim=True, unbiased=False)
    return (x - m) / torch.sqrt(v + eps)
def _scatter_add(tgt, idx, src, axis=0):
    return tgt.clone().index_add_(axis, idx, src)
def _segment_sum(src, seg, n):
    out = torch.zeros((n,) + src.shape[1:], dtype=src.dtype)
    return out.index_add_(0, seg, src)
def _pad(x, pw):
    flat = tuple(v for pair in reversed(pw) for v in pair)
    return torch.nn.functional.pad(x, flat)

kernel_name = 'concat_heads__mha_block_cached__gqa_block_cached__near_ridge'

def setup_inputs():

    _w = (lambda a: (lambda t: t.to(torch.bfloat16) if t.is_floating_point() else t)(torch.as_tensor(a)))
    def _A_setup():
        B, Sq, D = 8, 96, 512
        H, Sk, Dh = 32, 512, 128
        return {
            "x": _w((lambda *s: torch.randn(*s, dtype=torch.bfloat16) * 0.8)(B, Sq, D)),
            "k_cache": _w((lambda *s: torch.randn(*s, dtype=torch.bfloat16) * 0.8)(B, H, Sk, Dh)),
            "v_cache": _w((lambda *s: torch.randn(*s, dtype=torch.bfloat16) * 0.05)(B, H, Sk, Dh)),
            "wq": _w((lambda *s: torch.randn(*s, dtype=torch.bfloat16) * 0.8)(D, H * Dh) * (D ** -0.5)),
            "wo": _w((lambda *s: torch.randn(*s, dtype=torch.bfloat16) * 0.05)(H * Dh, D) * ((H * Dh) ** -0.5)),
        }
    _A_in = _A_setup()

    def _B_setup():
        B, Sq, D = 8, 96, 512
        Hq, Hkv, Sk, Dh = 32, 32, 512, 128
        assert Hq % Hkv == 0, (Hq, Hkv)
        return {
            "x": _w((lambda *s: torch.randn(*s, dtype=torch.bfloat16) * 0.8)(B, Sq, D)),
            "k_cache": _w((lambda *s: torch.randn(*s, dtype=torch.bfloat16) * 0.8)(B, Hkv, Sk, Dh)),
            "v_cache": _w((lambda *s: torch.randn(*s, dtype=torch.bfloat16) * 0.05)(B, Hkv, Sk, Dh)),
            "wq": _w((lambda *s: torch.randn(*s, dtype=torch.bfloat16) * 0.8)(D, Hq * Dh) * (D ** -0.5)),
            "wo": _w((lambda *s: torch.randn(*s, dtype=torch.bfloat16) * 0.05)(Hq * Dh, D) * ((Hq * Dh) ** -0.5)),
        }
    _B_in = _B_setup()

    return {
        "A_x": _A_in["x"],
        "A_k_cache": _A_in["k_cache"],
        "A_v_cache": _A_in["v_cache"],
        "A_wq": _A_in["wq"],
        "A_wo": _A_in["wo"],
        "B_x": _B_in["x"],
        "B_k_cache": _B_in["k_cache"],
        "B_v_cache": _B_in["v_cache"],
        "B_wq": _B_in["wq"],
        "B_wo": _B_in["wo"],
    }

def reference(A_x, A_k_cache, A_v_cache, A_wq, A_wo, B_x, B_k_cache, B_v_cache, B_wq, B_wo):
    def _A_ref(x, k_cache, v_cache, wq, wo):
        B, Sq, D = x.shape
        H, Dh = 32, 128
        q = (lambda x, *d: x.permute(*d))((x @ wq).reshape(B, Sq, H, Dh), 0, 2, 1, 3)
        scores = torch.einsum("bhqd,bhkd->bhqk", q, k_cache) * (Dh ** -0.5)
        p = _softmax(scores, axis=-1)
        o = torch.einsum("bhqk,bhkd->bhqd", p, v_cache)
        return (lambda x, *d: x.permute(*d))(o, 0, 2, 1, 3).reshape(B, Sq, H * Dh) @ wo

    def _B_ref(x, k_cache, v_cache, wq, wo):
        B, Sq, D = x.shape
        Hq, Dh = 32, 128
        Hkv = k_cache.shape[1]
        rep = Hq // Hkv
        q = (lambda x, *d: x.permute(*d))((x @ wq).reshape(B, Sq, Hq, Dh), 0, 2, 1, 3)
        k = (lambda x, n, axis: torch.repeat_interleave(x, n, dim=axis))(k_cache, rep, axis=1)
        v = (lambda x, n, axis: torch.repeat_interleave(x, n, dim=axis))(v_cache, rep, axis=1)
        scores = torch.einsum("bhqd,bhkd->bhqk", q, k) * (Dh ** -0.5)
        p = _softmax(scores, axis=-1)
        o = torch.einsum("bhqk,bhkd->bhqd", p, v)
        return (lambda x, *d: x.permute(*d))(o, 0, 2, 1, 3).reshape(B, Sq, Hq * Dh) @ wo

    a = _A_ref(A_x, A_k_cache, A_v_cache, A_wq, A_wo)
    b = _B_ref(B_x, B_k_cache, B_v_cache, B_wq, B_wo)
    return torch.concatenate([a, b], axis=-1)
```

```python
import sys, math, argparse

NAME = 'concat_heads__mha_block_cached__gqa_block_cached__near_ridge'

class Asm:
    def __init__(s): s.l = []
    def __call__(s, x):
        for y in x.split('\n'):
            y = y.strip()
            if y: s.l.append('    ' + y)
    def label(s, x): s.l.append(x + ':')
    def raw(s, x): s.l.append(x)
    def text(s): return '\n'.join(s.l) + '\n'

def vr(b, n=1):
    return f'v{b}' if n == 1 else f'v[{b}:{b+n-1}]'
def sr(b, n=1):
    return f's{b}' if n == 1 else f's[{b}:{b+n-1}]'

sX, sK, sV, sWQ, sWO, sWS, sST = 36, 40, 44, 48, 52, 56, 92
S_WAVE, S_BLK, S_HP, S_B = 3, 4, 5, 6
S_16K, S_32K, S_CS, S_NCS, S_LOOP, S_H, S_QG = 60, 61, 62, 63, 64, 65, 66
S_OB = 68
S_OFF, S_C, S_M0B, S_W1K = 76, 77, 78, 79
S_IDX = 80
O0, S0, QF, AB = 0, 96, 144, 192
V_AK, V_AV, V_AQ, V_AO = 224, 225, 226, 227
V_AD = 228
V_M, V_L, V_AL, V_NMC, V_T = 236, 239, 242, 248, 251
V_ST, V_XO = 254, 255
NB = 8

SLOT = lambda i: i * 16384
QSLOT = [65536, 98304, 131072, 0, 32768, 65536, 98304, 131072]
WSLOT = [[8, 9, 0, 1], [2, 6, 7, 3], [4, 5, 8, 9], [0, 1, 2, 6]]
XCH = 49152

class Gen:
    def __init__(s, opt):
        s.o = opt
        s.a = Asm()

    def stamp(s, vst):
        if not s.o.stamps: return
        a = s.a
        a('s_memtime s[98:99]')
        a('s_waitcnt lgkmcnt(0)')
        a(f's_mov_b32 m0, s{S_IDX}')
        a(f's_add_u32 s{S_IDX}, s{S_IDX}, 1')
        a(f'v_writelane_b32 v{vst}, s98, m0')

    def stamp_flush(s, vst):
        if not s.o.stamps: return
        a = s.a
        a('s_memrealtime s[98:99]')
        a('s_waitcnt lgkmcnt(0)')
        a(f's_mov_b32 m0, 63')
        a('s_nop 0')
        a(f'v_writelane_b32 v{vst}, s98, m0')
        a(f'v_mbcnt_lo_u32_b32 v1, -1, 0')
        a(f'v_mbcnt_hi_u32_b32 v1, -1, v1')
        a(f'v_lshlrev_b32 v1, 2, v1')
        a(f's_lshl_b32 s7, s2, 3')
        a(f's_add_u32 s7, s7, s{S_WAVE}')
        a(f's_lshl_b32 s7, s7, 8')
        a(f'buffer_store_dword v{vst}, v1, s[{sST}:{sST+3}], s7 offen')
        a('s_waitcnt vmcnt(0)')

    def stream(s, frags, nb=NB):
        a = s.a
        n = len(frags)
        buf = lambda i: AB + 4 * (i % nb)
        for i in range(min(nb - 1, n)):
            for x in frags[i]['rd'](buf(i)): a(x)
        for i, f in enumerate(frags):
            cnt = 2 * min(nb - 2, n - 1 - i)
            w = f's_waitcnt lgkmcnt({cnt})'
            if f.get('pre_vm') is not None:
                w = f's_waitcnt vmcnt({f["pre_vm"]}) lgkmcnt({cnt})'
            a(w)
            mm = f['mm'](buf(i))
            nx = frags[i + nb - 1]['rd'](buf(i + nb - 1)) if i + nb - 1 < n else []
            post = list(f.get('post', []))
            for k, m in enumerate(mm):
                a(m)
                if k < len(nx): a(nx[k])
            for x in nx[len(mm):]: a(x)
            for x in post: a(x)

    def prologue(s):
        a = s.a
        a('s_cmp_ge_u32 s2, 256')
        a('s_cbranch_scc1 L_END')
        a('s_load_dwordx8 s[8:15], s[0:1], 0')
        a('s_load_dwordx2 s[16:17], s[0:1], 32')
        a('s_load_dwordx8 s[20:27], s[0:1], 40')
        a('s_load_dwordx2 s[28:29], s[0:1], 72')
        a('s_load_dwordx2 s[30:31], s[0:1], 96')
        a('s_and_b32 s7, s2, 7')
        a('s_lshr_b32 s18, s2, 3')
        a('s_lshr_b32 s19, s18, 3')
        a('s_lshl_b32 s7, s7, 2')
        a('s_add_u32 s7, s7, s19')
        a(f's_lshr_b32 s{S_BLK}, s7, 4')
        a(f's_and_b32 s{S_HP}, s7, 15')
        a(f's_and_b32 s{S_B}, s18, 7')
        a('v_lshrrev_b32 v1, 6, v0')
        a('v_and_b32 v0, 63, v0')
        a(f'v_readfirstlane_b32 s{S_WAVE}, v1')
        if s.o.stamps:
            a(f's_mov_b32 s{S_IDX}, 0')
            a(f'v_mov_b32 v{V_ST}, 0')
            a('s_memrealtime s[98:99]')
            a('s_waitcnt lgkmcnt(0)')
            a('s_mov_b32 m0, 62')
            a('s_nop 0')
            a(f'v_writelane_b32 v{V_ST}, s98, m0')
            s.stamp(V_ST)
        a('s_waitcnt lgkmcnt(0)')
        a(f's_cmp_eq_u32 s{S_BLK}, 0')
        for i in range(8): a(f's_cselect_b32 s{8+i}, s{8+i}, s{20+i}')
        a('s_cselect_b32 s16, s16, s28')
        a('s_cselect_b32 s17, s17, s29')
        def srd(d, pb, offreg, nrec):
            a(f's_add_u32 s{d}, s{pb}, s{offreg}')
            a(f's_addc_u32 s{d+1}, s{pb+1}, 0')
            if isinstance(nrec, int): a(f's_mov_b32 s{d+2}, {nrec}')
            else: a(nrec)
            a(f's_mov_b32 s{d+3}, 0x00020000')
        a(f's_mul_i32 s7, s{S_B}, 98304')
        srd(sX, 8, 7, 98304)
        a(f's_lshl_b32 s7, s{S_B}, 22')
        a(f's_lshl_b32 s18, s{S_HP}, 18')
        a('s_add_u32 s7, s7, s18')
        srd(sK, 10, 7, 262144)
        srd(sV, 12, 7, 262144)
        a(f's_lshl_b32 s7, s{S_HP}, 9')
        srd(sWQ, 14, 7, f's_sub_u32 s{sWQ+2}, 4194304, s7')
        srd(sWO, 16, 18, 262144)
        a(f's_lshl_b32 s7, s{S_BLK}, 4')
        a(f's_add_u32 s7, s7, s{S_HP}')
        a('s_lshl_b32 s7, s7, 3')
        a(f's_add_u32 s7, s7, s{S_B}')
        a('s_mul_i32 s7, s7, 98304')
        srd(sWS, 30, 7, 98304)
        if s.o.stamps:
            a('s_mov_b32 s7, 0x2000000')
            srd(sST, 30, 7, 1 << 20)
        a(f's_cmp_ge_u32 s{S_WAVE}, 4')
        a('s_cbranch_scc1 L_LOADER')

    def loader(s):
        a = s.a; o = s.o
        nt = ' nt' if o.nt else ''
        a.label('L_LOADER')
        if o.lprio: a(f's_setprio {o.lprio}')
        a(f's_sub_u32 s7, s{S_WAVE}, 4')
        a(f's_lshl_b32 s{S_W1K}, s7, 10')
        a('v_lshrrev_b32 v1, 4, v0')
        a('v_and_b32 v2, 15, v0')
        a('s_lshl_b32 s18, s7, 2')
        a('v_add_u32 v3, s18, v1')
        a('v_and_b32 v4, 7, v3')
        a('v_lshlrev_b32 v4, 1, v4')
        a('v_lshrrev_b32 v5, 3, v3')
        a('v_or_b32 v4, v4, v5')
        a('v_xor_b32 v5, v2, v4')
        a('v_lshlrev_b32 v5, 4, v5')
        VKV, VWQ, VWO = 10, 11, 12
        a(f'v_lshlrev_b32 v6, 8, v3')
        a(f'v_add_u32 v{VKV}, v6, v5')
        a('s_lshl_b32 s18, s7, 3')
        a('v_add_u32 v6, s18, v1')
        a('v_lshlrev_b32 v6, 13, v6')
        a(f'v_add_u32 v{VWQ}, v6, v5')
        a('v_lshrrev_b32 v6, 3, v0')
        a('v_lshlrev_b32 v6, 10, v6')
        a('v_and_b32 v7, 7, v0')
        a('v_lshrrev_b32 v7, 1, v7')
        a('v_xor_b32 v7, v7, v1')
        a('v_lshlrev_b32 v7, 5, v7')
        a('v_and_b32 v8, 1, v0')
        a('v_lshlrev_b32 v8, 4, v8')
        a('v_add_u32 v6, v6, v7')
        a('v_add_u32 v6, v6, v8')
        a('s_lshl_b32 s18, s7, 13')
        a(f'v_add_u32 v{VWO}, s18, v6')

        def piece(m0expr, offexpr, voff, srd, flag=''):
            a(m0expr); a(offexpr)
            a(f'buffer_load_dwordx4 v{voff}, s[{srd}:{srd+3}], s{S_OFF} offen lds{flag}')
        def G(i):
            for ks in range(2):
                for h in range(2):
                    for aa in range(2):
                        m0 = QSLOT[i] + ks * 16384 + h * 8192 + aa * 4096
                        off = (2 * i + ks) * 262144 + aa * 32768 + h * 256
                        piece(f's_add_u32 m0, s{S_W1K}, {m0}', f's_mov_b32 s{S_OFF}, {off}', VWQ, sWQ)
        def KV(srd, c, isv):
            for h in range(2):
                for m in range(4):
                    m0 = (c & 1) * 65536 + isv * 32768 + h * 16384 + m * 4096
                    off = h * 131072 + c * 16384 + m * 4096
                    piece(f's_add_u32 m0, s{S_W1K}, {m0}', f's_mov_b32 s{S_OFF}, {off}', VKV, srd, nt)
        def KVdyn(srd, isv):
            for h in range(2):
                for m in range(4):
                    m0 = isv * 32768 + h * 16384 + m * 4096
                    off = h * 131072 + m * 4096
                    piece(f's_add_u32 m0, s{S_M0B}, {m0}', f's_add_u32 s{S_OFF}, s{S_C}, {off}', VKV, srd, nt)
        def W(j, t):
            nh, kh = t >> 1, t & 1
            for u in range(4):
                m0 = SLOT(WSLOT[j][t]) + u * 4096
                off = (kh * 128 + 32 * u) * 1024 + (nh * 256 + 64 * j) * 2
                piece(f's_add_u32 m0, s{S_W1K}, {m0}', f's_mov_b32 s{S_OFF}, {off}', VWO, sWO)
        def wb(n):
            a(f's_waitcnt vmcnt({n})'); a('s_barrier'); s.stamp(V_ST)

        for i in range(5): G(i)
        wb(32)
        wb(24); G(5)
        wb(24); G(6)
        wb(24); G(7)
        wb(24); KV(sK, 0, 0)
        wb(24); KV(sV, 0, 1)
        wb(24); KV(sK, 1, 0)
        wb(24); KV(sV, 1, 1)
        wb(24)
        wb(16); KV(sK, 2, 0)
        a(f's_mov_b32 s{S_LOOP}, 5')
        a(f's_mov_b32 s{S_C}, {2*16384}')
        a(f's_mov_b32 s{S_M0B}, s{S_W1K}')
        a.label('L_LD_LOOP')
        wb(16); KVdyn(sV, 1)
        a(f's_add_u32 s{S_C}, s{S_C}, 16384')
        a(f's_xor_b32 s{S_M0B}, s{S_M0B}, 65536')
        wb(16); KVdyn(sK, 0)
        a(f's_sub_u32 s{S_LOOP}, s{S_LOOP}, 1')
        a(f's_cmp_lg_u32 s{S_LOOP}, 0')
        a('s_cbranch_scc1 L_LD_LOOP')
        wb(16); KV(sV, 7, 1)
        wb(16)
        for t in range(4): W(0, t)
        wb(24); W(1, 0)
        wb(20)
        a('s_barrier'); s.stamp(V_ST)
        W(1, 1); W(1, 2)
        wb(12); W(1, 3); W(2, 0); W(2, 1)
        wb(8); W(2, 2); W(2, 3); W(3, 0); W(3, 1)
        wb(8); W(3, 2); W(3, 3)
        wb(0)
        s.stamp_flush(V_ST)
        a('s_endpgm')

    def compute(s):
        a = s.a; o = s.o
        cs = (128 ** -0.5) * math.log2(math.e)
        import struct
        fb = lambda x: struct.unpack('<I', struct.pack('<f', x))[0]
        a(f's_and_b32 s{S_H}, s{S_WAVE}, 1')
        a(f's_lshr_b32 s{S_QG}, s{S_WAVE}, 1')
        a(f's_mov_b32 s{S_16K}, 16384')
        a(f's_mov_b32 s{S_32K}, 32768')
        a('v_and_b32 v1, 15, v0')
        a('v_lshrrev_b32 v2, 4, v0')
        a(f's_mul_i32 s7, s{S_QG}, 48')
        a('v_add_u32 v3, s7, v1')
        a('v_lshlrev_b32 v3, 10, v3')
        a('v_lshlrev_b32 v4, 4, v2')
        a(f'v_add_u32 v{V_XO}, v3, v4')
        XR = lambda ks, qt: 96 + (ks % 8) * 12 + qt * 4
        def xload(ks):
            r = []
            for qt in range(3):
                so = ['0', f's{S_16K}', f's{S_32K}'][qt]
                r.append(f'buffer_load_dwordx4 {vr(XR(ks,qt),4)}, v{V_XO}, s[{sX}:{sX+3}], {so} offen offset:{ks*64}')
            return r
        for ks in range(8):
            for x in xload(ks): a(x)
        a(f's_mov_b32 s{S_CS}, {hex(fb(cs))}')
        a(f's_mov_b32 s{S_NCS}, {hex(fb(-cs))}')
        def ffun(dst, src, tmp):
            a(f'v_and_b32 v{dst}, 7, v{src}')
            a(f'v_lshlrev_b32 v{dst}, 1, v{dst}')
            a(f'v_lshrrev_b32 v{tmp}, 3, v{src}')
            a(f'v_or_b32 v{dst}, v{dst}, v{tmp}')
        ffun(5, 1, 6)
        a('v_lshrrev_b32 v6, 1, v2')
        a('v_xor_b32 v5, v5, v6')
        a('v_lshlrev_b32 v5, 4, v5')
        a('v_lshlrev_b32 v6, 8, v1')
        a('v_add_u32 v5, v5, v6')
        a('v_and_b32 v6, 1, v2')
        a('v_lshlrev_b32 v6, 3, v6')
        a('v_add_u32 v5, v5, v6')
        a(f's_lshl_b32 s7, s{S_H}, 14')
        a(f'v_add_u32 v{V_AK}, s7, v5')
        a('v_lshrrev_b32 v7, 2, v1')
        a('v_lshlrev_b32 v8, 2, v2')
        a('v_add_u32 v8, v8, v7')
        a('v_and_b32 v9, 3, v0')
        ffun(5, 8, 6)
        a('v_lshrrev_b32 v6, 1, v9')
        a('v_xor_b32 v5, v5, v6')
        a('v_lshlrev_b32 v5, 4, v5')
        a('v_lshlrev_b32 v6, 8, v8')
        a('v_add_u32 v5, v5, v6')
        a('v_and_b32 v6, 1, v9')
        a('v_lshlrev_b32 v6, 3, v6')
        a('v_add_u32 v5, v5, v6')
        a(f's_add_u32 s18, s7, 32768')
        a(f'v_add_u32 v{V_AV}, s18, v5')
        a(f's_lshl_b32 s7, s{S_H}, 13')
        a(f'v_add_u32 v{V_AQ}, s7, v5')
        a('v_lshrrev_b32 v5, 1, v8')
        a('v_and_b32 v5, 3, v5')
        a('v_lshlrev_b32 v5, 5, v5')
        a('v_lshlrev_b32 v6, 7, v8')
        a('v_add_u32 v5, v5, v6')
        a('v_lshlrev_b32 v6, 3, v9')
        a(f'v_add_u32 v{V_AO}, v5, v6')
        a(f's_cmp_eq_u32 s{S_H}, 0')
        for j in range(4):
            a(f's_cselect_b32 s{S_OB+2*j}, {WSLOT[j][0]}, {WSLOT[j][3]}')
            a(f's_cselect_b32 s{S_OB+2*j+1}, {WSLOT[j][1]}, {WSLOT[j][2]}')
        for j in range(8): a(f's_lshl_b32 s{S_OB+j}, s{S_OB+j}, 14')
        def addr8(base_v, add=None):
            if add is not None:
                a(f'v_add_u32 v{V_AD}, {add}, v{base_v}')
            else:
                a(f'v_mov_b32 v{V_AD}, v{base_v}')
            for u in range(1, 8): a(f'v_xor_b32 v{V_AD+u}, {u<<5}, v{V_AD}')
        MF = 'v_mfma_f32_16x16x32_bf16'
        for gi in range(8):
            addr8(V_AQ, QSLOT[gi])
            a('s_barrier'); s.stamp(V_ST)
            frags = []
            for kk in range(2):
                ks = 2 * gi + kk
                for dt in range(8):
                    def rd(buf, dt=dt, kk=kk):
                        return [f'ds_read_b64_tr_b16 {vr(buf,2)}, v{V_AD+dt} offset:{kk*16384}',
                                f'ds_read_b64_tr_b16 {vr(buf+2,2)}, v{V_AD+dt} offset:{kk*16384+4096}']
                    def mm(buf, dt=dt, ks=ks):
                        r = []
                        for qt in range(3):
                            d = vr(O0 + (dt * 3 + qt) * 4, 4)
                            c = '0' if ks == 0 else d
                            r.append(f'{MF} {d}, {vr(buf,4)}, {vr(XR(ks,qt),4)}, {c}')
                        return r
                    f = dict(rd=rd, mm=mm)
                    if dt == 0: f['pre_vm'] = 21 if ks < 8 else 3 * (15 - ks)
                    if dt == 7 and ks < 8: f['post'] = xload(ks + 8)
                    frags.append(f)
            s.stream(frags)
        s.stamp(V_ST)
        a('s_nop 7')
        for j in range(4):
            for qt in range(3):
                for t in range(2):
                    src = O0 + ((2 * j + t) * 3 + qt) * 4
                    dst = QF + (j * 3 + qt) * 4 + 2 * t
                    a(f'v_cvt_pk_bf16_f32 v{dst}, v{src}, v{src+1}')
                    a(f'v_cvt_pk_bf16_f32 v{dst+1}, v{src+2}, v{src+3}')
        for i in range(96): a(f'v_mov_b32 v{O0+i}, 0')
        for qt in range(3):
            a(f'v_mov_b32 v{V_M+qt}, 0xff800000')
            a(f'v_mov_b32 v{V_L+qt}, 0')
        a(f's_mov_b32 s{S_LOOP}, 8')
        a.label('L_ATT')
        addr8(V_AK)
        a('s_barrier'); s.stamp(V_ST)
        SR = lambda kt, qt: S0 + ((kt >> 1) * 3 + qt) * 8 + (kt & 1) * 4
        frags = []
        for j in range(4):
            for kt in range(4):
                def rd(buf, j=j, kt=kt):
                    return [f'ds_read_b64 {vr(buf,2)}, v{V_AD+2*j} offset:{kt*4096}',
                            f'ds_read_b64 {vr(buf+2,2)}, v{V_AD+2*j+1} offset:{kt*4096}']
                def mm(buf, j=j, kt=kt):
                    r = []
                    for qt in range(3):
                        d = vr(SR(kt, qt), 4)
                        c = '0' if j == 0 else d
                        r.append(f'{MF} {d}, {vr(buf,4)}, {vr(QF+(j*3+qt)*4,4)}, {c}')
                    return r
                frags.append(dict(rd=rd, mm=mm))
        s.stream(frags)
        addr8(V_AV)
        a(f'v_xor_b32 v{V_AK}, 65536, v{V_AK}')
        a(f'v_xor_b32 v{V_AV}, 65536, v{V_AV}')
        SQ = lambda qt: [S0 + (kk * 3 + qt) * 8 + i for kk in range(2) for i in range(8)]
        PK = lambda qt: [S0 + (kk * 3 + qt) * 8 for kk in range(2)]
        MX = [V_NMC + q for q in range(3)]
        for qt in range(3):
            r = SQ(qt)
            a(f'v_max3_f32 v{MX[qt]}, v{r[0]}, v{r[1]}, v{r[2]}')
        for i in range(6):
            for qt in range(3):
                r = SQ(qt)
                a(f'v_max3_f32 v{MX[qt]}, v{MX[qt]}, v{r[3+2*i]}, v{r[4+2*i]}')
        for qt in range(3):
            r = SQ(qt)
            a(f'v_max3_f32 v{MX[qt]}, v{MX[qt]}, v{r[15]}, v{V_M+qt}')
        for sw in ('v_permlane16_swap_b32', 'v_permlane32_swap_b32'):
            for qt in range(3): a(f'v_mov_b32 v{V_T+qt}, v{MX[qt]}')
            a('s_nop 0')
            for qt in range(3): a(f'{sw} v{MX[qt]}, v{V_T+qt}')
            a('s_nop 0')
            for qt in range(3): a(f'v_max_f32 v{MX[qt]}, v{MX[qt]}, v{V_T+qt}')
        for qt in range(3): a(f'v_sub_f32 v{V_T+qt}, v{V_M+qt}, v{MX[qt]}')
        for qt in range(3): a(f'v_mul_f32 v{V_T+qt}, s{S_CS}, v{V_T+qt}')
        for qt in range(3): a(f'v_exp_f32 v{V_AL+2*qt}, v{V_T+qt}')
        for qt in range(3): a(f'v_mov_b32 v{V_M+qt}, v{MX[qt]}')
        for qt in range(3): a(f'v_mul_f32 v{V_NMC+qt}, s{S_NCS}, v{MX[qt]}')
        for qt in range(3):
            r = SQ(qt)
            for i in range(0, 16, 4):
                for k in range(4): a(f'v_fma_f32 v{r[i+k]}, v{r[i+k]}, s{S_CS}, v{V_NMC+qt}')
                for k in range(4): a(f'v_exp_f32 v{r[i+k]}, v{r[i+k]}')
        for dt in range(8):
            for qt in range(3):
                b = O0 + (dt * 3 + qt) * 4
                for hh in range(2):
                    a(f'v_pk_mul_f32 {vr(b+2*hh,2)}, {vr(b+2*hh,2)}, {vr(V_AL+2*qt,2)} op_sel_hi:[1,0]')
        TP = V_AB_T = AB
        for qt in range(3):
            r = SQ(qt)
            a(f'v_pk_add_f32 {vr(TP+2*qt,2)}, {vr(r[0],2)}, {vr(r[2],2)}')
        for i in range(2, 8):
            for qt in range(3):
                r = SQ(qt)
                a(f'v_pk_add_f32 {vr(TP+2*qt,2)}, {vr(TP+2*qt,2)}, {vr(r[2*i],2)}')
        for qt in range(3): a(f'v_fma_f32 v{V_L+qt}, v{V_L+qt}, v{V_AL+2*qt}, v{TP+2*qt}')
        for qt in range(3): a(f'v_add_f32 v{V_L+qt}, v{V_L+qt}, v{TP+2*qt+1}')
        for qt in range(3):
            for kk in range(2):
                b = S0 + (kk * 3 + qt) * 8
                for i in range(4): a(f'v_cvt_pk_bf16_f32 v{b+i}, v{b+2*i}, v{b+2*i+1}')
        a('s_barrier'); s.stamp(V_ST)
        frags = []
        for dt in range(8):
            for kk in range(2):
                def rd(buf, dt=dt, kk=kk):
                    return [f'ds_read_b64_tr_b16 {vr(buf,2)}, v{V_AD+dt} offset:{kk*8192}',
                            f'ds_read_b64_tr_b16 {vr(buf+2,2)}, v{V_AD+dt} offset:{kk*8192+4096}']
                def mm(buf, dt=dt, kk=kk):
                    r = []
                    for qt in range(3):
                        d = vr(O0 + (dt * 3 + qt) * 4, 4)
                        r.append(f'{MF} {d}, {vr(buf,4)}, {vr(S0+(kk*3+qt)*8,4)}, {d}')
                    return r
                frags.append(dict(rd=rd, mm=mm))
        s.stream(frags)
        a(f's_sub_u32 s{S_LOOP}, s{S_LOOP}, 1')
        a(f's_cmp_lg_u32 s{S_LOOP}, 0')
        a('s_cbranch_scc1 L_ATT')
        s.stamp(V_ST)
        for sw in ('v_permlane16_swap_b32', 'v_permlane32_swap_b32'):
            for qt in range(3): a(f'v_mov_b32 v{V_T+qt}, v{V_L+qt}')
            a('s_nop 0')
            for qt in range(3): a(f'{sw} v{V_L+qt}, v{V_T+qt}')
            a('s_nop 0')
            for qt in range(3): a(f'v_add_f32 v{V_L+qt}, v{V_L+qt}, v{V_T+qt}')
        for qt in range(3): a(f'v_rcp_f32 v{V_AL+2*qt}, v{V_L+qt}')
        a('s_nop 0')
        a('v_mbcnt_lo_u32_b32 v251, -1, 0')
        a('v_mbcnt_hi_u32_b32 v251, -1, v251')
        a('v_lshlrev_b32 v251, 4, v251')
        a(f's_mul_i32 s7, s{S_WAVE}, 12288')
        a(f's_add_u32 s7, s7, {XCH}')
        a('v_add_u32 v252, s7, v251')
        a(f's_xor_b32 s18, s{S_WAVE}, 1')
        a(f's_mul_i32 s18, s18, 12288')
        a(f's_add_u32 s18, s18, {XCH}')
        a('v_add_u32 v253, s18, v251')
        a(f's_mul_i32 s7, s{S_WAVE}, 24576')
        a(f'v_add_u32 v{V_XO}, s7, v251')
        for j in range(4):
            for qt in range(3):
                for t in range(2):
                    b = O0 + ((2 * j + t) * 3 + qt) * 4
                    for hh in range(2):
                        a(f'v_pk_mul_f32 {vr(b+2*hh,2)}, {vr(b+2*hh,2)}, {vr(V_AL+2*qt,2)} op_sel_hi:[1,0]')
                for t in range(2):
                    src = O0 + ((2 * j + t) * 3 + qt) * 4
                    dst = QF + (j * 3 + qt) * 4 + 2 * t
                    a(f'v_cvt_pk_bf16_f32 v{dst}, v{src}, v{src+1}')
                    a(f'v_cvt_pk_bf16_f32 v{dst+1}, v{src+2}, v{src+3}')
                a(f'ds_write_b128 v252, {vr(QF+(j*3+qt)*4,4)} offset:{(j*3+qt)*1024}')
        a('s_waitcnt lgkmcnt(0)')
        a('s_barrier'); s.stamp(V_ST)
        for i in range(12): a(f'ds_read_b128 {vr(S0+4*i,4)}, v253 offset:{i*1024}')
        a('s_waitcnt lgkmcnt(0)')
        stf = o.stflag
        def epi(j):
            r = []
            base = 48 * (j & 1)
            for u in range(2):
                for qt in range(3):
                    b = base + (u * 3 + qt) * 8
                    grp = [f'v_cvt_pk_bf16_f32 v{b+i}, v{b+2*i}, v{b+2*i+1}' for i in range(4)]
                    off = j * 6144 + (u * 3 + qt) * 1024
                    grp.append(f's_mov_b32 s7, {off}')
                    grp.append(f'buffer_store_dwordx4 {vr(b,4)}, v{V_XO}, s[{sWS}:{sWS+3}], s7 offen{stf}')
                    r.append(grp)
            return r
        for j in range(4):
            for half in range(2):
                a(f'v_add_u32 v{V_AD+4*half}, s{S_OB+2*j+half}, v{V_AO}')
                for nt_ in range(1, 4): a(f'v_xor_b32 v{V_AD+4*half+nt_}, {nt_<<5}, v{V_AD+4*half}')
            a('s_barrier'); s.stamp(V_ST)
            base = 48 * (j & 1)
            frags = []
            for half in range(2):
                for jj in range(4):
                    for nt_ in range(4):
                        def rd(buf, half=half, jj=jj, nt_=nt_):
                            return [f'ds_read_b64_tr_b16 {vr(buf,2)}, v{V_AD+4*half+nt_} offset:{jj*4096}',
                                    f'ds_read_b64_tr_b16 {vr(buf+2,2)}, v{V_AD+4*half+nt_} offset:{jj*4096+2048}']
                        def mm(buf, half=half, jj=jj, nt_=nt_):
                            r = []
                            for qt in range(3):
                                d = vr(base + ((nt_ >> 1) * 3 + qt) * 8 + (nt_ & 1) * 4, 4)
                                c = '0' if (half == 0 and jj == 0) else d
                                bsrc = (QF if half == 0 else S0) + (jj * 3 + qt) * 4
                                r.append(f'{MF} {d}, {vr(buf,4)}, {vr(bsrc,4)}, {c}')
                            return r
                        frags.append(dict(rd=rd, mm=mm))
            if j > 0:
                for k, grp in enumerate(epi(j - 1)):
                    frags[3 + 4 * k]['post'] = grp
            s.stream(frags)
        s.stamp(V_ST)
        a('s_nop 7')
        for grp in epi(3):
            for x in grp: a(x)
        s.stamp(V_ST)
        s.stamp_flush(V_ST)
        a('s_endpgm')

    def reduce(s):
        a = s.a; o = s.o
        a.raw('.p2align 8'); a.raw('.type red_kernel,@function'); a.label('red_kernel')
        a('s_cmp_ge_u32 s2, 24')
        a('s_cbranch_scc1 L_REND')
        a('s_load_dwordx2 s[4:5], s[0:1], 80')
        a('s_load_dwordx2 s[6:7], s[0:1], 96')
        a('v_lshrrev_b32 v1, 6, v0')
        a('v_and_b32 v0, 63, v0')
        a('v_readfirstlane_b32 s8, v1')
        a('s_nop 3')
        a('s_lshl_b32 s9, s2, 2')
        a('s_add_u32 s8, s8, s9')
        a('s_lshr_b32 s10, s3, 3')
        a('s_and_b32 s11, s3, 7')
        a('s_lshl_b32 s12, s10, 7')
        a('s_add_u32 s12, s12, s11')
        a('s_mul_i32 s12, s12, 98304')
        a('s_lshl_b32 s13, s8, 10')
        a('s_add_u32 s12, s12, s13')
        a('v_lshlrev_b32 v1, 4, v0')
        a('s_waitcnt lgkmcnt(0)')
        a('s_add_u32 s16, s6, s12')
        a('s_addc_u32 s17, s7, 0')
        a(f's_mov_b32 s18, {15*786432+1024}')
        a('s_mov_b32 s19, 0x00020000')
        a('s_mov_b32 s14, 0')
        for hp in range(16):
            a(f'buffer_load_dwordx4 {vr(8+4*hp,4)}, v1, s[16:19], s14 offen{o.ldflag}')
            if hp < 15: a('s_add_u32 s14, s14, 786432')
        a('s_mul_i32 s20, s8, 43')
        a('s_lshr_b32 s20, s20, 8')
        a('s_mul_i32 s21, s20, 6')
        a('s_sub_u32 s21, s8, s21')
        a('s_cmp_ge_u32 s21, 3')
        a('s_cselect_b32 s22, 1, 0')
        a('s_mul_i32 s23, s22, 3')
        a('s_sub_u32 s23, s21, s23')
        a('s_lshr_b32 s24, s20, 2')
        a('s_and_b32 s25, s20, 3')
        a('s_and_b32 s26, s24, 1')
        a('s_lshr_b32 s27, s24, 1')
        a('s_mul_i32 s28, s11, 96')
        a('s_mul_i32 s29, s27, 48')
        a('s_add_u32 s28, s28, s29')
        a('s_lshl_b32 s29, s23, 4')
        a('s_add_u32 s28, s28, s29')
        a('s_lshl_b32 s28, s28, 11')
        a('s_lshl_b32 s29, s10, 10')
        a('s_add_u32 s28, s28, s29')
        a('s_lshl_b32 s29, s26, 9')
        a('s_add_u32 s28, s28, s29')
        a('s_lshl_b32 s29, s25, 7')
        a('s_add_u32 s28, s28, s29')
        a('s_lshl_b32 s29, s22, 6')
        a('s_add_u32 s28, s28, s29')
        a('v_and_b32 v2, 15, v0')
        a('v_lshlrev_b32 v2, 11, v2')
        a('v_lshrrev_b32 v3, 4, v0')
        a('v_and_b32 v4, 1, v3')
        a('v_lshlrev_b32 v4, 5, v4')
        a('v_lshrrev_b32 v3, 1, v3')
        a('v_lshlrev_b32 v3, 4, v3')
        a('v_add_u32 v2, v2, v3')
        a('v_add_u32 v2, v2, v4')
        a('v_add_u32 v2, s28, v2')
        a('s_mov_b32 s8, s4')
        a('s_mov_b32 s9, s5')
        a(f's_mov_b32 s10, {8*96*1024*2}')
        a('s_mov_b32 s11, 0x00020000')
        a('s_mov_b32 s30, 0xffff0000')
        for hp in range(16):
            a(f's_waitcnt vmcnt({15-hp})')
            b = 8 + 4 * hp
            for i in range(4):
                if hp == 0:
                    a(f'v_lshlrev_b32 v{72+2*i}, 16, v{b+i}')
                    a(f'v_and_b32 v{73+2*i}, s30, v{b+i}')
                else:
                    a(f'v_lshlrev_b32 v4, 16, v{b+i}')
                    a(f'v_and_b32 v5, s30, v{b+i}')
                    a(f'v_pk_add_f32 {vr(72+2*i,2)}, {vr(72+2*i,2)}, v[4:5]')
        for i in range(4): a(f'v_cvt_pk_bf16_f32 v{80+i}, v{72+2*i}, v{73+2*i}')
        a('s_nop 1')
        a('v_permlane16_swap_b32 v80, v82')
        a('v_permlane16_swap_b32 v81, v83')
        a('s_nop 1')
        a('buffer_store_dwordx4 v[80:83], v2, s[8:11], 0 offen')
        a.label('L_REND')
        a('s_endpgm')

    def build(s):
        a = s.a; o = s.o
        kn = o.kname
        hdr = open('cdna_kernels/' + NAME + '.s.ref').read().split('\n')
        for ln in hdr:
            if ln.startswith('; @launch'): break
            a.raw(ln)
        a.raw(f'; @launch kernel={kn} grid=(256,1,1) block=(512,1,1) lds=163840')
        if not o.single:
            a.raw(f'; @launch kernel=red_kernel grid=(24,16,1) block=(256,1,1) lds=0')
        a.raw('.amdgcn_target "amdgcn-amd-amdhsa--gfx950"')
        a.raw('.text')
        a.raw(f'.globl {kn}'); a.raw('.p2align 8'); a.raw(f'.type {kn},@function'); a.label(kn)
        s.prologue()
        s.compute()
        s.loader()
        a.label('L_END'); a('s_endpgm')
        a.raw('.globl red_kernel')
        s.reduce()
        a.raw('.section .rodata,"a"')
        for k, nv, y in ((kn, 256, 0), ('red_kernel', 88, 1)):
            a.raw('.p2align 6')
            a.raw(f'.amdhsa_kernel {k}')
            a.raw(f'  .amdhsa_next_free_vgpr {nv}')
            a.raw('  .amdhsa_next_free_sgpr 102')
            a.raw(f'  .amdhsa_accum_offset {nv}')
            a.raw('  .amdhsa_group_segment_fixed_size 0')
            a.raw('  .amdhsa_kernarg_size 104')
            a.raw('  .amdhsa_user_sgpr_count 2')
            a.raw('  .amdhsa_user_sgpr_kernarg_segment_ptr 1')
            a.raw('  .amdhsa_system_sgpr_workgroup_id_x 1')
            if y: a.raw('  .amdhsa_system_sgpr_workgroup_id_y 1')
            a.raw('.end_amdhsa_kernel')
        return a.text()

if __name__ == '__main__':
    p = argparse.ArgumentParser()
    p.add_argument('-o', default='cdna_kernels/' + NAME + '.s')
    p.add_argument('--kname', default=NAME + '_kernel')
    p.add_argument('--stamps', action='store_true')
    p.add_argument('--nt', action='store_true')
    p.add_argument('--single', action='store_true')
    p.add_argument('--lprio', type=int, default=0)
    p.add_argument('--stflag', default='')
    p.add_argument('--ldflag', default='')
    o = p.parse_args()
    if o.stflag: o.stflag = ' ' + o.stflag
    if o.ldflag: o.ldflag = ' ' + o.ldflag
    open(o.o, 'w').write(Gen(o).build())
```

```python
import sys, math, argparse

NAME = 'concat_heads__mha_block_cached__gqa_block_cached__near_ridge'

class Asm:
    def __init__(s): s.l = []
    def __call__(s, x):
        for y in x.split('\n'):
            y = y.strip()
            if y: s.l.append('    ' + y)
    def label(s, x): s.l.append(x + ':')
    def raw(s, x): s.l.append(x)
    def text(s): return '\n'.join(s.l) + '\n'

def vr(b, n=1):
    return f'v{b}' if n == 1 else f'v[{b}:{b+n-1}]'
def sr(b, n=1):
    return f's{b}' if n == 1 else f's[{b}:{b+n-1}]'

sX, sK, sV, sWQ, sWO, sWS, sST = 36, 40, 44, 48, 52, 56, 92
S_WAVE, S_BLK, S_HP, S_B = 3, 4, 5, 6
S_16K, S_32K, S_CS, S_NCS, S_LOOP, S_H, S_QG = 60, 61, 62, 63, 64, 65, 66
S_OB = 68
S_OFF, S_C, S_M0B, S_W1K = 76, 77, 78, 79
S_IDX = 80
O0, S0, QF, AB = 0, 96, 144, 192
V_AK, V_AV, V_AQ, V_AO = 224, 225, 226, 227
V_AD = 228
V_M, V_L, V_AL, V_NMC, V_T = 236, 239, 242, 248, 251
V_ST, V_XO = 254, 255
NB = 8

SLOT = lambda i: i * 16384
QSLOT = [65536, 98304, 131072, 0, 32768, 65536, 98304, 131072]
WSLOT = [[8, 9, 0, 1], [2, 6, 7, 3], [4, 5, 8, 9], [0, 1, 2, 6]]
XCH = 49152

class Gen:
    def __init__(s, opt):
        s.o = opt
        s.a = Asm()

    def stamp(s, vst):
        if not s.o.stamps: return
        a = s.a
        a('s_memtime s[98:99]')
        a('s_waitcnt lgkmcnt(0)')
        a(f's_mov_b32 m0, s{S_IDX}')
        a(f's_add_u32 s{S_IDX}, s{S_IDX}, 1')
        a(f'v_writelane_b32 v{vst}, s98, m0')

    def stamp_flush(s, vst):
        if not s.o.stamps: return
        a = s.a
        a('s_memrealtime s[98:99]')
        a('s_waitcnt lgkmcnt(0)')
        a(f's_mov_b32 m0, 63')
        a('s_nop 0')
        a(f'v_writelane_b32 v{vst}, s98, m0')
        a(f'v_mbcnt_lo_u32_b32 v1, -1, 0')
        a(f'v_mbcnt_hi_u32_b32 v1, -1, v1')
        a(f'v_lshlrev_b32 v1, 2, v1')
        a(f's_lshl_b32 s7, s2, 3')
        a(f's_add_u32 s7, s7, s{S_WAVE}')
        a(f's_lshl_b32 s7, s7, 8')
        a(f'buffer_store_dword v{vst}, v1, s[{sST}:{sST+3}], s7 offen')
        a('s_waitcnt vmcnt(0)')

    def stream(s, frags, nb=NB):
        a = s.a
        n = len(frags)
        buf = lambda i: AB + 4 * (i % nb)
        for i in range(min(nb - 1, n)):
            for x in frags[i]['rd'](buf(i)): a(x)
        for i, f in enumerate(frags):
            cnt = 2 * min(nb - 2, n - 1 - i)
            w = f's_waitcnt lgkmcnt({cnt})'
            if f.get('pre_vm') is not None:
                w = f's_waitcnt vmcnt({f["pre_vm"]}) lgkmcnt({cnt})'
            a(w)
            mm = f['mm'](buf(i))
            nx = frags[i + nb - 1]['rd'](buf(i + nb - 1)) if i + nb - 1 < n else []
            post = list(f.get('post', []))
            for k, m in enumerate(mm):
                a(m)
                if k < len(nx): a(nx[k])
            for x in nx[len(mm):]: a(x)
            for x in post: a(x)

    def prologue(s):
        a = s.a
        a('s_cmp_ge_u32 s2, 256')
        a('s_cbranch_scc1 L_END')
        a('s_load_dwordx8 s[8:15], s[0:1], 0')
        a('s_load_dwordx2 s[16:17], s[0:1], 32')
        a('s_load_dwordx8 s[20:27], s[0:1], 40')
        a('s_load_dwordx2 s[28:29], s[0:1], 72')
        a('s_load_dwordx2 s[30:31], s[0:1], 96')
        a('s_and_b32 s7, s2, 7')
        a('s_lshr_b32 s18, s2, 3')
        a('s_lshr_b32 s19, s18, 3')
        a('s_lshl_b32 s7, s7, 2')
        a('s_add_u32 s7, s7, s19')
        a(f's_lshr_b32 s{S_BLK}, s7, 4')
        a(f's_and_b32 s{S_HP}, s7, 15')
        a(f's_and_b32 s{S_B}, s18, 7')
        a('v_lshrrev_b32 v1, 6, v0')
        a('v_and_b32 v0, 63, v0')
        a(f'v_readfirstlane_b32 s{S_WAVE}, v1')
        if s.o.stamps:
            a(f's_mov_b32 s{S_IDX}, 0')
            a(f'v_mov_b32 v{V_ST}, 0')
            a('s_memrealtime s[98:99]')
            a('s_waitcnt lgkmcnt(0)')
            a('s_mov_b32 m0, 62')
            a('s_nop 0')
            a(f'v_writelane_b32 v{V_ST}, s98, m0')
            s.stamp(V_ST)
        a('s_waitcnt lgkmcnt(0)')
        a(f's_cmp_eq_u32 s{S_BLK}, 0')
        for i in range(8): a(f's_cselect_b32 s{8+i}, s{8+i}, s{20+i}')
        a('s_cselect_b32 s16, s16, s28')
        a('s_cselect_b32 s17, s17, s29')
        def srd(d, pb, offreg, nrec):
            a(f's_add_u32 s{d}, s{pb}, s{offreg}')
            a(f's_addc_u32 s{d+1}, s{pb+1}, 0')
            if isinstance(nrec, int): a(f's_mov_b32 s{d+2}, {nrec}')
            else: a(nrec)
            a(f's_mov_b32 s{d+3}, 0x00020000')
        a(f's_mul_i32 s7, s{S_B}, 98304')
        srd(sX, 8, 7, 98304)
        a(f's_lshl_b32 s7, s{S_B}, 22')
        a(f's_lshl_b32 s18, s{S_HP}, 18')
        a('s_add_u32 s7, s7, s18')
        srd(sK, 10, 7, 262144)
        srd(sV, 12, 7, 262144)
        a(f's_lshl_b32 s7, s{S_HP}, 9')
        srd(sWQ, 14, 7, f's_sub_u32 s{sWQ+2}, 4194304, s7')
        srd(sWO, 16, 18, 262144)
        a(f's_lshl_b32 s7, s{S_BLK}, 4')
        a(f's_add_u32 s7, s7, s{S_HP}')
        a('s_lshl_b32 s7, s7, 3')
        a(f's_add_u32 s7, s7, s{S_B}')
        a('s_mul_i32 s7, s7, 98304')
        srd(sWS, 30, 7, 98304)
        if s.o.stamps:
            a('s_mov_b32 s7, 0x2000000')
            srd(sST, 30, 7, 1 << 20)
        a(f's_cmp_ge_u32 s{S_WAVE}, 4')
        a('s_cbranch_scc1 L_LOADER')

    def loader(s):
        a = s.a; o = s.o
        nt = ' nt' if o.nt else ''
        a.label('L_LOADER')
        if o.fine: s.stamp(V_ST)
        if o.lprio: a(f's_setprio {o.lprio}')
        a(f's_sub_u32 s7, s{S_WAVE}, 4')
        a(f's_lshl_b32 s{S_W1K}, s7, 10')
        a('v_lshrrev_b32 v1, 4, v0')
        a('v_and_b32 v2, 15, v0')
        a('s_lshl_b32 s18, s7, 2')
        a('v_add_u32 v3, s18, v1')
        a('v_and_b32 v4, 7, v3')
        a('v_lshlrev_b32 v4, 1, v4')
        a('v_lshrrev_b32 v5, 3, v3')
        a('v_or_b32 v4, v4, v5')
        a('v_xor_b32 v5, v2, v4')
        a('v_lshlrev_b32 v5, 4, v5')
        VKV, VWQ, VWO = 10, 11, 12
        a(f'v_lshlrev_b32 v6, 8, v3')
        a(f'v_add_u32 v{VKV}, v6, v5')
        a('s_lshl_b32 s18, s7, 3')
        a('v_add_u32 v6, s18, v1')
        a('v_lshlrev_b32 v6, 13, v6')
        a(f'v_add_u32 v{VWQ}, v6, v5')
        a('v_lshrrev_b32 v6, 3, v0')
        a('v_lshlrev_b32 v6, 10, v6')
        a('v_and_b32 v7, 7, v0')
        a('v_lshrrev_b32 v7, 1, v7')
        a('v_xor_b32 v7, v7, v1')
        a('v_lshlrev_b32 v7, 5, v7')
        a('v_and_b32 v8, 1, v0')
        a('v_lshlrev_b32 v8, 4, v8')
        a('v_add_u32 v6, v6, v7')
        a('v_add_u32 v6, v6, v8')
        a('s_lshl_b32 s18, s7, 13')
        a(f'v_add_u32 v{VWO}, s18, v6')

        def piece(m0expr, offexpr, voff, srd, flag=''):
            a(m0expr); a(offexpr)
            a(f'buffer_load_dwordx4 v{voff}, s[{srd}:{srd+3}], s{S_OFF} offen{flag} lds')
        def G(i):
            for ks in range(2):
                for h in range(2):
                    for aa in range(2):
                        m0 = QSLOT[i] + ks * 16384 + h * 8192 + aa * 4096
                        off = (2 * i + ks) * 262144 + aa * 32768 + h * 256
                        piece(f's_add_u32 m0, s{S_W1K}, {m0}', f's_mov_b32 s{S_OFF}, {off}', VWQ, sWQ)
        def KV(srd, c, isv):
            for h in range(2):
                for m in range(4):
                    m0 = (c & 1) * 65536 + isv * 32768 + h * 16384 + m * 4096
                    off = h * 131072 + c * 16384 + m * 4096
                    piece(f's_add_u32 m0, s{S_W1K}, {m0}', f's_mov_b32 s{S_OFF}, {off}', VKV, srd, nt)
        def KVdyn(srd, isv):
            for h in range(2):
                for m in range(4):
                    m0 = isv * 32768 + h * 16384 + m * 4096
                    off = h * 131072 + m * 4096
                    piece(f's_add_u32 m0, s{S_M0B}, {m0}', f's_add_u32 s{S_OFF}, s{S_C}, {off}', VKV, srd, nt)
        def W(j, t):
            nh, kh = t >> 1, t & 1
            for u in range(4):
                m0 = SLOT(WSLOT[j][t]) + u * 4096
                off = (kh * 128 + 32 * u) * 1024 + (nh * 256 + 64 * j) * 2
                piece(f's_add_u32 m0, s{S_W1K}, {m0}', f's_mov_b32 s{S_OFF}, {off}', VWO, sWO)
        def wb(n):
            a(f's_waitcnt vmcnt({n})'); a('s_barrier'); s.stamp(V_ST)

        if o.tlb == 1:
            a('v_lshlrev_b32 v20, 2, v0')
            for srd, off in ((sWQ,0),(sWQ,8192*8),(sWQ,8192*300),(sK,0),(sK,8192),(sK,131072),(sV,0),(sV,8192),(sWO,0),(sWO,8192),(sWS,0),(sX,0),(sX,65536)):
                a(f's_mov_b32 s{S_OFF}, {off}')
                a(f'buffer_load_dword v21, v20, s[{srd}:{srd+3}], s{S_OFF} offen')
                a('s_waitcnt vmcnt(0)'); s.stamp(V_ST)
        if o.tlb == 2:
            a('v_lshlrev_b32 v20, 2, v0')
            for k, (srd, off) in enumerate(((sWQ,0),(sWQ,8192*300),(sK,0),(sV,0),(sWO,0),(sWS,0))):
                a(f's_mov_b32 s{S_OFF}, {off}')
                a(f'buffer_load_dword v{21+k}, v20, s[{srd}:{srd+3}], s{S_OFF} offen')
            s.stamp(V_ST)
            for k in range(6):
                a(f's_waitcnt vmcnt({5-k})'); s.stamp(V_ST)
        if o.fine: s.stamp(V_ST)
        for i in range(5):
            G(i)
            if o.fine: s.stamp(V_ST)
        if o.fine:
            a('s_waitcnt vmcnt(39)'); s.stamp(V_ST)
            a('s_waitcnt vmcnt(32)'); s.stamp(V_ST)
        wb(32)
        wb(24); G(5)
        wb(24); G(6)
        wb(24); G(7)
        wb(24); KV(sK, 0, 0)
        wb(24); KV(sV, 0, 1)
        wb(24); KV(sK, 1, 0)
        wb(24); KV(sV, 1, 1)
        wb(24)
        wb(16); KV(sK, 2, 0)
        a(f's_mov_b32 s{S_LOOP}, 5')
        a(f's_mov_b32 s{S_C}, {2*16384}')
        a(f's_mov_b32 s{S_M0B}, s{S_W1K}')
        a.label('L_LD_LOOP')
        wb(16); KVdyn(sV, 1)
        a(f's_add_u32 s{S_C}, s{S_C}, 16384')
        a(f's_xor_b32 s{S_M0B}, s{S_M0B}, 65536')
        wb(16); KVdyn(sK, 0)
        a(f's_sub_u32 s{S_LOOP}, s{S_LOOP}, 1')
        a(f's_cmp_lg_u32 s{S_LOOP}, 0')
        a('s_cbranch_scc1 L_LD_LOOP')
        wb(16); KV(sV, 7, 1)
        wb(16)
        for t in range(4): W(0, t)
        wb(24); W(1, 0)
        wb(20)
        a('s_barrier'); s.stamp(V_ST)
        W(1, 1); W(1, 2)
        wb(12); W(1, 3); W(2, 0); W(2, 1)
        wb(8); W(2, 2); W(2, 3); W(3, 0); W(3, 1)
        wb(8); W(3, 2); W(3, 3)
        wb(0)
        s.stamp_flush(V_ST)
        a('s_endpgm')

    def compute(s):
        a = s.a; o = s.o
        cs = (128 ** -0.5) * math.log2(math.e)
        import struct
        fb = lambda x: struct.unpack('<I', struct.pack('<f', x))[0]
        a(f's_and_b32 s{S_H}, s{S_WAVE}, 1')
        a(f's_lshr_b32 s{S_QG}, s{S_WAVE}, 1')
        a(f's_mov_b32 s{S_16K}, 16384')
        a(f's_mov_b32 s{S_32K}, 32768')
        a('v_and_b32 v1, 15, v0')
        a('v_lshrrev_b32 v2, 4, v0')
        a(f's_mul_i32 s7, s{S_QG}, 48')
        a('v_add_u32 v3, s7, v1')
        a('v_lshlrev_b32 v3, 10, v3')
        a('v_lshlrev_b32 v4, 4, v2')
        a(f'v_add_u32 v{V_XO}, v3, v4')
        XR = lambda ks, qt: 96 + (ks % 8) * 12 + qt * 4
        def xload(ks):
            r = []
            for qt in range(3):
                so = ['0', f's{S_16K}', f's{S_32K}'][qt]
                r.append(f'buffer_load_dwordx4 {vr(XR(ks,qt),4)}, v{V_XO}, s[{sX}:{sX+3}], {so} offen offset:{ks*64}')
            return r
        if o.fine: s.stamp(V_ST)
        for ks in range(8):
            for x in xload(ks): a(x)
        if o.fine:
            s.stamp(V_ST)
            a('s_waitcnt vmcnt(23)'); s.stamp(V_ST)
            a('s_waitcnt vmcnt(21)'); s.stamp(V_ST)
            a('s_waitcnt vmcnt(0)'); s.stamp(V_ST)
        a(f's_mov_b32 s{S_CS}, {hex(fb(cs))}')
        a(f's_mov_b32 s{S_NCS}, {hex(fb(-cs))}')
        def ffun(dst, src, tmp):
            a(f'v_and_b32 v{dst}, 7, v{src}')
            a(f'v_lshlrev_b32 v{dst}, 1, v{dst}')
            a(f'v_lshrrev_b32 v{tmp}, 3, v{src}')
            a(f'v_or_b32 v{dst}, v{dst}, v{tmp}')
        ffun(5, 1, 6)
        a('v_lshrrev_b32 v6, 1, v2')
        a('v_xor_b32 v5, v5, v6')
        a('v_lshlrev_b32 v5, 4, v5')
        a('v_lshlrev_b32 v6, 8, v1')
        a('v_add_u32 v5, v5, v6')
        a('v_and_b32 v6, 1, v2')
        a('v_lshlrev_b32 v6, 3, v6')
        a('v_add_u32 v5, v5, v6')
        a(f's_lshl_b32 s7, s{S_H}, 14')
        a(f'v_add_u32 v{V_AK}, s7, v5')
        a('v_lshrrev_b32 v7, 2, v1')
        a('v_lshlrev_b32 v8, 2, v2')
        a('v_add_u32 v8, v8, v7')
        a('v_and_b32 v9, 3, v0')
        ffun(5, 8, 6)
        a('v_lshrrev_b32 v6, 1, v9')
        a('v_xor_b32 v5, v5, v6')
        a('v_lshlrev_b32 v5, 4, v5')
        a('v_lshlrev_b32 v6, 8, v8')
        a('v_add_u32 v5, v5, v6')
        a('v_and_b32 v6, 1, v9')
        a('v_lshlrev_b32 v6, 3, v6')
        a('v_add_u32 v5, v5, v6')
        a(f's_add_u32 s18, s7, 32768')
        a(f'v_add_u32 v{V_AV}, s18, v5')
        a(f's_lshl_b32 s7, s{S_H}, 13')
        a(f'v_add_u32 v{V_AQ}, s7, v5')
        a('v_lshrrev_b32 v5, 1, v8')
        a('v_and_b32 v5, 3, v5')
        a('v_lshlrev_b32 v5, 5, v5')
        a('v_lshlrev_b32 v6, 7, v8')
        a('v_add_u32 v5, v5, v6')
        a('v_lshlrev_b32 v6, 3, v9')
        a(f'v_add_u32 v{V_AO}, v5, v6')
        a(f's_cmp_eq_u32 s{S_H}, 0')
        for j in range(4):
            a(f's_cselect_b32 s{S_OB+2*j}, {WSLOT[j][0]}, {WSLOT[j][3]}')
            a(f's_cselect_b32 s{S_OB+2*j+1}, {WSLOT[j][1]}, {WSLOT[j][2]}')
        for j in range(8): a(f's_lshl_b32 s{S_OB+j}, s{S_OB+j}, 14')
        def addr8(base_v, add=None):
            if add is not None:
                a(f'v_add_u32 v{V_AD}, {add}, v{base_v}')
            else:
                a(f'v_mov_b32 v{V_AD}, v{base_v}')
            for u in range(1, 8): a(f'v_xor_b32 v{V_AD+u}, {u<<5}, v{V_AD}')
        MF = 'v_mfma_f32_16x16x32_bf16'
        for gi in range(8):
            addr8(V_AQ, QSLOT[gi])
            a('s_barrier'); s.stamp(V_ST)
            frags = []
            for kk in range(2):
                ks = 2 * gi + kk
                for dt in range(8):
                    def rd(buf, dt=dt, kk=kk):
                        return [f'ds_read_b64_tr_b16 {vr(buf,2)}, v{V_AD+dt} offset:{kk*16384}',
                                f'ds_read_b64_tr_b16 {vr(buf+2,2)}, v{V_AD+dt} offset:{kk*16384+4096}']
                    def mm(buf, dt=dt, ks=ks):
                        r = []
                        for qt in range(3):
                            d = vr(O0 + (dt * 3 + qt) * 4, 4)
                            c = '0' if ks == 0 else d
                            r.append(f'{MF} {d}, {vr(buf,4)}, {vr(XR(ks,qt),4)}, {c}')
                        return r
                    f = dict(rd=rd, mm=mm)
                    if dt == 0: f['pre_vm'] = 21 if ks < 8 else 3 * (15 - ks)
                    if dt == 7 and ks < 8: f['post'] = xload(ks + 8)
                    frags.append(f)
            s.stream(frags)
        s.stamp(V_ST)
        a('s_nop 7')
        for j in range(4):
            for qt in range(3):
                for t in range(2):
                    src = O0 + ((2 * j + t) * 3 + qt) * 4
                    dst = QF + (j * 3 + qt) * 4 + 2 * t
                    a(f'v_cvt_pk_bf16_f32 v{dst}, v{src}, v{src+1}')
                    a(f'v_cvt_pk_bf16_f32 v{dst+1}, v{src+2}, v{src+3}')
        for i in range(96): a(f'v_mov_b32 v{O0+i}, 0')
        for qt in range(3):
            a(f'v_mov_b32 v{V_M+qt}, 0xff800000')
            a(f'v_mov_b32 v{V_L+qt}, 0')
        a(f's_mov_b32 s{S_LOOP}, 8')
        a.label('L_ATT')
        addr8(V_AK)
        a('s_barrier'); s.stamp(V_ST)
        SR = lambda kt, qt: S0 + ((kt >> 1) * 3 + qt) * 8 + (kt & 1) * 4
        frags = []
        for j in range(4):
            for kt in range(4):
                def rd(buf, j=j, kt=kt):
                    return [f'ds_read_b64 {vr(buf,2)}, v{V_AD+2*j} offset:{kt*4096}',
                            f'ds_read_b64 {vr(buf+2,2)}, v{V_AD+2*j+1} offset:{kt*4096}']
                def mm(buf, j=j, kt=kt):
                    r = []
                    for qt in range(3):
                        d = vr(SR(kt, qt), 4)
                        c = '0' if j == 0 else d
                        r.append(f'{MF} {d}, {vr(buf,4)}, {vr(QF+(j*3+qt)*4,4)}, {c}')
                    return r
                frags.append(dict(rd=rd, mm=mm))
        s.stream(frags)
        addr8(V_AV)
        a(f'v_xor_b32 v{V_AK}, 65536, v{V_AK}')
        a(f'v_xor_b32 v{V_AV}, 65536, v{V_AV}')
        SQ = lambda qt: [S0 + (kk * 3 + qt) * 8 + i for kk in range(2) for i in range(8)]
        PK = lambda qt: [S0 + (kk * 3 + qt) * 8 for kk in range(2)]
        MX = [V_NMC + q for q in range(3)]
        for qt in range(3):
            r = SQ(qt)
            a(f'v_max3_f32 v{MX[qt]}, v{r[0]}, v{r[1]}, v{r[2]}')
        for i in range(6):
            for qt in range(3):
                r = SQ(qt)
                a(f'v_max3_f32 v{MX[qt]}, v{MX[qt]}, v{r[3+2*i]}, v{r[4+2*i]}')
        for qt in range(3):
            r = SQ(qt)
            a(f'v_max3_f32 v{MX[qt]}, v{MX[qt]}, v{r[15]}, v{V_M+qt}')
        for sw in ('v_permlane16_swap_b32', 'v_permlane32_swap_b32'):
            for qt in range(3): a(f'v_mov_b32 v{V_T+qt}, v{MX[qt]}')
            a('s_nop 0')
            for qt in range(3): a(f'{sw} v{MX[qt]}, v{V_T+qt}')
            a('s_nop 0')
            for qt in range(3): a(f'v_max_f32 v{MX[qt]}, v{MX[qt]}, v{V_T+qt}')
        for qt in range(3): a(f'v_sub_f32 v{V_T+qt}, v{V_M+qt}, v{MX[qt]}')
        for qt in range(3): a(f'v_mul_f32 v{V_T+qt}, s{S_CS}, v{V_T+qt}')
        for qt in range(3): a(f'v_exp_f32 v{V_AL+2*qt}, v{V_T+qt}')
        for qt in range(3): a(f'v_mov_b32 v{V_M+qt}, v{MX[qt]}')
        for qt in range(3): a(f'v_mul_f32 v{V_NMC+qt}, s{S_NCS}, v{MX[qt]}')
        for qt in range(3):
            r = SQ(qt)
            for i in range(0, 16, 4):
                for k in range(4): a(f'v_fma_f32 v{r[i+k]}, v{r[i+k]}, s{S_CS}, v{V_NMC+qt}')
                for k in range(4): a(f'v_exp_f32 v{r[i+k]}, v{r[i+k]}')
        for dt in range(8):
            for qt in range(3):
                b = O0 + (dt * 3 + qt) * 4
                for hh in range(2):
                    a(f'v_pk_mul_f32 {vr(b+2*hh,2)}, {vr(b+2*hh,2)}, {vr(V_AL+2*qt,2)} op_sel_hi:[1,0]')
        TP = V_AB_T = AB
        for qt in range(3):
            r = SQ(qt)
            a(f'v_pk_add_f32 {vr(TP+2*qt,2)}, {vr(r[0],2)}, {vr(r[2],2)}')
        for i in range(2, 8):
            for qt in range(3):
                r = SQ(qt)
                a(f'v_pk_add_f32 {vr(TP+2*qt,2)}, {vr(TP+2*qt,2)}, {vr(r[2*i],2)}')
        for qt in range(3): a(f'v_fma_f32 v{V_L+qt}, v{V_L+qt}, v{V_AL+2*qt}, v{TP+2*qt}')
        for qt in range(3): a(f'v_add_f32 v{V_L+qt}, v{V_L+qt}, v{TP+2*qt+1}')
        for qt in range(3):
            for kk in range(2):
                b = S0 + (kk * 3 + qt) * 8
                for i in range(4): a(f'v_cvt_pk_bf16_f32 v{b+i}, v{b+2*i}, v{b+2*i+1}')
        a('s_barrier'); s.stamp(V_ST)
        frags = []
        for dt in range(8):
            for kk in range(2):
                def rd(buf, dt=dt, kk=kk):
                    return [f'ds_read_b64_tr_b16 {vr(buf,2)}, v{V_AD+dt} offset:{kk*8192}',
                            f'ds_read_b64_tr_b16 {vr(buf+2,2)}, v{V_AD+dt} offset:{kk*8192+4096}']
                def mm(buf, dt=dt, kk=kk):
                    r = []
                    for qt in range(3):
                        d = vr(O0 + (dt * 3 + qt) * 4, 4)
                        r.append(f'{MF} {d}, {vr(buf,4)}, {vr(S0+(kk*3+qt)*8,4)}, {d}')
                    return r
                frags.append(dict(rd=rd, mm=mm))
        s.stream(frags)
        a(f's_sub_u32 s{S_LOOP}, s{S_LOOP}, 1')
        a(f's_cmp_lg_u32 s{S_LOOP}, 0')
        a('s_cbranch_scc1 L_ATT')
        s.stamp(V_ST)
        for sw in ('v_permlane16_swap_b32', 'v_permlane32_swap_b32'):
            for qt in range(3): a(f'v_mov_b32 v{V_T+qt}, v{V_L+qt}')
            a('s_nop 0')
            for qt in range(3): a(f'{sw} v{V_L+qt}, v{V_T+qt}')
            a('s_nop 0')
            for qt in range(3): a(f'v_add_f32 v{V_L+qt}, v{V_L+qt}, v{V_T+qt}')
        for qt in range(3): a(f'v_rcp_f32 v{V_AL+2*qt}, v{V_L+qt}')
        a('s_nop 0')
        a('v_mbcnt_lo_u32_b32 v251, -1, 0')
        a('v_mbcnt_hi_u32_b32 v251, -1, v251')
        a('v_lshlrev_b32 v251, 4, v251')
        a(f's_mul_i32 s7, s{S_WAVE}, 12288')
        a(f's_add_u32 s7, s7, {XCH}')
        a('v_add_u32 v252, s7, v251')
        a(f's_xor_b32 s18, s{S_WAVE}, 1')
        a(f's_mul_i32 s18, s18, 12288')
        a(f's_add_u32 s18, s18, {XCH}')
        a('v_add_u32 v253, s18, v251')
        a(f's_mul_i32 s7, s{S_WAVE}, 24576')
        a(f'v_add_u32 v{V_XO}, s7, v251')
        for j in range(4):
            for qt in range(3):
                for t in range(2):
                    b = O0 + ((2 * j + t) * 3 + qt) * 4
                    for hh in range(2):
                        a(f'v_pk_mul_f32 {vr(b+2*hh,2)}, {vr(b+2*hh,2)}, {vr(V_AL+2*qt,2)} op_sel_hi:[1,0]')
                for t in range(2):
                    src = O0 + ((2 * j + t) * 3 + qt) * 4
                    dst = QF + (j * 3 + qt) * 4 + 2 * t
                    a(f'v_cvt_pk_bf16_f32 v{dst}, v{src}, v{src+1}')
                    a(f'v_cvt_pk_bf16_f32 v{dst+1}, v{src+2}, v{src+3}')
                a(f'ds_write_b128 v252, {vr(QF+(j*3+qt)*4,4)} offset:{(j*3+qt)*1024}')
        a('s_waitcnt lgkmcnt(0)')
        a('s_barrier'); s.stamp(V_ST)
        for i in range(12): a(f'ds_read_b128 {vr(S0+4*i,4)}, v253 offset:{i*1024}')
        a('s_waitcnt lgkmcnt(0)')
        stf = o.stflag
        def epi(j):
            r = []
            base = 48 * (j & 1)
            for u in range(2):
                for qt in range(3):
                    b = base + (u * 3 + qt) * 8
                    grp = [f'v_cvt_pk_bf16_f32 v{b+i}, v{b+2*i}, v{b+2*i+1}' for i in range(4)]
                    off = j * 6144 + (u * 3 + qt) * 1024
                    grp.append(f's_mov_b32 s7, {off}')
                    grp.append(f'buffer_store_dwordx4 {vr(b,4)}, v{V_XO}, s[{sWS}:{sWS+3}], s7 offen{stf}')
                    r.append(grp)
            return r
        for j in range(4):
            for half in range(2):
                a(f'v_add_u32 v{V_AD+4*half}, s{S_OB+2*j+half}, v{V_AO}')
                for nt_ in range(1, 4): a(f'v_xor_b32 v{V_AD+4*half+nt_}, {nt_<<5}, v{V_AD+4*half}')
            a('s_barrier'); s.stamp(V_ST)
            base = 48 * (j & 1)
            frags = []
            for half in range(2):
                for jj in range(4):
                    for nt_ in range(4):
                        def rd(buf, half=half, jj=jj, nt_=nt_):
                            return [f'ds_read_b64_tr_b16 {vr(buf,2)}, v{V_AD+4*half+nt_} offset:{jj*4096}',
                                    f'ds_read_b64_tr_b16 {vr(buf+2,2)}, v{V_AD+4*half+nt_} offset:{jj*4096+2048}']
                        def mm(buf, half=half, jj=jj, nt_=nt_):
                            r = []
                            for qt in range(3):
                                d = vr(base + ((nt_ >> 1) * 3 + qt) * 8 + (nt_ & 1) * 4, 4)
                                c = '0' if (half == 0 and jj == 0) else d
                                bsrc = (QF if half == 0 else S0) + (jj * 3 + qt) * 4
                                r.append(f'{MF} {d}, {vr(buf,4)}, {vr(bsrc,4)}, {c}')
                            return r
                        frags.append(dict(rd=rd, mm=mm))
            if j > 0:
                for k, grp in enumerate(epi(j - 1)):
                    frags[3 + 4 * k]['post'] = grp
            s.stream(frags)
        s.stamp(V_ST)
        a('s_nop 7')
        for grp in epi(3):
            for x in grp: a(x)
        s.stamp(V_ST)
        s.stamp_flush(V_ST)
        a('s_endpgm')

    def reduce(s):
        a = s.a; o = s.o
        a.raw('.p2align 8'); a.raw('.type red_kernel,@function'); a.label('red_kernel')
        a('s_cmp_ge_u32 s2, 24')
        a('s_cbranch_scc1 L_REND')
        a('s_load_dwordx2 s[4:5], s[0:1], 80')
        a('s_load_dwordx2 s[6:7], s[0:1], 96')
        a('v_lshrrev_b32 v1, 6, v0')
        a('v_and_b32 v0, 63, v0')
        a('v_readfirstlane_b32 s8, v1')
        a('s_nop 3')
        a('s_lshl_b32 s9, s2, 2')
        a('s_add_u32 s8, s8, s9')
        a('s_lshr_b32 s10, s3, 3')
        a('s_and_b32 s11, s3, 7')
        a('s_lshl_b32 s12, s10, 7')
        a('s_add_u32 s12, s12, s11')
        a('s_mul_i32 s12, s12, 98304')
        a('s_lshl_b32 s13, s8, 10')
        a('s_add_u32 s12, s12, s13')
        a('v_lshlrev_b32 v1, 4, v0')
        a('s_waitcnt lgkmcnt(0)')
        a('s_add_u32 s16, s6, s12')
        a('s_addc_u32 s17, s7, 0')
        a(f's_mov_b32 s18, {15*786432+1024}')
        a('s_mov_b32 s19, 0x00020000')
        a('s_mov_b32 s14, 0')
        for hp in range(16):
            a(f'buffer_load_dwordx4 {vr(8+4*hp,4)}, v1, s[16:19], s14 offen{o.ldflag}')
            if hp < 15: a('s_add_u32 s14, s14, 786432')
        a('s_mul_i32 s20, s8, 43')
        a('s_lshr_b32 s20, s20, 8')
        a('s_mul_i32 s21, s20, 6')
        a('s_sub_u32 s21, s8, s21')
        a('s_cmp_ge_u32 s21, 3')
        a('s_cselect_b32 s22, 1, 0')
        a('s_mul_i32 s23, s22, 3')
        a('s_sub_u32 s23, s21, s23')
        a('s_lshr_b32 s24, s20, 2')
        a('s_and_b32 s25, s20, 3')
        a('s_and_b32 s26, s24, 1')
        a('s_lshr_b32 s27, s24, 1')
        a('s_mul_i32 s28, s11, 96')
        a('s_mul_i32 s29, s27, 48')
        a('s_add_u32 s28, s28, s29')
        a('s_lshl_b32 s29, s23, 4')
        a('s_add_u32 s28, s28, s29')
        a('s_lshl_b32 s28, s28, 11')
        a('s_lshl_b32 s29, s10, 10')
        a('s_add_u32 s28, s28, s29')
        a('s_lshl_b32 s29, s26, 9')
        a('s_add_u32 s28, s28, s29')
        a('s_lshl_b32 s29, s25, 7')
        a('s_add_u32 s28, s28, s29')
        a('s_lshl_b32 s29, s22, 6')
        a('s_add_u32 s28, s28, s29')
        a('v_and_b32 v2, 15, v0')
        a('v_lshlrev_b32 v2, 11, v2')
        a('v_lshrrev_b32 v3, 4, v0')
        a('v_and_b32 v4, 1, v3')
        a('v_lshlrev_b32 v4, 5, v4')
        a('v_lshrrev_b32 v3, 1, v3')
        a('v_lshlrev_b32 v3, 4, v3')
        a('v_add_u32 v2, v2, v3')
        a('v_add_u32 v2, v2, v4')
        a('v_add_u32 v2, s28, v2')
        a('s_mov_b32 s8, s4')
        a('s_mov_b32 s9, s5')
        a(f's_mov_b32 s10, {8*96*1024*2}')
        a('s_mov_b32 s11, 0x00020000')
        a('s_mov_b32 s30, 0xffff0000')
        for hp in range(16):
            a(f's_waitcnt vmcnt({15-hp})')
            b = 8 + 4 * hp
            for i in range(4):
                if hp == 0:
                    a(f'v_lshlrev_b32 v{72+2*i}, 16, v{b+i}')
                    a(f'v_and_b32 v{73+2*i}, s30, v{b+i}')
                else:
                    a(f'v_lshlrev_b32 v4, 16, v{b+i}')
                    a(f'v_and_b32 v5, s30, v{b+i}')
                    a(f'v_pk_add_f32 {vr(72+2*i,2)}, {vr(72+2*i,2)}, v[4:5]')
        for i in range(4): a(f'v_cvt_pk_bf16_f32 v{80+i}, v{72+2*i}, v{73+2*i}')
        a('s_nop 1')
        a('v_permlane16_swap_b32 v80, v82')
        a('v_permlane16_swap_b32 v81, v83')
        a('s_nop 1')
        a('buffer_store_dwordx4 v[80:83], v2, s[8:11], 0 offen')
        a.label('L_REND')
        a('s_endpgm')

    def build(s):
        a = s.a; o = s.o
        kn = o.kname
        hdr = open('cdna_kernels/' + NAME + '.s.ref').read().split('\n')
        for ln in hdr:
            if ln.startswith('; @launch'): break
            a.raw(ln)
        a.raw(f'; @launch kernel={kn} grid=(256,1,1) block=(512,1,1) lds=163840')
        if not o.single:
            a.raw(f'; @launch kernel=red_kernel grid=(24,16,1) block=(256,1,1) lds=0')
        a.raw('.amdgcn_target "amdgcn-amd-amdhsa--gfx950"')
        a.raw('.text')
        a.raw(f'.globl {kn}'); a.raw('.p2align 8'); a.raw(f'.type {kn},@function'); a.label(kn)
        s.prologue()
        s.compute()
        s.loader()
        a.label('L_END'); a('s_endpgm')
        a.raw('.globl red_kernel')
        s.reduce()
        a.raw('.section .rodata,"a"')
        for k, nv, y in ((kn, 256, 0), ('red_kernel', 88, 1)):
            a.raw('.p2align 6')
            a.raw(f'.amdhsa_kernel {k}')
            a.raw(f'  .amdhsa_next_free_vgpr {nv}')
            a.raw('  .amdhsa_next_free_sgpr 102')
            a.raw(f'  .amdhsa_accum_offset {nv}')
            a.raw('  .amdhsa_group_segment_fixed_size 0')
            a.raw('  .amdhsa_kernarg_size 104')
            a.raw('  .amdhsa_user_sgpr_count 2')
            a.raw('  .amdhsa_user_sgpr_kernarg_segment_ptr 1')
            a.raw('  .amdhsa_system_sgpr_workgroup_id_x 1')
            if y: a.raw('  .amdhsa_system_sgpr_workgroup_id_y 1')
            a.raw('.end_amdhsa_kernel')
        return a.text()

if __name__ == '__main__':
    p = argparse.ArgumentParser()
    p.add_argument('-o', default='cdna_kernels/' + NAME + '.s')
    p.add_argument('--kname', default=NAME + '_kernel')
    p.add_argument('--stamps', action='store_true')
    p.add_argument('--nt', action='store_true')
    p.add_argument('--single', action='store_true')
    p.add_argument('--fine', action='store_true')
    p.add_argument('--tlb', type=int, default=0)
    p.add_argument('--lprio', type=int, default=0)
    p.add_argument('--stflag', default='')
    p.add_argument('--ldflag', default='')
    o = p.parse_args()
    if o.stflag: o.stflag = ' ' + o.stflag
    if o.ldflag: o.ldflag = ' ' + o.ldflag
    open(o.o, 'w').write(Gen(o).build())
```

```python
import sys, math, argparse

NAME = 'concat_heads__mha_block_cached__gqa_block_cached__near_ridge'

class Asm:
    def __init__(s): s.l = []
    def __call__(s, x):
        for y in x.split('\n'):
            y = y.strip()
            if y: s.l.append('    ' + y)
    def label(s, x): s.l.append(x + ':')
    def raw(s, x): s.l.append(x)
    def text(s): return '\n'.join(s.l) + '\n'

def vr(b, n=1):
    return f'v{b}' if n == 1 else f'v[{b}:{b+n-1}]'
def sr(b, n=1):
    return f's{b}' if n == 1 else f's[{b}:{b+n-1}]'

sX, sK, sV, sWQ, sWO, sWS, sST = 36, 40, 44, 48, 52, 56, 92
S_WAVE, S_BLK, S_HP, S_B = 3, 4, 5, 6
S_16K, S_32K, S_CS, S_NCS, S_LOOP, S_H, S_QG = 60, 61, 62, 63, 64, 65, 66
S_OB = 68
S_OFF, S_C, S_M0B, S_W1K = 76, 77, 78, 79
S_IDX = 80
O0, S0, QF, AB = 0, 96, 144, 192
V_AK, V_AV, V_AQ, V_AO = 224, 225, 226, 227
V_AD = 228
V_M, V_L, V_AL, V_NMC, V_T = 236, 239, 242, 248, 251
V_ST, V_XO = 254, 255
NB = 8

SLOT = lambda i: i * 16384
QSLOT = [65536, 98304, 131072, 0, 32768, 65536, 98304, 131072]
WSLOT = [[8, 9, 0, 1], [2, 6, 7, 3], [4, 5, 8, 9], [0, 1, 2, 6]]
XCH = 49152

class Gen:
    def __init__(s, opt):
        s.o = opt
        s.a = Asm()

    def stamp(s, vst):
        if not s.o.stamps: return
        a = s.a
        a('s_memtime s[98:99]')
        a('s_waitcnt lgkmcnt(0)')
        a(f's_mov_b32 m0, s{S_IDX}')
        a(f's_add_u32 s{S_IDX}, s{S_IDX}, 1')
        a(f'v_writelane_b32 v{vst}, s98, m0')

    def stamp_flush(s, vst):
        if not s.o.stamps: return
        a = s.a
        a('s_memrealtime s[98:99]')
        a('s_waitcnt lgkmcnt(0)')
        a(f's_mov_b32 m0, 63')
        a('s_nop 0')
        a(f'v_writelane_b32 v{vst}, s98, m0')
        a(f'v_mbcnt_lo_u32_b32 v1, -1, 0')
        a(f'v_mbcnt_hi_u32_b32 v1, -1, v1')
        a(f'v_lshlrev_b32 v1, 2, v1')
        a(f's_lshl_b32 s7, s2, 3')
        a(f's_add_u32 s7, s7, s{S_WAVE}')
        a(f's_lshl_b32 s7, s7, 8')
        a(f'buffer_store_dword v{vst}, v1, s[{sST}:{sST+3}], s7 offen')
        a('s_waitcnt vmcnt(0)')

    def stream(s, frags, nb=NB):
        a = s.a
        n = len(frags)
        buf = lambda i: AB + 4 * (i % nb)
        for i in range(min(nb - 1, n)):
            for x in frags[i]['rd'](buf(i)): a(x)
        for i, f in enumerate(frags):
            cnt = 2 * min(nb - 2, n - 1 - i)
            w = f's_waitcnt lgkmcnt({cnt})'
            if f.get('pre_vm') is not None:
                w = f's_waitcnt vmcnt({f["pre_vm"]}) lgkmcnt({cnt})'
            a(w)
            mm = f['mm'](buf(i))
            nx = frags[i + nb - 1]['rd'](buf(i + nb - 1)) if i + nb - 1 < n else []
            post = list(f.get('post', []))
            for k, m in enumerate(mm):
                a(m)
                if k < len(nx): a(nx[k])
            for x in nx[len(mm):]: a(x)
            for x in post: a(x)

    def prologue(s):
        a = s.a
        a('s_cmp_ge_u32 s2, 256')
        a('s_cbranch_scc1 L_END')
        a('s_load_dwordx8 s[8:15], s[0:1], 0')
        a('s_load_dwordx2 s[16:17], s[0:1], 32')
        a('s_load_dwordx8 s[20:27], s[0:1], 40')
        a('s_load_dwordx2 s[28:29], s[0:1], 72')
        a('s_load_dwordx2 s[30:31], s[0:1], 96')
        a('s_and_b32 s7, s2, 7')
        a('s_lshr_b32 s18, s2, 3')
        a('s_lshr_b32 s19, s18, 3')
        a('s_lshl_b32 s7, s7, 2')
        a('s_add_u32 s7, s7, s19')
        a(f's_lshr_b32 s{S_BLK}, s7, 4')
        a(f's_and_b32 s{S_HP}, s7, 15')
        a(f's_and_b32 s{S_B}, s18, 7')
        a('v_lshrrev_b32 v1, 6, v0')
        a('v_and_b32 v0, 63, v0')
        a(f'v_readfirstlane_b32 s{S_WAVE}, v1')
        if s.o.stamps:
            a(f's_mov_b32 s{S_IDX}, 0')
            a(f'v_mov_b32 v{V_ST}, 0')
            a('s_memrealtime s[98:99]')
            a('s_waitcnt lgkmcnt(0)')
            a('s_mov_b32 m0, 62')
            a('s_nop 0')
            a(f'v_writelane_b32 v{V_ST}, s98, m0')
            s.stamp(V_ST)
        a('s_waitcnt lgkmcnt(0)')
        a(f's_cmp_eq_u32 s{S_BLK}, 0')
        for i in range(8): a(f's_cselect_b32 s{8+i}, s{8+i}, s{20+i}')
        a('s_cselect_b32 s16, s16, s28')
        a('s_cselect_b32 s17, s17, s29')
        def srd(d, pb, offreg, nrec):
            a(f's_add_u32 s{d}, s{pb}, s{offreg}')
            a(f's_addc_u32 s{d+1}, s{pb+1}, 0')
            if isinstance(nrec, int): a(f's_mov_b32 s{d+2}, {nrec}')
            else: a(nrec)
            a(f's_mov_b32 s{d+3}, 0x00020000')
        a(f's_mul_i32 s7, s{S_B}, 98304')
        srd(sX, 8, 7, 98304)
        a(f's_lshl_b32 s7, s{S_B}, 22')
        a(f's_lshl_b32 s18, s{S_HP}, 18')
        a('s_add_u32 s7, s7, s18')
        srd(sK, 10, 7, 262144)
        srd(sV, 12, 7, 262144)
        a(f's_lshl_b32 s7, s{S_HP}, 9')
        srd(sWQ, 14, 7, f's_sub_u32 s{sWQ+2}, 4194304, s7')
        srd(sWO, 16, 18, 262144)
        a(f's_lshl_b32 s7, s{S_BLK}, 4')
        a(f's_add_u32 s7, s7, s{S_HP}')
        a('s_lshl_b32 s7, s7, 3')
        a(f's_add_u32 s7, s7, s{S_B}')
        a('s_mul_i32 s7, s7, 98304')
        srd(sWS, 30, 7, 98304)
        if s.o.stamps:
            a('s_mov_b32 s7, 0x2000000')
            srd(sST, 30, 7, 1 << 20)
        a(f's_cmp_ge_u32 s{S_WAVE}, 4')
        a('s_cbranch_scc1 L_LOADER')

    def loader(s):
        a = s.a; o = s.o
        nt = ' nt' if o.nt else ''
        a.label('L_LOADER')
        if o.fine: s.stamp(V_ST)
        if o.lprio: a(f's_setprio {o.lprio}')
        a(f's_sub_u32 s7, s{S_WAVE}, 4')
        a(f's_lshl_b32 s{S_W1K}, s7, 10')
        a('v_lshrrev_b32 v1, 4, v0')
        a('v_and_b32 v2, 15, v0')
        a('s_lshl_b32 s18, s7, 2')
        a('v_add_u32 v3, s18, v1')
        a('v_and_b32 v4, 7, v3')
        a('v_lshlrev_b32 v4, 1, v4')
        a('v_lshrrev_b32 v5, 3, v3')
        a('v_or_b32 v4, v4, v5')
        a('v_xor_b32 v5, v2, v4')
        a('v_lshlrev_b32 v5, 4, v5')
        VKV, VWQ, VWO = 10, 11, 12
        a(f'v_lshlrev_b32 v6, 8, v3')
        a(f'v_add_u32 v{VKV}, v6, v5')
        a('s_lshl_b32 s18, s7, 3')
        a('v_add_u32 v6, s18, v1')
        a('v_lshlrev_b32 v6, 13, v6')
        a(f'v_add_u32 v{VWQ}, v6, v5')
        a('v_lshrrev_b32 v6, 3, v0')
        a('v_lshlrev_b32 v6, 10, v6')
        a('v_and_b32 v7, 7, v0')
        a('v_lshrrev_b32 v7, 1, v7')
        a('v_xor_b32 v7, v7, v1')
        a('v_lshlrev_b32 v7, 5, v7')
        a('v_and_b32 v8, 1, v0')
        a('v_lshlrev_b32 v8, 4, v8')
        a('v_add_u32 v6, v6, v7')
        a('v_add_u32 v6, v6, v8')
        a('s_lshl_b32 s18, s7, 13')
        a(f'v_add_u32 v{VWO}, s18, v6')

        def piece(m0expr, offexpr, voff, srd, flag=''):
            a(m0expr); a(offexpr)
            a(f'buffer_load_dwordx4 v{voff}, s[{srd}:{srd+3}], s{S_OFF} offen{flag} lds')
        def G(i):
            for ks in range(2):
                for h in range(2):
                    for aa in range(2):
                        m0 = QSLOT[i] + ks * 16384 + h * 8192 + aa * 4096
                        off = (2 * i + ks) * 262144 + aa * 32768 + h * 256
                        piece(f's_add_u32 m0, s{S_W1K}, {m0}', f's_mov_b32 s{S_OFF}, {off}', VWQ, sWQ)
        def KV(srd, c, isv):
            for h in range(2):
                for m in range(4):
                    m0 = (c & 1) * 65536 + isv * 32768 + h * 16384 + m * 4096
                    off = h * 131072 + c * 16384 + m * 4096
                    piece(f's_add_u32 m0, s{S_W1K}, {m0}', f's_mov_b32 s{S_OFF}, {off}', VKV, srd, nt)
        def KVdyn(srd, isv):
            for h in range(2):
                for m in range(4):
                    m0 = isv * 32768 + h * 16384 + m * 4096
                    off = h * 131072 + m * 4096
                    piece(f's_add_u32 m0, s{S_M0B}, {m0}', f's_add_u32 s{S_OFF}, s{S_C}, {off}', VKV, srd, nt)
        def W(j, t):
            nh, kh = t >> 1, t & 1
            for u in range(4):
                m0 = SLOT(WSLOT[j][t]) + u * 4096
                off = (kh * 128 + 32 * u) * 1024 + (nh * 256 + 64 * j) * 2
                piece(f's_add_u32 m0, s{S_W1K}, {m0}', f's_mov_b32 s{S_OFF}, {off}', VWO, sWO)
        def wb(n):
            a(f's_waitcnt vmcnt({n})'); a('s_barrier'); s.stamp(V_ST)

        if o.tlb == 1:
            a('v_lshlrev_b32 v20, 2, v0')
            for srd, off in ((sWQ,0),(sWQ,8192*8),(sWQ,8192*300),(sK,0),(sK,8192),(sK,131072),(sV,0),(sV,8192),(sWO,0),(sWO,8192),(sWS,0),(sX,0),(sX,65536)):
                a(f's_mov_b32 s{S_OFF}, {off}')
                a(f'buffer_load_dword v21, v20, s[{srd}:{srd+3}], s{S_OFF} offen')
                a('s_waitcnt vmcnt(0)'); s.stamp(V_ST)
        if o.tlb == 2:
            a('v_lshlrev_b32 v20, 2, v0')
            for k, (srd, off) in enumerate(((sWQ,0),(sWQ,8192*300),(sK,0),(sV,0),(sWO,0),(sWS,0))):
                a(f's_mov_b32 s{S_OFF}, {off}')
                a(f'buffer_load_dword v{21+k}, v20, s[{srd}:{srd+3}], s{S_OFF} offen')
            s.stamp(V_ST)
            for k in range(6):
                a(f's_waitcnt vmcnt({5-k})'); s.stamp(V_ST)
        if o.fine: s.stamp(V_ST)
        for i in range(5):
            G(i)
            if o.fine: s.stamp(V_ST)
        if o.fine:
            a('s_waitcnt vmcnt(39)'); s.stamp(V_ST)
            a('s_waitcnt vmcnt(32)'); s.stamp(V_ST)
        wb(32)
        wb(24); G(5)
        wb(24); G(6)
        wb(24); G(7)
        wb(24); KV(sK, 0, 0)
        wb(24); KV(sV, 0, 1)
        wb(24); KV(sK, 1, 0)
        wb(24); KV(sV, 1, 1)
        wb(24)
        wb(16); KV(sK, 2, 0)
        a(f's_mov_b32 s{S_LOOP}, 5')
        a(f's_mov_b32 s{S_C}, {2*16384}')
        a(f's_mov_b32 s{S_M0B}, s{S_W1K}')
        a.label('L_LD_LOOP')
        wb(16); KVdyn(sV, 1)
        a(f's_add_u32 s{S_C}, s{S_C}, 16384')
        a(f's_xor_b32 s{S_M0B}, s{S_M0B}, 65536')
        wb(16); KVdyn(sK, 0)
        a(f's_sub_u32 s{S_LOOP}, s{S_LOOP}, 1')
        a(f's_cmp_lg_u32 s{S_LOOP}, 0')
        a('s_cbranch_scc1 L_LD_LOOP')
        wb(16); KV(sV, 7, 1)
        wb(16)
        for t in range(4): W(0, t)
        wb(24); W(1, 0)
        wb(20)
        a('s_barrier'); s.stamp(V_ST)
        W(1, 1); W(1, 2)
        wb(12); W(1, 3); W(2, 0); W(2, 1)
        wb(8); W(2, 2); W(2, 3); W(3, 0); W(3, 1)
        wb(8); W(3, 2); W(3, 3)
        wb(0)
        s.stamp_flush(V_ST)
        a('s_endpgm')

    def compute(s):
        a = s.a; o = s.o
        cs = (128 ** -0.5) * math.log2(math.e)
        import struct
        fb = lambda x: struct.unpack('<I', struct.pack('<f', x))[0]
        a(f's_and_b32 s{S_H}, s{S_WAVE}, 1')
        a(f's_lshr_b32 s{S_QG}, s{S_WAVE}, 1')
        a(f's_mov_b32 s{S_16K}, 16384')
        a(f's_mov_b32 s{S_32K}, 32768')
        a('v_and_b32 v1, 15, v0')
        a('v_lshrrev_b32 v2, 4, v0')
        a(f's_mul_i32 s7, s{S_QG}, 48')
        a('v_add_u32 v3, s7, v1')
        a('v_lshlrev_b32 v3, 10, v3')
        a('v_lshlrev_b32 v4, 4, v2')
        a(f'v_add_u32 v{V_XO}, v3, v4')
        XR = lambda ks, qt: 96 + (ks % 8) * 12 + qt * 4
        def xload(ks):
            r = []
            for qt in range(3):
                so = ['0', f's{S_16K}', f's{S_32K}'][qt]
                r.append(f'buffer_load_dwordx4 {vr(XR(ks,qt),4)}, v{V_XO}, s[{sX}:{sX+3}], {so} offen offset:{ks*64}')
            return r
        if o.fine: s.stamp(V_ST)
        for ks in range(8):
            for x in xload(ks): a(x)
        if o.fine:
            s.stamp(V_ST)
            a('s_waitcnt vmcnt(23)'); s.stamp(V_ST)
            a('s_waitcnt vmcnt(21)'); s.stamp(V_ST)
            a('s_waitcnt vmcnt(0)'); s.stamp(V_ST)
        a(f's_mov_b32 s{S_CS}, {hex(fb(cs))}')
        a(f's_mov_b32 s{S_NCS}, {hex(fb(-cs))}')
        def ffun(dst, src, tmp):
            a(f'v_and_b32 v{dst}, 7, v{src}')
            a(f'v_lshlrev_b32 v{dst}, 1, v{dst}')
            a(f'v_lshrrev_b32 v{tmp}, 3, v{src}')
            a(f'v_or_b32 v{dst}, v{dst}, v{tmp}')
        ffun(5, 1, 6)
        a('v_lshrrev_b32 v6, 1, v2')
        a('v_xor_b32 v5, v5, v6')
        a('v_lshlrev_b32 v5, 4, v5')
        a('v_lshlrev_b32 v6, 8, v1')
        a('v_add_u32 v5, v5, v6')
        a('v_and_b32 v6, 1, v2')
        a('v_lshlrev_b32 v6, 3, v6')
        a('v_add_u32 v5, v5, v6')
        a(f's_lshl_b32 s7, s{S_H}, 14')
        a(f'v_add_u32 v{V_AK}, s7, v5')
        a('v_lshrrev_b32 v7, 2, v1')
        a('v_lshlrev_b32 v8, 2, v2')
        a('v_add_u32 v8, v8, v7')
        a('v_and_b32 v9, 3, v0')
        ffun(5, 8, 6)
        a('v_lshrrev_b32 v6, 1, v9')
        a('v_xor_b32 v5, v5, v6')
        a('v_lshlrev_b32 v5, 4, v5')
        a('v_lshlrev_b32 v6, 8, v8')
        a('v_add_u32 v5, v5, v6')
        a('v_and_b32 v6, 1, v9')
        a('v_lshlrev_b32 v6, 3, v6')
        a('v_add_u32 v5, v5, v6')
        a(f's_add_u32 s18, s7, 32768')
        a(f'v_add_u32 v{V_AV}, s18, v5')
        a(f's_lshl_b32 s7, s{S_H}, 13')
        a(f'v_add_u32 v{V_AQ}, s7, v5')
        a('v_lshrrev_b32 v5, 1, v8')
        a('v_and_b32 v5, 3, v5')
        a('v_lshlrev_b32 v5, 5, v5')
        a('v_lshlrev_b32 v6, 7, v8')
        a('v_add_u32 v5, v5, v6')
        a('v_lshlrev_b32 v6, 3, v9')
        a(f'v_add_u32 v{V_AO}, v5, v6')
        a(f's_cmp_eq_u32 s{S_H}, 0')
        for j in range(4):
            a(f's_cselect_b32 s{S_OB+2*j}, {WSLOT[j][0]}, {WSLOT[j][3]}')
            a(f's_cselect_b32 s{S_OB+2*j+1}, {WSLOT[j][1]}, {WSLOT[j][2]}')
        for j in range(8): a(f's_lshl_b32 s{S_OB+j}, s{S_OB+j}, 14')
        def addr8(base_v, add=None):
            if add is not None:
                a(f'v_add_u32 v{V_AD}, {add}, v{base_v}')
            else:
                a(f'v_mov_b32 v{V_AD}, v{base_v}')
            for u in range(1, 8): a(f'v_xor_b32 v{V_AD+u}, {u<<5}, v{V_AD}')
        MF = 'v_mfma_f32_16x16x32_bf16'
        for gi in range(8):
            addr8(V_AQ, QSLOT[gi])
            a('s_barrier'); s.stamp(V_ST)
            frags = []
            for kk in range(2):
                ks = 2 * gi + kk
                for dt in range(8):
                    def rd(buf, dt=dt, kk=kk):
                        return [f'ds_read_b64_tr_b16 {vr(buf,2)}, v{V_AD+dt} offset:{kk*16384}',
                                f'ds_read_b64_tr_b16 {vr(buf+2,2)}, v{V_AD+dt} offset:{kk*16384+4096}']
                    def mm(buf, dt=dt, ks=ks):
                        r = []
                        for qt in range(3):
                            d = vr(O0 + (dt * 3 + qt) * 4, 4)
                            c = '0' if ks == 0 else d
                            r.append(f'{MF} {d}, {vr(buf,4)}, {vr(XR(ks,qt),4)}, {c}')
                        return r
                    f = dict(rd=rd, mm=mm)
                    if dt == 0: f['pre_vm'] = 21 if ks < 8 else 3 * (15 - ks)
                    if dt == 7 and ks < 8: f['post'] = xload(ks + 8)
                    frags.append(f)
            s.stream(frags)
        s.stamp(V_ST)
        a('s_nop 7')
        for j in range(4):
            for qt in range(3):
                for t in range(2):
                    src = O0 + ((2 * j + t) * 3 + qt) * 4
                    dst = QF + (j * 3 + qt) * 4 + 2 * t
                    a(f'v_cvt_pk_bf16_f32 v{dst}, v{src}, v{src+1}')
                    a(f'v_cvt_pk_bf16_f32 v{dst+1}, v{src+2}, v{src+3}')
        for i in range(96): a(f'v_mov_b32 v{O0+i}, 0')
        for qt in range(3):
            a(f'v_mov_b32 v{V_M+qt}, 0xff800000')
            a(f'v_mov_b32 v{V_L+qt}, 0')
        a(f's_mov_b32 s{S_LOOP}, 8')
        a.label('L_ATT')
        addr8(V_AK)
        a('s_barrier'); s.stamp(V_ST)
        SR = lambda kt, qt: S0 + ((kt >> 1) * 3 + qt) * 8 + (kt & 1) * 4
        frags = []
        for j in range(4):
            for kt in range(4):
                def rd(buf, j=j, kt=kt):
                    return [f'ds_read_b64 {vr(buf,2)}, v{V_AD+2*j} offset:{kt*4096}',
                            f'ds_read_b64 {vr(buf+2,2)}, v{V_AD+2*j+1} offset:{kt*4096}']
                def mm(buf, j=j, kt=kt):
                    r = []
                    for qt in range(3):
                        d = vr(SR(kt, qt), 4)
                        c = '0' if j == 0 else d
                        r.append(f'{MF} {d}, {vr(buf,4)}, {vr(QF+(j*3+qt)*4,4)}, {c}')
                    return r
                frags.append(dict(rd=rd, mm=mm))
        s.stream(frags)
        addr8(V_AV)
        a(f'v_xor_b32 v{V_AK}, 65536, v{V_AK}')
        a(f'v_xor_b32 v{V_AV}, 65536, v{V_AV}')
        SQ = lambda qt: [S0 + (kk * 3 + qt) * 8 + i for kk in range(2) for i in range(8)]
        PK = lambda qt: [S0 + (kk * 3 + qt) * 8 for kk in range(2)]
        MX = [V_NMC + q for q in range(3)]
        for qt in range(3):
            r = SQ(qt)
            a(f'v_max3_f32 v{MX[qt]}, v{r[0]}, v{r[1]}, v{r[2]}')
        for i in range(6):
            for qt in range(3):
                r = SQ(qt)
                a(f'v_max3_f32 v{MX[qt]}, v{MX[qt]}, v{r[3+2*i]}, v{r[4+2*i]}')
        for qt in range(3):
            r = SQ(qt)
            a(f'v_max3_f32 v{MX[qt]}, v{MX[qt]}, v{r[15]}, v{V_M+qt}')
        for sw in ('v_permlane16_swap_b32', 'v_permlane32_swap_b32'):
            for qt in range(3): a(f'v_mov_b32 v{V_T+qt}, v{MX[qt]}')
            a('s_nop 0')
            for qt in range(3): a(f'{sw} v{MX[qt]}, v{V_T+qt}')
            a('s_nop 0')
            for qt in range(3): a(f'v_max_f32 v{MX[qt]}, v{MX[qt]}, v{V_T+qt}')
        for qt in range(3): a(f'v_sub_f32 v{V_T+qt}, v{V_M+qt}, v{MX[qt]}')
        for qt in range(3): a(f'v_mul_f32 v{V_T+qt}, s{S_CS}, v{V_T+qt}')
        for qt in range(3): a(f'v_exp_f32 v{V_AL+2*qt}, v{V_T+qt}')
        for qt in range(3): a(f'v_mov_b32 v{V_M+qt}, v{MX[qt]}')
        for qt in range(3): a(f'v_mul_f32 v{V_NMC+qt}, s{S_NCS}, v{MX[qt]}')
        for qt in range(3):
            r = SQ(qt)
            for i in range(0, 16, 4):
                for k in range(4): a(f'v_fma_f32 v{r[i+k]}, v{r[i+k]}, s{S_CS}, v{V_NMC+qt}')
                for k in range(4): a(f'v_exp_f32 v{r[i+k]}, v{r[i+k]}')
        for dt in range(8):
            for qt in range(3):
                b = O0 + (dt * 3 + qt) * 4
                for hh in range(2):
                    a(f'v_pk_mul_f32 {vr(b+2*hh,2)}, {vr(b+2*hh,2)}, {vr(V_AL+2*qt,2)} op_sel_hi:[1,0]')
        TP = V_AB_T = AB
        for qt in range(3):
            r = SQ(qt)
            a(f'v_pk_add_f32 {vr(TP+2*qt,2)}, {vr(r[0],2)}, {vr(r[2],2)}')
        for i in range(2, 8):
            for qt in range(3):
                r = SQ(qt)
                a(f'v_pk_add_f32 {vr(TP+2*qt,2)}, {vr(TP+2*qt,2)}, {vr(r[2*i],2)}')
        for qt in range(3): a(f'v_fma_f32 v{V_L+qt}, v{V_L+qt}, v{V_AL+2*qt}, v{TP+2*qt}')
        for qt in range(3): a(f'v_add_f32 v{V_L+qt}, v{V_L+qt}, v{TP+2*qt+1}')
        for qt in range(3):
            for kk in range(2):
                b = S0 + (kk * 3 + qt) * 8
                for i in range(4): a(f'v_cvt_pk_bf16_f32 v{b+i}, v{b+2*i}, v{b+2*i+1}')
        a('s_barrier'); s.stamp(V_ST)
        frags = []
        for dt in range(8):
            for kk in range(2):
                def rd(buf, dt=dt, kk=kk):
                    return [f'ds_read_b64_tr_b16 {vr(buf,2)}, v{V_AD+dt} offset:{kk*8192}',
                            f'ds_read_b64_tr_b16 {vr(buf+2,2)}, v{V_AD+dt} offset:{kk*8192+4096}']
                def mm(buf, dt=dt, kk=kk):
                    r = []
                    for qt in range(3):
                        d = vr(O0 + (dt * 3 + qt) * 4, 4)
                        r.append(f'{MF} {d}, {vr(buf,4)}, {vr(S0+(kk*3+qt)*8,4)}, {d}')
                    return r
                frags.append(dict(rd=rd, mm=mm))
        s.stream(frags)
        a(f's_sub_u32 s{S_LOOP}, s{S_LOOP}, 1')
        a(f's_cmp_lg_u32 s{S_LOOP}, 0')
        a('s_cbranch_scc1 L_ATT')
        s.stamp(V_ST)
        for sw in ('v_permlane16_swap_b32', 'v_permlane32_swap_b32'):
            for qt in range(3): a(f'v_mov_b32 v{V_T+qt}, v{V_L+qt}')
            a('s_nop 0')
            for qt in range(3): a(f'{sw} v{V_L+qt}, v{V_T+qt}')
            a('s_nop 0')
            for qt in range(3): a(f'v_add_f32 v{V_L+qt}, v{V_L+qt}, v{V_T+qt}')
        for qt in range(3): a(f'v_rcp_f32 v{V_AL+2*qt}, v{V_L+qt}')
        a('s_nop 0')
        a('v_mbcnt_lo_u32_b32 v251, -1, 0')
        a('v_mbcnt_hi_u32_b32 v251, -1, v251')
        a('v_lshlrev_b32 v251, 4, v251')
        a(f's_mul_i32 s7, s{S_WAVE}, 12288')
        a(f's_add_u32 s7, s7, {XCH}')
        a('v_add_u32 v252, s7, v251')
        a(f's_xor_b32 s18, s{S_WAVE}, 1')
        a(f's_mul_i32 s18, s18, 12288')
        a(f's_add_u32 s18, s18, {XCH}')
        a('v_add_u32 v253, s18, v251')
        a(f's_mul_i32 s7, s{S_WAVE}, 24576')
        a(f'v_add_u32 v{V_XO}, s7, v251')
        for j in range(4):
            for qt in range(3):
                for t in range(2):
                    b = O0 + ((2 * j + t) * 3 + qt) * 4
                    for hh in range(2):
                        a(f'v_pk_mul_f32 {vr(b+2*hh,2)}, {vr(b+2*hh,2)}, {vr(V_AL+2*qt,2)} op_sel_hi:[1,0]')
                for t in range(2):
                    src = O0 + ((2 * j + t) * 3 + qt) * 4
                    dst = QF + (j * 3 + qt) * 4 + 2 * t
                    a(f'v_cvt_pk_bf16_f32 v{dst}, v{src}, v{src+1}')
                    a(f'v_cvt_pk_bf16_f32 v{dst+1}, v{src+2}, v{src+3}')
                a(f'ds_write_b128 v252, {vr(QF+(j*3+qt)*4,4)} offset:{(j*3+qt)*1024}')
        a('s_waitcnt lgkmcnt(0)')
        a('s_barrier'); s.stamp(V_ST)
        for i in range(12): a(f'ds_read_b128 {vr(S0+4*i,4)}, v253 offset:{i*1024}')
        a('s_waitcnt lgkmcnt(0)')
        stf = o.stflag
        def epi(j):
            r = []
            base = 48 * (j & 1)
            for u in range(2):
                for qt in range(3):
                    b = base + (u * 3 + qt) * 8
                    grp = [f'v_cvt_pk_bf16_f32 v{b+i}, v{b+2*i}, v{b+2*i+1}' for i in range(4)]
                    off = j * 6144 + (u * 3 + qt) * 1024
                    grp.append(f's_mov_b32 s7, {off}')
                    grp.append(f'buffer_store_dwordx4 {vr(b,4)}, v{V_XO}, s[{sWS}:{sWS+3}], s7 offen{stf}')
                    r.append(grp)
            return r
        for j in range(4):
            for half in range(2):
                a(f'v_add_u32 v{V_AD+4*half}, s{S_OB+2*j+half}, v{V_AO}')
                for nt_ in range(1, 4): a(f'v_xor_b32 v{V_AD+4*half+nt_}, {nt_<<5}, v{V_AD+4*half}')
            a('s_barrier'); s.stamp(V_ST)
            base = 48 * (j & 1)
            frags = []
            for half in range(2):
                for jj in range(4):
                    for nt_ in range(4):
                        def rd(buf, half=half, jj=jj, nt_=nt_):
                            return [f'ds_read_b64_tr_b16 {vr(buf,2)}, v{V_AD+4*half+nt_} offset:{jj*4096}',
                                    f'ds_read_b64_tr_b16 {vr(buf+2,2)}, v{V_AD+4*half+nt_} offset:{jj*4096+2048}']
                        def mm(buf, half=half, jj=jj, nt_=nt_):
                            r = []
                            for qt in range(3):
                                d = vr(base + ((nt_ >> 1) * 3 + qt) * 8 + (nt_ & 1) * 4, 4)
                                c = '0' if (half == 0 and jj == 0) else d
                                bsrc = (QF if half == 0 else S0) + (jj * 3 + qt) * 4
                                r.append(f'{MF} {d}, {vr(buf,4)}, {vr(bsrc,4)}, {c}')
                            return r
                        frags.append(dict(rd=rd, mm=mm))
            if j > 0:
                for k, grp in enumerate(epi(j - 1)):
                    frags[3 + 4 * k]['post'] = grp
            s.stream(frags)
        s.stamp(V_ST)
        a('s_nop 7')
        for grp in epi(3):
            for x in grp: a(x)
        s.stamp(V_ST)
        s.stamp_flush(V_ST)
        a('s_endpgm')

    def reduce(s):
        a = s.a; o = s.o
        a.raw('.p2align 8'); a.raw('.type red_kernel,@function'); a.label('red_kernel')
        a('s_cmp_ge_u32 s2, 24')
        a('s_cbranch_scc1 L_REND')
        a('s_load_dwordx2 s[4:5], s[0:1], 80')
        a('s_load_dwordx2 s[6:7], s[0:1], 96')
        a('v_lshrrev_b32 v1, 6, v0')
        a('v_and_b32 v0, 63, v0')
        a('v_readfirstlane_b32 s8, v1')
        a('s_nop 3')
        a('s_lshl_b32 s9, s2, 2')
        a('s_add_u32 s8, s8, s9')
        a('s_lshr_b32 s10, s3, 3')
        a('s_and_b32 s11, s3, 7')
        a('s_lshl_b32 s12, s10, 7')
        a('s_add_u32 s12, s12, s11')
        a('s_mul_i32 s12, s12, 98304')
        a('s_lshl_b32 s13, s8, 10')
        a('s_add_u32 s12, s12, s13')
        a('v_lshlrev_b32 v1, 4, v0')
        a('s_waitcnt lgkmcnt(0)')
        a('s_add_u32 s16, s6, s12')
        a('s_addc_u32 s17, s7, 0')
        a(f's_mov_b32 s18, {15*786432+1024}')
        a('s_mov_b32 s19, 0x00020000')
        a('s_mov_b32 s14, 0')
        for hp in range(16):
            a(f'buffer_load_dwordx4 {vr(8+4*hp,4)}, v1, s[16:19], s14 offen{o.ldflag}')
            if hp < 15: a('s_add_u32 s14, s14, 786432')
        a('s_mul_i32 s20, s8, 43')
        a('s_lshr_b32 s20, s20, 8')
        a('s_mul_i32 s21, s20, 6')
        a('s_sub_u32 s21, s8, s21')
        a('s_cmp_ge_u32 s21, 3')
        a('s_cselect_b32 s22, 1, 0')
        a('s_mul_i32 s23, s22, 3')
        a('s_sub_u32 s23, s21, s23')
        a('s_lshr_b32 s24, s20, 2')
        a('s_and_b32 s25, s20, 3')
        a('s_and_b32 s26, s24, 1')
        a('s_lshr_b32 s27, s24, 1')
        a('s_mul_i32 s28, s11, 96')
        a('s_mul_i32 s29, s27, 48')
        a('s_add_u32 s28, s28, s29')
        a('s_lshl_b32 s29, s23, 4')
        a('s_add_u32 s28, s28, s29')
        a('s_lshl_b32 s28, s28, 11')
        a('s_lshl_b32 s29, s10, 10')
        a('s_add_u32 s28, s28, s29')
        a('s_lshl_b32 s29, s26, 9')
        a('s_add_u32 s28, s28, s29')
        a('s_lshl_b32 s29, s25, 7')
        a('s_add_u32 s28, s28, s29')
        a('s_lshl_b32 s29, s22, 6')
        a('s_add_u32 s28, s28, s29')
        a('v_and_b32 v2, 15, v0')
        a('v_lshlrev_b32 v2, 11, v2')
        a('v_lshrrev_b32 v3, 4, v0')
        a('v_and_b32 v4, 1, v3')
        a('v_lshlrev_b32 v4, 5, v4')
        a('v_lshrrev_b32 v3, 1, v3')
        a('v_lshlrev_b32 v3, 4, v3')
        a('v_add_u32 v2, v2, v3')
        a('v_add_u32 v2, v2, v4')
        a('v_add_u32 v2, s28, v2')
        a('s_mov_b32 s8, s4')
        a('s_mov_b32 s9, s5')
        a(f's_mov_b32 s10, {8*96*1024*2}')
        a('s_mov_b32 s11, 0x00020000')
        a('s_mov_b32 s30, 0xffff0000')
        for hp in range(16):
            a(f's_waitcnt vmcnt({15-hp})')
            b = 8 + 4 * hp
            for i in range(4):
                if hp == 0:
                    a(f'v_lshlrev_b32 v{72+2*i}, 16, v{b+i}')
                    a(f'v_and_b32 v{73+2*i}, s30, v{b+i}')
                else:
                    a(f'v_lshlrev_b32 v4, 16, v{b+i}')
                    a(f'v_and_b32 v5, s30, v{b+i}')
                    a(f'v_pk_add_f32 {vr(72+2*i,2)}, {vr(72+2*i,2)}, v[4:5]')
        for i in range(4): a(f'v_cvt_pk_bf16_f32 v{80+i}, v{72+2*i}, v{73+2*i}')
        a('s_nop 1')
        a('v_permlane16_swap_b32 v80, v82')
        a('v_permlane16_swap_b32 v81, v83')
        a('s_nop 1')
        a('buffer_store_dwordx4 v[80:83], v2, s[8:11], 0 offen')
        a.label('L_REND')
        a('s_endpgm')

    def build(s):
        a = s.a; o = s.o
        kn = o.kname
        hdr = open('cdna_kernels/' + NAME + '.s.ref').read().split('\n')
        for ln in hdr:
            if ln.startswith('; @launch'): break
            a.raw(ln)
        for ch in o.list:
            if ch == 'm': a.raw(f'; @launch kernel={kn} grid=(256,1,1) block=(512,1,1) lds=163840')
            if ch == 'r': a.raw(f'; @launch kernel=red_kernel grid=(24,16,1) block=(256,1,1) lds=0')
            if ch == 'n': a.raw(f'; @launch kernel=nop_kernel grid=(256,1,1) block=(64,1,1) lds=0')
        a.raw('.amdgcn_target "amdgcn-amd-amdhsa--gfx950"')
        a.raw('.text')
        a.raw(f'.globl {kn}'); a.raw('.p2align 8'); a.raw(f'.type {kn},@function'); a.label(kn)
        s.prologue()
        s.compute()
        s.loader()
        a.label('L_END'); a('s_endpgm')
        a.raw('.globl red_kernel')
        s.reduce()
        kl = [(kn, 256, 0), ('red_kernel', 88, 1)]
        if 'n' in o.list:
            a.raw('.globl nop_kernel'); a.raw('.p2align 8'); a.raw('.type nop_kernel,@function'); a.label('nop_kernel'); a('s_endpgm')
            kl.append(('nop_kernel', 8, 0))
        a.raw('.section .rodata,"a"')
        for k, nv, y in kl:
            a.raw('.p2align 6')
            a.raw(f'.amdhsa_kernel {k}')
            a.raw(f'  .amdhsa_next_free_vgpr {nv}')
            a.raw('  .amdhsa_next_free_sgpr 102')
            a.raw(f'  .amdhsa_accum_offset {nv}')
            a.raw('  .amdhsa_group_segment_fixed_size 0')
            a.raw('  .amdhsa_kernarg_size 104')
            a.raw('  .amdhsa_user_sgpr_count 2')
            a.raw('  .amdhsa_user_sgpr_kernarg_segment_ptr 1')
            a.raw('  .amdhsa_system_sgpr_workgroup_id_x 1')
            if y: a.raw('  .amdhsa_system_sgpr_workgroup_id_y 1')
            a.raw('.end_amdhsa_kernel')
        return a.text()

if __name__ == '__main__':
    p = argparse.ArgumentParser()
    p.add_argument('-o', default='cdna_kernels/' + NAME + '.s')
    p.add_argument('--kname', default=NAME + '_kernel')
    p.add_argument('--stamps', action='store_true')
    p.add_argument('--nt', action='store_true')
    p.add_argument('--list', default='mr')
    p.add_argument('--fine', action='store_true')
    p.add_argument('--tlb', type=int, default=0)
    p.add_argument('--lprio', type=int, default=0)
    p.add_argument('--stflag', default='')
    p.add_argument('--ldflag', default='')
    o = p.parse_args()
    if o.stflag: o.stflag = ' ' + o.stflag
    if o.ldflag: o.ldflag = ' ' + o.ldflag
    open(o.o, 'w').write(Gen(o).build())
```

```python
import sys, math, argparse

NAME = 'concat_heads__mha_block_cached__gqa_block_cached__near_ridge'

class Asm:
    def __init__(s): s.l = []
    def __call__(s, x):
        for y in x.split('\n'):
            y = y.strip()
            if y: s.l.append('    ' + y)
    def label(s, x): s.l.append(x + ':')
    def raw(s, x): s.l.append(x)
    def text(s): return '\n'.join(s.l) + '\n'

def vr(b, n=1):
    return f'v{b}' if n == 1 else f'v[{b}:{b+n-1}]'
def sr(b, n=1):
    return f's{b}' if n == 1 else f's[{b}:{b+n-1}]'

sX, sK, sV, sWQ, sWO, sWS, sST = 36, 40, 44, 48, 52, 56, 92
S_WAVE, S_BLK, S_HP, S_B = 3, 4, 5, 6
S_16K, S_32K, S_CS, S_NCS, S_LOOP, S_H, S_QG = 60, 61, 62, 63, 64, 65, 66
S_OB = 68
S_OFF, S_C, S_M0B, S_W1K = 76, 77, 78, 79
S_IDX = 80
O0, S0, QF, AB = 0, 96, 144, 192
V_AK, V_AV, V_AQ, V_AO = 224, 225, 226, 227
V_AD = 228
V_M, V_L, V_AL, V_NMC, V_T = 236, 239, 242, 248, 251
V_ST, V_XO = 254, 255
NB = 8

SLOT = lambda i: i * 16384
QSLOT = [65536, 98304, 131072, 0, 32768, 65536, 98304, 131072]
WSLOT = [[8, 9, 0, 1], [2, 6, 7, 3], [4, 5, 8, 9], [0, 1, 2, 6]]
XCH = 49152

class Gen:
    def __init__(s, opt):
        s.o = opt
        s.a = Asm()

    def dstamp(s, idx):
        if not s.o.dbg: return
        a = s.a
        a('s_memtime s[98:99]')
        a('s_waitcnt lgkmcnt(0)')
        a('s_sub_u32 s98, s98, s97')
        a(f'v_writelane_b32 v{V_ST}, s98, {idx}')

    def dflush(s):
        if not s.o.dbg: return
        a = s.a
        a('s_memrealtime s[98:99]')
        a('s_waitcnt lgkmcnt(0)')
        a('v_mov_b32 v2, s98')
        a('s_not_b32 s96, s96')
        a('v_mov_b32 v3, s96')
        a('v_mov_b32 v1, 0')
        a('v_mbcnt_lo_u32_b32 v4, -1, 0')
        a('v_mbcnt_hi_u32_b32 v4, -1, v4')
        a('v_cmp_eq_u32 vcc, 0, v4')
        a('s_and_saveexec_b64 s[18:19], vcc')
        a(f'buffer_atomic_umax v3, v1, s[{sST}:{sST+3}], 0 offen')
        a(f'buffer_atomic_umax v2, v1, s[{sST}:{sST+3}], 0 offen offset:4')
        a('s_mov_b64 exec, s[18:19]')
        a(f's_add_u32 s7, s2, s{S_WAVE}')
        a('s_cmp_lg_u32 s7, 0')
        a('s_cbranch_scc1 L_DBG_SKIP')
        a('v_cmp_le_u32 vcc, 2, v4')
        a('s_and_saveexec_b64 s[18:19], vcc')
        a('v_cmp_gt_u32 vcc, 16, v4')
        a('s_and_saveexec_b64 s[20:21], vcc')
        a('v_lshlrev_b32 v1, 2, v4')
        a(f'buffer_store_dword v{V_ST}, v1, s[{sST}:{sST+3}], 0 offen')
        a.label('L_DBG_SKIP')
        a('s_waitcnt vmcnt(0)')

    def stamp(s, vst):
        if not s.o.stamps: return
        a = s.a
        a('s_memtime s[98:99]')
        a('s_waitcnt lgkmcnt(0)')
        a(f's_mov_b32 m0, s{S_IDX}')
        a(f's_add_u32 s{S_IDX}, s{S_IDX}, 1')
        a(f'v_writelane_b32 v{vst}, s98, m0')

    def stamp_flush(s, vst):
        if not s.o.stamps: return
        a = s.a
        a('s_memrealtime s[98:99]')
        a('s_waitcnt lgkmcnt(0)')
        a(f's_mov_b32 m0, 63')
        a('s_nop 0')
        a(f'v_writelane_b32 v{vst}, s98, m0')
        a(f'v_mbcnt_lo_u32_b32 v1, -1, 0')
        a(f'v_mbcnt_hi_u32_b32 v1, -1, v1')
        a(f'v_lshlrev_b32 v1, 2, v1')
        a(f's_lshl_b32 s7, s2, 3')
        a(f's_add_u32 s7, s7, s{S_WAVE}')
        a(f's_lshl_b32 s7, s7, 8')
        a(f'buffer_store_dword v{vst}, v1, s[{sST}:{sST+3}], s7 offen')
        a('s_waitcnt vmcnt(0)')

    def stream(s, frags, nb=NB):
        a = s.a
        n = len(frags)
        buf = lambda i: AB + 4 * (i % nb)
        for i in range(min(nb - 1, n)):
            for x in frags[i]['rd'](buf(i)): a(x)
        for i, f in enumerate(frags):
            cnt = 2 * min(nb - 2, n - 1 - i)
            w = f's_waitcnt lgkmcnt({cnt})'
            if f.get('pre_vm') is not None:
                w = f's_waitcnt vmcnt({f["pre_vm"]}) lgkmcnt({cnt})'
            a(w)
            mm = f['mm'](buf(i))
            nx = frags[i + nb - 1]['rd'](buf(i + nb - 1)) if i + nb - 1 < n else []
            post = list(f.get('post', []))
            for k, m in enumerate(mm):
                a(m)
                if k < len(nx): a(nx[k])
            for x in nx[len(mm):]: a(x)
            for x in post: a(x)

    def prologue(s):
        a = s.a
        a('s_cmp_ge_u32 s2, 256')
        a('s_cbranch_scc1 L_END')
        a('s_load_dwordx8 s[8:15], s[0:1], 0')
        a('s_load_dwordx2 s[16:17], s[0:1], 32')
        a('s_load_dwordx8 s[20:27], s[0:1], 40')
        a('s_load_dwordx2 s[28:29], s[0:1], 72')
        a('s_load_dwordx2 s[30:31], s[0:1], 96')
        if s.o.dbg:
            a('s_load_dwordx2 s[32:33], s[0:1], 88')
            a('s_memrealtime s[96:97]')
            a('s_memtime s[98:99]')
            a('s_waitcnt lgkmcnt(0)')
            a('s_mov_b32 s97, s98')
            a(f'v_mov_b32 v{V_ST}, 0')
        a('s_and_b32 s7, s2, 7')
        a('s_lshr_b32 s18, s2, 3')
        a('s_lshr_b32 s19, s18, 3')
        a('s_lshl_b32 s7, s7, 2')
        a('s_add_u32 s7, s7, s19')
        a(f's_lshr_b32 s{S_BLK}, s7, 4')
        a(f's_and_b32 s{S_HP}, s7, 15')
        a(f's_and_b32 s{S_B}, s18, 7')
        a('v_lshrrev_b32 v1, 6, v0')
        a('v_and_b32 v0, 63, v0')
        a(f'v_readfirstlane_b32 s{S_WAVE}, v1')
        if s.o.stamps:
            a(f's_mov_b32 s{S_IDX}, 0')
            a(f'v_mov_b32 v{V_ST}, 0')
            a('s_memrealtime s[98:99]')
            a('s_waitcnt lgkmcnt(0)')
            a('s_mov_b32 m0, 62')
            a('s_nop 0')
            a(f'v_writelane_b32 v{V_ST}, s98, m0')
            s.stamp(V_ST)
        a('s_waitcnt lgkmcnt(0)')
        a(f's_cmp_eq_u32 s{S_BLK}, 0')
        for i in range(8): a(f's_cselect_b32 s{8+i}, s{8+i}, s{20+i}')
        a('s_cselect_b32 s16, s16, s28')
        a('s_cselect_b32 s17, s17, s29')
        def srd(d, pb, offreg, nrec):
            a(f's_add_u32 s{d}, s{pb}, s{offreg}')
            a(f's_addc_u32 s{d+1}, s{pb+1}, 0')
            if isinstance(nrec, int): a(f's_mov_b32 s{d+2}, {nrec}')
            else: a(nrec)
            a(f's_mov_b32 s{d+3}, 0x00020000')
        a(f's_mul_i32 s7, s{S_B}, 98304')
        srd(sX, 8, 7, 98304)
        a(f's_lshl_b32 s7, s{S_B}, 22')
        a(f's_lshl_b32 s18, s{S_HP}, 18')
        a('s_add_u32 s7, s7, s18')
        srd(sK, 10, 7, 262144)
        srd(sV, 12, 7, 262144)
        a(f's_lshl_b32 s7, s{S_HP}, 9')
        srd(sWQ, 14, 7, f's_sub_u32 s{sWQ+2}, 4194304, s7')
        srd(sWO, 16, 18, 262144)
        a(f's_lshl_b32 s7, s{S_BLK}, 4')
        a(f's_add_u32 s7, s7, s{S_HP}')
        a('s_lshl_b32 s7, s7, 3')
        a(f's_add_u32 s7, s7, s{S_B}')
        a('s_mul_i32 s7, s7, 98304')
        srd(sWS, 30, 7, 98304)
        if s.o.stamps:
            a('s_mov_b32 s7, 0x2000000')
            srd(sST, 30, 7, 1 << 20)
        if s.o.dbg:
            a(f's_mov_b32 s{sST}, s32'); a(f's_mov_b32 s{sST+1}, s33'); a(f's_mov_b32 s{sST+2}, 256'); a(f's_mov_b32 s{sST+3}, 0x00020000')
        a(f's_cmp_ge_u32 s{S_WAVE}, 4')
        a('s_cbranch_scc1 L_LOADER')

    def loader(s):
        a = s.a; o = s.o
        nt = ' nt' if o.nt else ''
        a.label('L_LOADER')
        if o.fine: s.stamp(V_ST)
        if o.lprio: a(f's_setprio {o.lprio}')
        a(f's_sub_u32 s7, s{S_WAVE}, 4')
        a(f's_lshl_b32 s{S_W1K}, s7, 10')
        a('v_lshrrev_b32 v1, 4, v0')
        a('v_and_b32 v2, 15, v0')
        a('s_lshl_b32 s18, s7, 2')
        a('v_add_u32 v3, s18, v1')
        a('v_and_b32 v4, 7, v3')
        a('v_lshlrev_b32 v4, 1, v4')
        a('v_lshrrev_b32 v5, 3, v3')
        a('v_or_b32 v4, v4, v5')
        a('v_xor_b32 v5, v2, v4')
        a('v_lshlrev_b32 v5, 4, v5')
        VKV, VWQ, VWO = 10, 11, 12
        a(f'v_lshlrev_b32 v6, 8, v3')
        a(f'v_add_u32 v{VKV}, v6, v5')
        a('s_lshl_b32 s18, s7, 3')
        a('v_add_u32 v6, s18, v1')
        a('v_lshlrev_b32 v6, 13, v6')
        a(f'v_add_u32 v{VWQ}, v6, v5')
        a('v_lshrrev_b32 v6, 3, v0')
        a('v_lshlrev_b32 v6, 10, v6')
        a('v_and_b32 v7, 7, v0')
        a('v_lshrrev_b32 v7, 1, v7')
        a('v_xor_b32 v7, v7, v1')
        a('v_lshlrev_b32 v7, 5, v7')
        a('v_and_b32 v8, 1, v0')
        a('v_lshlrev_b32 v8, 4, v8')
        a('v_add_u32 v6, v6, v7')
        a('v_add_u32 v6, v6, v8')
        a('s_lshl_b32 s18, s7, 13')
        a(f'v_add_u32 v{VWO}, s18, v6')

        def piece(m0expr, offexpr, voff, srd, flag=''):
            a(m0expr); a(offexpr)
            a(f'buffer_load_dwordx4 v{voff}, s[{srd}:{srd+3}], s{S_OFF} offen{flag} lds')
        def G(i):
            for ks in range(2):
                for h in range(2):
                    for aa in range(2):
                        m0 = QSLOT[i] + ks * 16384 + h * 8192 + aa * 4096
                        off = (2 * i + ks) * 262144 + aa * 32768 + h * 256
                        piece(f's_add_u32 m0, s{S_W1K}, {m0}', f's_mov_b32 s{S_OFF}, {off}', VWQ, sWQ)
        def KV(srd, c, isv):
            for h in range(2):
                for m in range(4):
                    m0 = (c & 1) * 65536 + isv * 32768 + h * 16384 + m * 4096
                    off = h * 131072 + c * 16384 + m * 4096
                    piece(f's_add_u32 m0, s{S_W1K}, {m0}', f's_mov_b32 s{S_OFF}, {off}', VKV, srd, nt)
        def KVdyn(srd, isv):
            for h in range(2):
                for m in range(4):
                    m0 = isv * 32768 + h * 16384 + m * 4096
                    off = h * 131072 + m * 4096
                    piece(f's_add_u32 m0, s{S_M0B}, {m0}', f's_add_u32 s{S_OFF}, s{S_C}, {off}', VKV, srd, nt)
        def W(j, t):
            nh, kh = t >> 1, t & 1
            for u in range(4):
                m0 = SLOT(WSLOT[j][t]) + u * 4096
                off = (kh * 128 + 32 * u) * 1024 + (nh * 256 + 64 * j) * 2
                piece(f's_add_u32 m0, s{S_W1K}, {m0}', f's_mov_b32 s{S_OFF}, {off}', VWO, sWO)
        def wb(n):
            a(f's_waitcnt vmcnt({n})'); a('s_barrier'); s.stamp(V_ST)

        if o.tlb == 1:
            a('v_lshlrev_b32 v20, 2, v0')
            for srd, off in ((sWQ,0),(sWQ,8192*8),(sWQ,8192*300),(sK,0),(sK,8192),(sK,131072),(sV,0),(sV,8192),(sWO,0),(sWO,8192),(sWS,0),(sX,0),(sX,65536)):
                a(f's_mov_b32 s{S_OFF}, {off}')
                a(f'buffer_load_dword v21, v20, s[{srd}:{srd+3}], s{S_OFF} offen')
                a('s_waitcnt vmcnt(0)'); s.stamp(V_ST)
        if o.tlb == 2:
            a('v_lshlrev_b32 v20, 2, v0')
            for k, (srd, off) in enumerate(((sWQ,0),(sWQ,8192*300),(sK,0),(sV,0),(sWO,0),(sWS,0))):
                a(f's_mov_b32 s{S_OFF}, {off}')
                a(f'buffer_load_dword v{21+k}, v20, s[{srd}:{srd+3}], s{S_OFF} offen')
            s.stamp(V_ST)
            for k in range(6):
                a(f's_waitcnt vmcnt({5-k})'); s.stamp(V_ST)
        if o.fine: s.stamp(V_ST)
        for i in range(5):
            G(i)
            if o.fine: s.stamp(V_ST)
        if o.fine:
            a('s_waitcnt vmcnt(39)'); s.stamp(V_ST)
            a('s_waitcnt vmcnt(32)'); s.stamp(V_ST)
        wb(32)
        wb(24); G(5)
        wb(24); G(6)
        wb(24); G(7)
        wb(24); KV(sK, 0, 0)
        wb(24); KV(sV, 0, 1)
        wb(24); KV(sK, 1, 0)
        wb(24); KV(sV, 1, 1)
        wb(24)
        wb(16); KV(sK, 2, 0)
        a(f's_mov_b32 s{S_LOOP}, 5')
        a(f's_mov_b32 s{S_C}, {2*16384}')
        a(f's_mov_b32 s{S_M0B}, s{S_W1K}')
        a.label('L_LD_LOOP')
        wb(16); KVdyn(sV, 1)
        a(f's_add_u32 s{S_C}, s{S_C}, 16384')
        a(f's_xor_b32 s{S_M0B}, s{S_M0B}, 65536')
        wb(16); KVdyn(sK, 0)
        a(f's_sub_u32 s{S_LOOP}, s{S_LOOP}, 1')
        a(f's_cmp_lg_u32 s{S_LOOP}, 0')
        a('s_cbranch_scc1 L_LD_LOOP')
        wb(16); KV(sV, 7, 1)
        wb(16)
        for t in range(4): W(0, t)
        wb(24); W(1, 0)
        wb(20)
        a('s_barrier'); s.stamp(V_ST)
        W(1, 1); W(1, 2)
        wb(12); W(1, 3); W(2, 0); W(2, 1)
        wb(8); W(2, 2); W(2, 3); W(3, 0); W(3, 1)
        wb(8); W(3, 2); W(3, 3)
        wb(0)
        s.stamp_flush(V_ST)
        a('s_endpgm')

    def compute(s):
        a = s.a; o = s.o
        cs = (128 ** -0.5) * math.log2(math.e)
        import struct
        fb = lambda x: struct.unpack('<I', struct.pack('<f', x))[0]
        a(f's_and_b32 s{S_H}, s{S_WAVE}, 1')
        a(f's_lshr_b32 s{S_QG}, s{S_WAVE}, 1')
        a(f's_mov_b32 s{S_16K}, 16384')
        a(f's_mov_b32 s{S_32K}, 32768')
        a('v_and_b32 v1, 15, v0')
        a('v_lshrrev_b32 v2, 4, v0')
        a(f's_mul_i32 s7, s{S_QG}, 48')
        a('v_add_u32 v3, s7, v1')
        a('v_lshlrev_b32 v3, 10, v3')
        a('v_lshlrev_b32 v4, 4, v2')
        a(f'v_add_u32 v{V_XO}, v3, v4')
        XR = lambda ks, qt: 96 + (ks % 8) * 12 + qt * 4
        def xload(ks):
            r = []
            for qt in range(3):
                so = ['0', f's{S_16K}', f's{S_32K}'][qt]
                r.append(f'buffer_load_dwordx4 {vr(XR(ks,qt),4)}, v{V_XO}, s[{sX}:{sX+3}], {so} offen offset:{ks*64}')
            return r
        if o.fine: s.stamp(V_ST)
        for ks in range(8):
            for x in xload(ks): a(x)
        if o.fine:
            s.stamp(V_ST)
            a('s_waitcnt vmcnt(23)'); s.stamp(V_ST)
            a('s_waitcnt vmcnt(21)'); s.stamp(V_ST)
            a('s_waitcnt vmcnt(0)'); s.stamp(V_ST)
        a(f's_mov_b32 s{S_CS}, {hex(fb(cs))}')
        a(f's_mov_b32 s{S_NCS}, {hex(fb(-cs))}')
        def ffun(dst, src, tmp):
            a(f'v_and_b32 v{dst}, 7, v{src}')
            a(f'v_lshlrev_b32 v{dst}, 1, v{dst}')
            a(f'v_lshrrev_b32 v{tmp}, 3, v{src}')
            a(f'v_or_b32 v{dst}, v{dst}, v{tmp}')
        ffun(5, 1, 6)
        a('v_lshrrev_b32 v6, 1, v2')
        a('v_xor_b32 v5, v5, v6')
        a('v_lshlrev_b32 v5, 4, v5')
        a('v_lshlrev_b32 v6, 8, v1')
        a('v_add_u32 v5, v5, v6')
        a('v_and_b32 v6, 1, v2')
        a('v_lshlrev_b32 v6, 3, v6')
        a('v_add_u32 v5, v5, v6')
        a(f's_lshl_b32 s7, s{S_H}, 14')
        a(f'v_add_u32 v{V_AK}, s7, v5')
        a('v_lshrrev_b32 v7, 2, v1')
        a('v_lshlrev_b32 v8, 2, v2')
        a('v_add_u32 v8, v8, v7')
        a('v_and_b32 v9, 3, v0')
        ffun(5, 8, 6)
        a('v_lshrrev_b32 v6, 1, v9')
        a('v_xor_b32 v5, v5, v6')
        a('v_lshlrev_b32 v5, 4, v5')
        a('v_lshlrev_b32 v6, 8, v8')
        a('v_add_u32 v5, v5, v6')
        a('v_and_b32 v6, 1, v9')
        a('v_lshlrev_b32 v6, 3, v6')
        a('v_add_u32 v5, v5, v6')
        a(f's_add_u32 s18, s7, 32768')
        a(f'v_add_u32 v{V_AV}, s18, v5')
        a(f's_lshl_b32 s7, s{S_H}, 13')
        a(f'v_add_u32 v{V_AQ}, s7, v5')
        a('v_lshrrev_b32 v5, 1, v8')
        a('v_and_b32 v5, 3, v5')
        a('v_lshlrev_b32 v5, 5, v5')
        a('v_lshlrev_b32 v6, 7, v8')
        a('v_add_u32 v5, v5, v6')
        a('v_lshlrev_b32 v6, 3, v9')
        a(f'v_add_u32 v{V_AO}, v5, v6')
        a(f's_cmp_eq_u32 s{S_H}, 0')
        for j in range(4):
            a(f's_cselect_b32 s{S_OB+2*j}, {WSLOT[j][0]}, {WSLOT[j][3]}')
            a(f's_cselect_b32 s{S_OB+2*j+1}, {WSLOT[j][1]}, {WSLOT[j][2]}')
        for j in range(8): a(f's_lshl_b32 s{S_OB+j}, s{S_OB+j}, 14')
        def addr8(base_v, add=None):
            if add is not None:
                a(f'v_add_u32 v{V_AD}, {add}, v{base_v}')
            else:
                a(f'v_mov_b32 v{V_AD}, v{base_v}')
            for u in range(1, 8): a(f'v_xor_b32 v{V_AD+u}, {u<<5}, v{V_AD}')
        MF = 'v_mfma_f32_16x16x32_bf16'
        for gi in range(8):
            addr8(V_AQ, QSLOT[gi])
            a('s_barrier'); s.stamp(V_ST)
            if gi in (0, 4): s.dstamp(2 + gi // 4)
            frags = []
            for kk in range(2):
                ks = 2 * gi + kk
                for dt in range(8):
                    def rd(buf, dt=dt, kk=kk):
                        return [f'ds_read_b64_tr_b16 {vr(buf,2)}, v{V_AD+dt} offset:{kk*16384}',
                                f'ds_read_b64_tr_b16 {vr(buf+2,2)}, v{V_AD+dt} offset:{kk*16384+4096}']
                    def mm(buf, dt=dt, ks=ks):
                        r = []
                        for qt in range(3):
                            d = vr(O0 + (dt * 3 + qt) * 4, 4)
                            c = '0' if ks == 0 else d
                            r.append(f'{MF} {d}, {vr(buf,4)}, {vr(XR(ks,qt),4)}, {c}')
                        return r
                    f = dict(rd=rd, mm=mm)
                    if dt == 0: f['pre_vm'] = 21 if ks < 8 else 3 * (15 - ks)
                    if dt == 7 and ks < 8: f['post'] = xload(ks + 8)
                    frags.append(f)
            s.stream(frags)
        s.stamp(V_ST); s.dstamp(4)
        a('s_nop 7')
        for j in range(4):
            for qt in range(3):
                for t in range(2):
                    src = O0 + ((2 * j + t) * 3 + qt) * 4
                    dst = QF + (j * 3 + qt) * 4 + 2 * t
                    a(f'v_cvt_pk_bf16_f32 v{dst}, v{src}, v{src+1}')
                    a(f'v_cvt_pk_bf16_f32 v{dst+1}, v{src+2}, v{src+3}')
        for i in range(96): a(f'v_mov_b32 v{O0+i}, 0')
        for qt in range(3):
            a(f'v_mov_b32 v{V_M+qt}, 0xff800000')
            a(f'v_mov_b32 v{V_L+qt}, 0')
        a(f's_mov_b32 s{S_LOOP}, 8')
        a.label('L_ATT')
        addr8(V_AK)
        a('s_barrier'); s.stamp(V_ST)
        if s.o.dbg:
            a(f's_cmp_lg_u32 s{S_LOOP}, 8'); a('s_cbranch_scc1 L_DB0'); s.dstamp(5); a.label('L_DB0')
            a(f's_cmp_lg_u32 s{S_LOOP}, 4'); a('s_cbranch_scc1 L_DB1'); s.dstamp(6); a.label('L_DB1')
        SR = lambda kt, qt: S0 + ((kt >> 1) * 3 + qt) * 8 + (kt & 1) * 4
        frags = []
        for j in range(4):
            for kt in range(4):
                def rd(buf, j=j, kt=kt):
                    return [f'ds_read_b64 {vr(buf,2)}, v{V_AD+2*j} offset:{kt*4096}',
                            f'ds_read_b64 {vr(buf+2,2)}, v{V_AD+2*j+1} offset:{kt*4096}']
                def mm(buf, j=j, kt=kt):
                    r = []
                    for qt in range(3):
                        d = vr(SR(kt, qt), 4)
                        c = '0' if j == 0 else d
                        r.append(f'{MF} {d}, {vr(buf,4)}, {vr(QF+(j*3+qt)*4,4)}, {c}')
                    return r
                frags.append(dict(rd=rd, mm=mm))
        s.stream(frags)
        addr8(V_AV)
        a(f'v_xor_b32 v{V_AK}, 65536, v{V_AK}')
        a(f'v_xor_b32 v{V_AV}, 65536, v{V_AV}')
        SQ = lambda qt: [S0 + (kk * 3 + qt) * 8 + i for kk in range(2) for i in range(8)]
        PK = lambda qt: [S0 + (kk * 3 + qt) * 8 for kk in range(2)]
        MX = [V_NMC + q for q in range(3)]
        for qt in range(3):
            r = SQ(qt)
            a(f'v_max3_f32 v{MX[qt]}, v{r[0]}, v{r[1]}, v{r[2]}')
        for i in range(6):
            for qt in range(3):
                r = SQ(qt)
                a(f'v_max3_f32 v{MX[qt]}, v{MX[qt]}, v{r[3+2*i]}, v{r[4+2*i]}')
        for qt in range(3):
            r = SQ(qt)
            a(f'v_max3_f32 v{MX[qt]}, v{MX[qt]}, v{r[15]}, v{V_M+qt}')
        for sw in ('v_permlane16_swap_b32', 'v_permlane32_swap_b32'):
            for qt in range(3): a(f'v_mov_b32 v{V_T+qt}, v{MX[qt]}')
            a('s_nop 0')
            for qt in range(3): a(f'{sw} v{MX[qt]}, v{V_T+qt}')
            a('s_nop 0')
            for qt in range(3): a(f'v_max_f32 v{MX[qt]}, v{MX[qt]}, v{V_T+qt}')
        for qt in range(3): a(f'v_sub_f32 v{V_T+qt}, v{V_M+qt}, v{MX[qt]}')
        for qt in range(3): a(f'v_mul_f32 v{V_T+qt}, s{S_CS}, v{V_T+qt}')
        for qt in range(3): a(f'v_exp_f32 v{V_AL+2*qt}, v{V_T+qt}')
        for qt in range(3): a(f'v_mov_b32 v{V_M+qt}, v{MX[qt]}')
        for qt in range(3): a(f'v_mul_f32 v{V_NMC+qt}, s{S_NCS}, v{MX[qt]}')
        for qt in range(3):
            r = SQ(qt)
            for i in range(0, 16, 4):
                for k in range(4): a(f'v_fma_f32 v{r[i+k]}, v{r[i+k]}, s{S_CS}, v{V_NMC+qt}')
                for k in range(4): a(f'v_exp_f32 v{r[i+k]}, v{r[i+k]}')
        for dt in range(8):
            for qt in range(3):
                b = O0 + (dt * 3 + qt) * 4
                for hh in range(2):
                    a(f'v_pk_mul_f32 {vr(b+2*hh,2)}, {vr(b+2*hh,2)}, {vr(V_AL+2*qt,2)} op_sel_hi:[1,0]')
        TP = V_AB_T = AB
        for qt in range(3):
            r = SQ(qt)
            a(f'v_pk_add_f32 {vr(TP+2*qt,2)}, {vr(r[0],2)}, {vr(r[2],2)}')
        for i in range(2, 8):
            for qt in range(3):
                r = SQ(qt)
                a(f'v_pk_add_f32 {vr(TP+2*qt,2)}, {vr(TP+2*qt,2)}, {vr(r[2*i],2)}')
        for qt in range(3): a(f'v_fma_f32 v{V_L+qt}, v{V_L+qt}, v{V_AL+2*qt}, v{TP+2*qt}')
        for qt in range(3): a(f'v_add_f32 v{V_L+qt}, v{V_L+qt}, v{TP+2*qt+1}')
        for qt in range(3):
            for kk in range(2):
                b = S0 + (kk * 3 + qt) * 8
                for i in range(4): a(f'v_cvt_pk_bf16_f32 v{b+i}, v{b+2*i}, v{b+2*i+1}')
        a('s_barrier'); s.stamp(V_ST)
        frags = []
        for dt in range(8):
            for kk in range(2):
                def rd(buf, dt=dt, kk=kk):
                    return [f'ds_read_b64_tr_b16 {vr(buf,2)}, v{V_AD+dt} offset:{kk*8192}',
                            f'ds_read_b64_tr_b16 {vr(buf+2,2)}, v{V_AD+dt} offset:{kk*8192+4096}']
                def mm(buf, dt=dt, kk=kk):
                    r = []
                    for qt in range(3):
                        d = vr(O0 + (dt * 3 + qt) * 4, 4)
                        r.append(f'{MF} {d}, {vr(buf,4)}, {vr(S0+(kk*3+qt)*8,4)}, {d}')
                    return r
                frags.append(dict(rd=rd, mm=mm))
        s.stream(frags)
        a(f's_sub_u32 s{S_LOOP}, s{S_LOOP}, 1')
        a(f's_cmp_lg_u32 s{S_LOOP}, 0')
        a('s_cbranch_scc1 L_ATT')
        s.stamp(V_ST); s.dstamp(7)
        for sw in ('v_permlane16_swap_b32', 'v_permlane32_swap_b32'):
            for qt in range(3): a(f'v_mov_b32 v{V_T+qt}, v{V_L+qt}')
            a('s_nop 0')
            for qt in range(3): a(f'{sw} v{V_L+qt}, v{V_T+qt}')
            a('s_nop 0')
            for qt in range(3): a(f'v_add_f32 v{V_L+qt}, v{V_L+qt}, v{V_T+qt}')
        for qt in range(3): a(f'v_rcp_f32 v{V_AL+2*qt}, v{V_L+qt}')
        a('s_nop 0')
        a('v_mbcnt_lo_u32_b32 v251, -1, 0')
        a('v_mbcnt_hi_u32_b32 v251, -1, v251')
        a('v_lshlrev_b32 v251, 4, v251')
        a(f's_mul_i32 s7, s{S_WAVE}, 12288')
        a(f's_add_u32 s7, s7, {XCH}')
        a('v_add_u32 v252, s7, v251')
        a(f's_xor_b32 s18, s{S_WAVE}, 1')
        a(f's_mul_i32 s18, s18, 12288')
        a(f's_add_u32 s18, s18, {XCH}')
        a('v_add_u32 v253, s18, v251')
        a(f's_mul_i32 s7, s{S_WAVE}, 24576')
        a(f'v_add_u32 v{V_XO}, s7, v251')
        for j in range(4):
            for qt in range(3):
                for t in range(2):
                    b = O0 + ((2 * j + t) * 3 + qt) * 4
                    for hh in range(2):
                        a(f'v_pk_mul_f32 {vr(b+2*hh,2)}, {vr(b+2*hh,2)}, {vr(V_AL+2*qt,2)} op_sel_hi:[1,0]')
                for t in range(2):
                    src = O0 + ((2 * j + t) * 3 + qt) * 4
                    dst = QF + (j * 3 + qt) * 4 + 2 * t
                    a(f'v_cvt_pk_bf16_f32 v{dst}, v{src}, v{src+1}')
                    a(f'v_cvt_pk_bf16_f32 v{dst+1}, v{src+2}, v{src+3}')
                a(f'ds_write_b128 v252, {vr(QF+(j*3+qt)*4,4)} offset:{(j*3+qt)*1024}')
        a('s_waitcnt lgkmcnt(0)')
        a('s_barrier'); s.stamp(V_ST); s.dstamp(8)
        for i in range(12): a(f'ds_read_b128 {vr(S0+4*i,4)}, v253 offset:{i*1024}')
        a('s_waitcnt lgkmcnt(0)')
        stf = o.stflag
        def epi(j):
            r = []
            base = 48 * (j & 1)
            for u in range(2):
                for qt in range(3):
                    b = base + (u * 3 + qt) * 8
                    grp = [f'v_cvt_pk_bf16_f32 v{b+i}, v{b+2*i}, v{b+2*i+1}' for i in range(4)]
                    off = j * 6144 + (u * 3 + qt) * 1024
                    grp.append(f's_mov_b32 s7, {off}')
                    grp.append(f'buffer_store_dwordx4 {vr(b,4)}, v{V_XO}, s[{sWS}:{sWS+3}], s7 offen{stf}')
                    r.append(grp)
            return r
        for j in range(4):
            for half in range(2):
                a(f'v_add_u32 v{V_AD+4*half}, s{S_OB+2*j+half}, v{V_AO}')
                for nt_ in range(1, 4): a(f'v_xor_b32 v{V_AD+4*half+nt_}, {nt_<<5}, v{V_AD+4*half}')
            a('s_barrier'); s.stamp(V_ST); s.dstamp(9 + j)
            base = 48 * (j & 1)
            frags = []
            for half in range(2):
                for jj in range(4):
                    for nt_ in range(4):
                        def rd(buf, half=half, jj=jj, nt_=nt_):
                            return [f'ds_read_b64_tr_b16 {vr(buf,2)}, v{V_AD+4*half+nt_} offset:{jj*4096}',
                                    f'ds_read_b64_tr_b16 {vr(buf+2,2)}, v{V_AD+4*half+nt_} offset:{jj*4096+2048}']
                        def mm(buf, half=half, jj=jj, nt_=nt_):
                            r = []
                            for qt in range(3):
                                d = vr(base + ((nt_ >> 1) * 3 + qt) * 8 + (nt_ & 1) * 4, 4)
                                c = '0' if (half == 0 and jj == 0) else d
                                bsrc = (QF if half == 0 else S0) + (jj * 3 + qt) * 4
                                r.append(f'{MF} {d}, {vr(buf,4)}, {vr(bsrc,4)}, {c}')
                            return r
                        frags.append(dict(rd=rd, mm=mm))
            if j > 0:
                for k, grp in enumerate(epi(j - 1)):
                    frags[3 + 4 * k]['post'] = grp
            s.stream(frags)
        s.stamp(V_ST)
        a('s_nop 7')
        for grp in epi(3):
            for x in grp: a(x)
        s.stamp(V_ST); s.dstamp(13)
        if s.o.dbg:
            a('s_waitcnt vmcnt(0)'); s.dstamp(14)
        s.dflush()
        s.stamp_flush(V_ST)
        a('s_endpgm')

    def reduce(s):
        a = s.a; o = s.o
        a.raw('.p2align 8'); a.raw('.type red_kernel,@function'); a.label('red_kernel')
        a('s_cmp_ge_u32 s2, 24')
        a('s_cbranch_scc1 L_REND')
        a('s_load_dwordx2 s[4:5], s[0:1], 80')
        a('s_load_dwordx2 s[6:7], s[0:1], 96')
        a('v_lshrrev_b32 v1, 6, v0')
        a('v_and_b32 v0, 63, v0')
        a('v_readfirstlane_b32 s8, v1')
        a('s_nop 3')
        a('s_lshl_b32 s9, s2, 2')
        a('s_add_u32 s8, s8, s9')
        a('s_lshr_b32 s10, s3, 3')
        a('s_and_b32 s11, s3, 7')
        a('s_lshl_b32 s12, s10, 7')
        a('s_add_u32 s12, s12, s11')
        a('s_mul_i32 s12, s12, 98304')
        a('s_lshl_b32 s13, s8, 10')
        a('s_add_u32 s12, s12, s13')
        a('v_lshlrev_b32 v1, 4, v0')
        a('s_waitcnt lgkmcnt(0)')
        a('s_add_u32 s16, s6, s12')
        a('s_addc_u32 s17, s7, 0')
        a(f's_mov_b32 s18, {15*786432+1024}')
        a('s_mov_b32 s19, 0x00020000')
        a('s_mov_b32 s14, 0')
        for hp in range(16):
            a(f'buffer_load_dwordx4 {vr(8+4*hp,4)}, v1, s[16:19], s14 offen{o.ldflag}')
            if hp < 15: a('s_add_u32 s14, s14, 786432')
        a('s_mul_i32 s20, s8, 43')
        a('s_lshr_b32 s20, s20, 8')
        a('s_mul_i32 s21, s20, 6')
        a('s_sub_u32 s21, s8, s21')
        a('s_cmp_ge_u32 s21, 3')
        a('s_cselect_b32 s22, 1, 0')
        a('s_mul_i32 s23, s22, 3')
        a('s_sub_u32 s23, s21, s23')
        a('s_lshr_b32 s24, s20, 2')
        a('s_and_b32 s25, s20, 3')
        a('s_and_b32 s26, s24, 1')
        a('s_lshr_b32 s27, s24, 1')
        a('s_mul_i32 s28, s11, 96')
        a('s_mul_i32 s29, s27, 48')
        a('s_add_u32 s28, s28, s29')
        a('s_lshl_b32 s29, s23, 4')
        a('s_add_u32 s28, s28, s29')
        a('s_lshl_b32 s28, s28, 11')
        a('s_lshl_b32 s29, s10, 10')
        a('s_add_u32 s28, s28, s29')
        a('s_lshl_b32 s29, s26, 9')
        a('s_add_u32 s28, s28, s29')
        a('s_lshl_b32 s29, s25, 7')
        a('s_add_u32 s28, s28, s29')
        a('s_lshl_b32 s29, s22, 6')
        a('s_add_u32 s28, s28, s29')
        a('v_and_b32 v2, 15, v0')
        a('v_lshlrev_b32 v2, 11, v2')
        a('v_lshrrev_b32 v3, 4, v0')
        a('v_and_b32 v4, 1, v3')
        a('v_lshlrev_b32 v4, 5, v4')
        a('v_lshrrev_b32 v3, 1, v3')
        a('v_lshlrev_b32 v3, 4, v3')
        a('v_add_u32 v2, v2, v3')
        a('v_add_u32 v2, v2, v4')
        a('v_add_u32 v2, s28, v2')
        a('s_mov_b32 s8, s4')
        a('s_mov_b32 s9, s5')
        a(f's_mov_b32 s10, {8*96*1024*2}')
        a('s_mov_b32 s11, 0x00020000')
        a('s_mov_b32 s30, 0xffff0000')
        for hp in range(16):
            a(f's_waitcnt vmcnt({15-hp})')
            b = 8 + 4 * hp
            for i in range(4):
                if hp == 0:
                    a(f'v_lshlrev_b32 v{72+2*i}, 16, v{b+i}')
                    a(f'v_and_b32 v{73+2*i}, s30, v{b+i}')
                else:
                    a(f'v_lshlrev_b32 v4, 16, v{b+i}')
                    a(f'v_and_b32 v5, s30, v{b+i}')
                    a(f'v_pk_add_f32 {vr(72+2*i,2)}, {vr(72+2*i,2)}, v[4:5]')
        for i in range(4): a(f'v_cvt_pk_bf16_f32 v{80+i}, v{72+2*i}, v{73+2*i}')
        a('s_nop 1')
        a('v_permlane16_swap_b32 v80, v82')
        a('v_permlane16_swap_b32 v81, v83')
        a('s_nop 1')
        a('buffer_store_dwordx4 v[80:83], v2, s[8:11], 0 offen')
        a.label('L_REND')
        a('s_endpgm')

    def build(s):
        a = s.a; o = s.o
        kn = o.kname
        hdr = open('cdna_kernels/' + NAME + '.s.ref').read().split('\n')
        for ln in hdr:
            if ln.startswith('; @launch'): break
            a.raw(ln)
        for ch in o.list:
            if ch == 'm': a.raw(f'; @launch kernel={kn} grid=(256,1,1) block=(512,1,1) lds=163840')
            if ch == 'r': a.raw(f'; @launch kernel=red_kernel grid=(24,16,1) block=(256,1,1) lds=0')
            if ch == 'n': a.raw(f'; @launch kernel=nop_kernel grid=(256,1,1) block=(64,1,1) lds=0')
        a.raw('.amdgcn_target "amdgcn-amd-amdhsa--gfx950"')
        a.raw('.text')
        a.raw(f'.globl {kn}'); a.raw('.p2align 8'); a.raw(f'.type {kn},@function'); a.label(kn)
        s.prologue()
        s.compute()
        s.loader()
        a.label('L_END'); a('s_endpgm')
        a.raw('.globl red_kernel')
        s.reduce()
        kl = [(kn, 256, 0), ('red_kernel', 88, 1)]
        if 'n' in o.list:
            a.raw('.globl nop_kernel'); a.raw('.p2align 8'); a.raw('.type nop_kernel,@function'); a.label('nop_kernel'); a('s_endpgm')
            kl.append(('nop_kernel', 8, 0))
        a.raw('.section .rodata,"a"')
        for k, nv, y in kl:
            a.raw('.p2align 6')
            a.raw(f'.amdhsa_kernel {k}')
            a.raw(f'  .amdhsa_next_free_vgpr {nv}')
            a.raw('  .amdhsa_next_free_sgpr 102')
            a.raw(f'  .amdhsa_accum_offset {nv}')
            a.raw('  .amdhsa_group_segment_fixed_size 0')
            a.raw('  .amdhsa_kernarg_size 104')
            a.raw('  .amdhsa_user_sgpr_count 2')
            a.raw('  .amdhsa_user_sgpr_kernarg_segment_ptr 1')
            a.raw('  .amdhsa_system_sgpr_workgroup_id_x 1')
            if y: a.raw('  .amdhsa_system_sgpr_workgroup_id_y 1')
            a.raw('.end_amdhsa_kernel')
        return a.text()

if __name__ == '__main__':
    p = argparse.ArgumentParser()
    p.add_argument('-o', default='cdna_kernels/' + NAME + '.s')
    p.add_argument('--kname', default=NAME + '_kernel')
    p.add_argument('--stamps', action='store_true')
    p.add_argument('--nt', action='store_true')
    p.add_argument('--list', default='mr')
    p.add_argument('--fine', action='store_true')
    p.add_argument('--dbg', action='store_true')
    p.add_argument('--tlb', type=int, default=0)
    p.add_argument('--lprio', type=int, default=0)
    p.add_argument('--stflag', default='')
    p.add_argument('--ldflag', default='')
    o = p.parse_args()
    if o.stflag: o.stflag = ' ' + o.stflag
    if o.ldflag: o.ldflag = ' ' + o.ldflag
    open(o.o, 'w').write(Gen(o).build())
```

```python
import sys, math, argparse

NAME = 'concat_heads__mha_block_cached__gqa_block_cached__near_ridge'

class Asm:
    def __init__(s): s.l = []
    def __call__(s, x):
        for y in x.split('\n'):
            y = y.strip()
            if y: s.l.append('    ' + y)
    def label(s, x): s.l.append(x + ':')
    def raw(s, x): s.l.append(x)
    def text(s): return '\n'.join(s.l) + '\n'

def vr(b, n=1):
    return f'v{b}' if n == 1 else f'v[{b}:{b+n-1}]'
def sr(b, n=1):
    return f's{b}' if n == 1 else f's[{b}:{b+n-1}]'

sX, sK, sV, sWQ, sWO, sWS, sST = 36, 40, 44, 48, 52, 56, 92
S_WAVE, S_BLK, S_HP, S_B = 3, 4, 5, 6
S_16K, S_32K, S_CS, S_NCS, S_LOOP, S_H, S_QG = 60, 61, 62, 63, 64, 65, 66
S_OB = 68
S_OFF, S_C, S_M0B, S_W1K = 76, 77, 78, 79
S_IDX = 80
O0, S0, QF, AB = 0, 96, 144, 192
V_AK, V_AV, V_AQ, V_AO = 224, 225, 226, 227
V_AD = 228
V_M, V_L, V_AL, V_NMC, V_T = 236, 239, 242, 248, 251
V_ST, V_XO = 254, 255
NB = 8

SLOT = lambda i: i * 16384
QSLOT = [65536, 98304, 131072, 0, 32768, 65536, 98304, 131072]
WSLOT = [[8, 9, 0, 1], [2, 6, 7, 3], [4, 5, 8, 9], [0, 1, 2, 6]]
XCH = 49152

class Gen:
    def __init__(s, opt):
        s.o = opt
        s.a = Asm()

    def dstamp(s, idx):
        if not s.o.dbg: return
        a = s.a
        a('s_memtime s[98:99]')
        a('s_waitcnt lgkmcnt(0)')
        a('s_sub_u32 s98, s98, s97')
        a(f'v_writelane_b32 v{V_ST}, s98, {idx}')

    def dflush(s):
        if not s.o.dbg: return
        a = s.a
        a('s_memrealtime s[98:99]')
        a('s_waitcnt lgkmcnt(0)')
        a(f'v_writelane_b32 v{V_ST}, s98, 1')
        a(f'v_writelane_b32 v{V_ST}, s96, 0')
        a(f's_cmp_lg_u32 s{S_WAVE}, 0')
        a('s_cbranch_scc1 L_DBG_SKIP')
        a('v_mbcnt_lo_u32_b32 v4, -1, 0')
        a('v_mbcnt_hi_u32_b32 v4, -1, v4')
        a('v_lshlrev_b32 v1, 2, v4')
        a('s_lshl_b32 s7, s2, 8')
        a(f'buffer_store_dword v{V_ST}, v1, s[{sST}:{sST+3}], s7 offen')
        a.label('L_DBG_SKIP')
        a('s_waitcnt vmcnt(0)')

    def stamp(s, vst):
        if not s.o.stamps: return
        a = s.a
        a('s_memtime s[98:99]')
        a('s_waitcnt lgkmcnt(0)')
        a(f's_mov_b32 m0, s{S_IDX}')
        a(f's_add_u32 s{S_IDX}, s{S_IDX}, 1')
        a(f'v_writelane_b32 v{vst}, s98, m0')

    def stamp_flush(s, vst):
        if not s.o.stamps: return
        a = s.a
        a('s_memrealtime s[98:99]')
        a('s_waitcnt lgkmcnt(0)')
        a(f's_mov_b32 m0, 63')
        a('s_nop 0')
        a(f'v_writelane_b32 v{vst}, s98, m0')
        a(f'v_mbcnt_lo_u32_b32 v1, -1, 0')
        a(f'v_mbcnt_hi_u32_b32 v1, -1, v1')
        a(f'v_lshlrev_b32 v1, 2, v1')
        a(f's_lshl_b32 s7, s2, 3')
        a(f's_add_u32 s7, s7, s{S_WAVE}')
        a(f's_lshl_b32 s7, s7, 8')
        a(f'buffer_store_dword v{vst}, v1, s[{sST}:{sST+3}], s7 offen')
        a('s_waitcnt vmcnt(0)')

    def stream(s, frags, nb=NB):
        a = s.a
        n = len(frags)
        buf = lambda i: AB + 4 * (i % nb)
        for i in range(min(nb - 1, n)):
            for x in frags[i]['rd'](buf(i)): a(x)
        for i, f in enumerate(frags):
            cnt = 2 * min(nb - 2, n - 1 - i)
            w = f's_waitcnt lgkmcnt({cnt})'
            if f.get('pre_vm') is not None:
                w = f's_waitcnt vmcnt({f["pre_vm"]}) lgkmcnt({cnt})'
            a(w)
            mm = f['mm'](buf(i))
            nx = frags[i + nb - 1]['rd'](buf(i + nb - 1)) if i + nb - 1 < n else []
            post = list(f.get('post', []))
            for k, m in enumerate(mm):
                a(m)
                if k < len(nx): a(nx[k])
            for x in nx[len(mm):]: a(x)
            for x in post: a(x)

    def prologue(s):
        a = s.a
        a('s_cmp_ge_u32 s2, 256')
        a('s_cbranch_scc1 L_END')
        a('s_load_dwordx8 s[8:15], s[0:1], 0')
        a('s_load_dwordx2 s[16:17], s[0:1], 32')
        a('s_load_dwordx8 s[20:27], s[0:1], 40')
        a('s_load_dwordx2 s[28:29], s[0:1], 72')
        a('s_load_dwordx2 s[30:31], s[0:1], 96')
        if s.o.dbg:
            a('s_memrealtime s[96:97]')
            a('s_memtime s[98:99]')
            a('s_waitcnt lgkmcnt(0)')
            a('s_mov_b32 s97, s98')
            a(f'v_mov_b32 v{V_ST}, 0')
        a('s_and_b32 s7, s2, 7')
        a('s_lshr_b32 s18, s2, 3')
        a('s_lshr_b32 s19, s18, 3')
        a('s_lshl_b32 s7, s7, 2')
        a('s_add_u32 s7, s7, s19')
        a(f's_lshr_b32 s{S_BLK}, s7, 4')
        a(f's_and_b32 s{S_HP}, s7, 15')
        a(f's_and_b32 s{S_B}, s18, 7')
        a('v_lshrrev_b32 v1, 6, v0')
        a('v_and_b32 v0, 63, v0')
        a(f'v_readfirstlane_b32 s{S_WAVE}, v1')
        if s.o.stamps:
            a(f's_mov_b32 s{S_IDX}, 0')
            a(f'v_mov_b32 v{V_ST}, 0')
            a('s_memrealtime s[98:99]')
            a('s_waitcnt lgkmcnt(0)')
            a('s_mov_b32 m0, 62')
            a('s_nop 0')
            a(f'v_writelane_b32 v{V_ST}, s98, m0')
            s.stamp(V_ST)
        a('s_waitcnt lgkmcnt(0)')
        a(f's_cmp_eq_u32 s{S_BLK}, 0')
        for i in range(8): a(f's_cselect_b32 s{8+i}, s{8+i}, s{20+i}')
        a('s_cselect_b32 s16, s16, s28')
        a('s_cselect_b32 s17, s17, s29')
        def srd(d, pb, offreg, nrec):
            a(f's_add_u32 s{d}, s{pb}, s{offreg}')
            a(f's_addc_u32 s{d+1}, s{pb+1}, 0')
            if isinstance(nrec, int): a(f's_mov_b32 s{d+2}, {nrec}')
            else: a(nrec)
            a(f's_mov_b32 s{d+3}, 0x00020000')
        a(f's_mul_i32 s7, s{S_B}, 98304')
        srd(sX, 8, 7, 98304)
        a(f's_lshl_b32 s7, s{S_B}, 22')
        a(f's_lshl_b32 s18, s{S_HP}, 18')
        a('s_add_u32 s7, s7, s18')
        srd(sK, 10, 7, 262144)
        srd(sV, 12, 7, 262144)
        a(f's_lshl_b32 s7, s{S_HP}, 9')
        srd(sWQ, 14, 7, f's_sub_u32 s{sWQ+2}, 4194304, s7')
        srd(sWO, 16, 18, 262144)
        a(f's_lshl_b32 s7, s{S_BLK}, 4')
        a(f's_add_u32 s7, s7, s{S_HP}')
        a('s_lshl_b32 s7, s7, 3')
        a(f's_add_u32 s7, s7, s{S_B}')
        a('s_mul_i32 s7, s7, 98304')
        srd(sWS, 30, 7, 98304)
        if s.o.stamps:
            a('s_mov_b32 s7, 0x2000000')
            srd(sST, 30, 7, 1 << 20)
        if s.o.dbg:
            a('s_mov_b32 s7, 0x2000000')
            srd(sST, 30, 7, 1 << 20)
        a(f's_cmp_ge_u32 s{S_WAVE}, 4')
        a('s_cbranch_scc1 L_LOADER')

    def loader(s):
        a = s.a; o = s.o
        nt = ' nt' if o.nt else ''
        a.label('L_LOADER')
        if o.fine: s.stamp(V_ST)
        if o.lprio: a(f's_setprio {o.lprio}')
        a(f's_sub_u32 s7, s{S_WAVE}, 4')
        a(f's_lshl_b32 s{S_W1K}, s7, 10')
        a('v_lshrrev_b32 v1, 4, v0')
        a('v_and_b32 v2, 15, v0')
        a('s_lshl_b32 s18, s7, 2')
        a('v_add_u32 v3, s18, v1')
        a('v_and_b32 v4, 7, v3')
        a('v_lshlrev_b32 v4, 1, v4')
        a('v_lshrrev_b32 v5, 3, v3')
        a('v_or_b32 v4, v4, v5')
        a('v_xor_b32 v5, v2, v4')
        a('v_lshlrev_b32 v5, 4, v5')
        VKV, VWQ, VWO = 10, 11, 12
        a(f'v_lshlrev_b32 v6, 8, v3')
        a(f'v_add_u32 v{VKV}, v6, v5')
        a('s_lshl_b32 s18, s7, 3')
        a('v_add_u32 v6, s18, v1')
        a('v_lshlrev_b32 v6, 13, v6')
        a(f'v_add_u32 v{VWQ}, v6, v5')
        a('v_lshrrev_b32 v6, 3, v0')
        a('v_lshlrev_b32 v6, 10, v6')
        a('v_and_b32 v7, 7, v0')
        a('v_lshrrev_b32 v7, 1, v7')
        a('v_xor_b32 v7, v7, v1')
        a('v_lshlrev_b32 v7, 5, v7')
        a('v_and_b32 v8, 1, v0')
        a('v_lshlrev_b32 v8, 4, v8')
        a('v_add_u32 v6, v6, v7')
        a('v_add_u32 v6, v6, v8')
        a('s_lshl_b32 s18, s7, 13')
        a(f'v_add_u32 v{VWO}, s18, v6')

        def piece(m0expr, offexpr, voff, srd, flag=''):
            a(m0expr); a(offexpr)
            a(f'buffer_load_dwordx4 v{voff}, s[{srd}:{srd+3}], s{S_OFF} offen{flag} lds')
        def G(i):
            for ks in range(2):
                for h in range(2):
                    for aa in range(2):
                        m0 = QSLOT[i] + ks * 16384 + h * 8192 + aa * 4096
                        off = (2 * i + ks) * 262144 + aa * 32768 + h * 256
                        piece(f's_add_u32 m0, s{S_W1K}, {m0}', f's_mov_b32 s{S_OFF}, {off}', VWQ, sWQ)
        def KV(srd, c, isv):
            for h in range(2):
                for m in range(4):
                    m0 = (c & 1) * 65536 + isv * 32768 + h * 16384 + m * 4096
                    off = h * 131072 + c * 16384 + m * 4096
                    piece(f's_add_u32 m0, s{S_W1K}, {m0}', f's_mov_b32 s{S_OFF}, {off}', VKV, srd, nt)
        def KVdyn(srd, isv):
            for h in range(2):
                for m in range(4):
                    m0 = isv * 32768 + h * 16384 + m * 4096
                    off = h * 131072 + m * 4096
                    piece(f's_add_u32 m0, s{S_M0B}, {m0}', f's_add_u32 s{S_OFF}, s{S_C}, {off}', VKV, srd, nt)
        def W(j, t):
            nh, kh = t >> 1, t & 1
            for u in range(4):
                m0 = SLOT(WSLOT[j][t]) + u * 4096
                off = (kh * 128 + 32 * u) * 1024 + (nh * 256 + 64 * j) * 2
                piece(f's_add_u32 m0, s{S_W1K}, {m0}', f's_mov_b32 s{S_OFF}, {off}', VWO, sWO)
        def wb(n):
            a(f's_waitcnt vmcnt({n})'); a('s_barrier'); s.stamp(V_ST)

        if o.tlb == 1:
            a('v_lshlrev_b32 v20, 2, v0')
            for srd, off in ((sWQ,0),(sWQ,8192*8),(sWQ,8192*300),(sK,0),(sK,8192),(sK,131072),(sV,0),(sV,8192),(sWO,0),(sWO,8192),(sWS,0),(sX,0),(sX,65536)):
                a(f's_mov_b32 s{S_OFF}, {off}')
                a(f'buffer_load_dword v21, v20, s[{srd}:{srd+3}], s{S_OFF} offen')
                a('s_waitcnt vmcnt(0)'); s.stamp(V_ST)
        if o.tlb == 2:
            a('v_lshlrev_b32 v20, 2, v0')
            for k, (srd, off) in enumerate(((sWQ,0),(sWQ,8192*300),(sK,0),(sV,0),(sWO,0),(sWS,0))):
                a(f's_mov_b32 s{S_OFF}, {off}')
                a(f'buffer_load_dword v{21+k}, v20, s[{srd}:{srd+3}], s{S_OFF} offen')
            s.stamp(V_ST)
            for k in range(6):
                a(f's_waitcnt vmcnt({5-k})'); s.stamp(V_ST)
        if o.fine: s.stamp(V_ST)
        for i in range(5):
            G(i)
            if o.fine: s.stamp(V_ST)
        if o.fine:
            a('s_waitcnt vmcnt(39)'); s.stamp(V_ST)
            a('s_waitcnt vmcnt(32)'); s.stamp(V_ST)
        wb(32)
        wb(24); G(5)
        wb(24); G(6)
        wb(24); G(7)
        wb(24); KV(sK, 0, 0)
        wb(24); KV(sV, 0, 1)
        wb(24); KV(sK, 1, 0)
        wb(24); KV(sV, 1, 1)
        wb(24)
        wb(16); KV(sK, 2, 0)
        a(f's_mov_b32 s{S_LOOP}, 5')
        a(f's_mov_b32 s{S_C}, {2*16384}')
        a(f's_mov_b32 s{S_M0B}, s{S_W1K}')
        a.label('L_LD_LOOP')
        wb(16); KVdyn(sV, 1)
        a(f's_add_u32 s{S_C}, s{S_C}, 16384')
        a(f's_xor_b32 s{S_M0B}, s{S_M0B}, 65536')
        wb(16); KVdyn(sK, 0)
        a(f's_sub_u32 s{S_LOOP}, s{S_LOOP}, 1')
        a(f's_cmp_lg_u32 s{S_LOOP}, 0')
        a('s_cbranch_scc1 L_LD_LOOP')
        wb(16); KV(sV, 7, 1)
        wb(16)
        for t in range(4): W(0, t)
        wb(24); W(1, 0)
        wb(20)
        a('s_barrier'); s.stamp(V_ST)
        W(1, 1); W(1, 2)
        wb(12); W(1, 3); W(2, 0); W(2, 1)
        wb(8); W(2, 2); W(2, 3); W(3, 0); W(3, 1)
        wb(8); W(3, 2); W(3, 3)
        wb(0)
        s.stamp_flush(V_ST)
        a('s_endpgm')

    def compute(s):
        a = s.a; o = s.o
        cs = (128 ** -0.5) * math.log2(math.e)
        import struct
        fb = lambda x: struct.unpack('<I', struct.pack('<f', x))[0]
        a(f's_and_b32 s{S_H}, s{S_WAVE}, 1')
        a(f's_lshr_b32 s{S_QG}, s{S_WAVE}, 1')
        a(f's_mov_b32 s{S_16K}, 16384')
        a(f's_mov_b32 s{S_32K}, 32768')
        a('v_and_b32 v1, 15, v0')
        a('v_lshrrev_b32 v2, 4, v0')
        a(f's_mul_i32 s7, s{S_QG}, 48')
        a('v_add_u32 v3, s7, v1')
        a('v_lshlrev_b32 v3, 10, v3')
        a('v_lshlrev_b32 v4, 4, v2')
        a(f'v_add_u32 v{V_XO}, v3, v4')
        XR = lambda ks, qt: 96 + (ks % 8) * 12 + qt * 4
        def xload(ks):
            r = []
            for qt in range(3):
                so = ['0', f's{S_16K}', f's{S_32K}'][qt]
                r.append(f'buffer_load_dwordx4 {vr(XR(ks,qt),4)}, v{V_XO}, s[{sX}:{sX+3}], {so} offen offset:{ks*64}')
            return r
        if o.fine: s.stamp(V_ST)
        for ks in range(8):
            for x in xload(ks): a(x)
        if o.fine:
            s.stamp(V_ST)
            a('s_waitcnt vmcnt(23)'); s.stamp(V_ST)
            a('s_waitcnt vmcnt(21)'); s.stamp(V_ST)
            a('s_waitcnt vmcnt(0)'); s.stamp(V_ST)
        a(f's_mov_b32 s{S_CS}, {hex(fb(cs))}')
        a(f's_mov_b32 s{S_NCS}, {hex(fb(-cs))}')
        def ffun(dst, src, tmp):
            a(f'v_and_b32 v{dst}, 7, v{src}')
            a(f'v_lshlrev_b32 v{dst}, 1, v{dst}')
            a(f'v_lshrrev_b32 v{tmp}, 3, v{src}')
            a(f'v_or_b32 v{dst}, v{dst}, v{tmp}')
        ffun(5, 1, 6)
        a('v_lshrrev_b32 v6, 1, v2')
        a('v_xor_b32 v5, v5, v6')
        a('v_lshlrev_b32 v5, 4, v5')
        a('v_lshlrev_b32 v6, 8, v1')
        a('v_add_u32 v5, v5, v6')
        a('v_and_b32 v6, 1, v2')
        a('v_lshlrev_b32 v6, 3, v6')
        a('v_add_u32 v5, v5, v6')
        a(f's_lshl_b32 s7, s{S_H}, 14')
        a(f'v_add_u32 v{V_AK}, s7, v5')
        a('v_lshrrev_b32 v7, 2, v1')
        a('v_lshlrev_b32 v8, 2, v2')
        a('v_add_u32 v8, v8, v7')
        a('v_and_b32 v9, 3, v0')
        ffun(5, 8, 6)
        a('v_lshrrev_b32 v6, 1, v9')
        a('v_xor_b32 v5, v5, v6')
        a('v_lshlrev_b32 v5, 4, v5')
        a('v_lshlrev_b32 v6, 8, v8')
        a('v_add_u32 v5, v5, v6')
        a('v_and_b32 v6, 1, v9')
        a('v_lshlrev_b32 v6, 3, v6')
        a('v_add_u32 v5, v5, v6')
        a(f's_add_u32 s18, s7, 32768')
        a(f'v_add_u32 v{V_AV}, s18, v5')
        a(f's_lshl_b32 s7, s{S_H}, 13')
        a(f'v_add_u32 v{V_AQ}, s7, v5')
        a('v_lshrrev_b32 v5, 1, v8')
        a('v_and_b32 v5, 3, v5')
        a('v_lshlrev_b32 v5, 5, v5')
        a('v_lshlrev_b32 v6, 7, v8')
        a('v_add_u32 v5, v5, v6')
        a('v_lshlrev_b32 v6, 3, v9')
        a(f'v_add_u32 v{V_AO}, v5, v6')
        a(f's_cmp_eq_u32 s{S_H}, 0')
        for j in range(4):
            a(f's_cselect_b32 s{S_OB+2*j}, {WSLOT[j][0]}, {WSLOT[j][3]}')
            a(f's_cselect_b32 s{S_OB+2*j+1}, {WSLOT[j][1]}, {WSLOT[j][2]}')
        for j in range(8): a(f's_lshl_b32 s{S_OB+j}, s{S_OB+j}, 14')
        def addr8(base_v, add=None):
            if add is not None:
                a(f'v_add_u32 v{V_AD}, {add}, v{base_v}')
            else:
                a(f'v_mov_b32 v{V_AD}, v{base_v}')
            for u in range(1, 8): a(f'v_xor_b32 v{V_AD+u}, {u<<5}, v{V_AD}')
        MF = 'v_mfma_f32_16x16x32_bf16'
        for gi in range(8):
            addr8(V_AQ, QSLOT[gi])
            a('s_barrier'); s.stamp(V_ST)
            if gi in (0, 4): s.dstamp(2 + gi // 4)
            frags = []
            for kk in range(2):
                ks = 2 * gi + kk
                for dt in range(8):
                    def rd(buf, dt=dt, kk=kk):
                        return [f'ds_read_b64_tr_b16 {vr(buf,2)}, v{V_AD+dt} offset:{kk*16384}',
                                f'ds_read_b64_tr_b16 {vr(buf+2,2)}, v{V_AD+dt} offset:{kk*16384+4096}']
                    def mm(buf, dt=dt, ks=ks):
                        r = []
                        for qt in range(3):
                            d = vr(O0 + (dt * 3 + qt) * 4, 4)
                            c = '0' if ks == 0 else d
                            r.append(f'{MF} {d}, {vr(buf,4)}, {vr(XR(ks,qt),4)}, {c}')
                        return r
                    f = dict(rd=rd, mm=mm)
                    if dt == 0: f['pre_vm'] = 21 if ks < 8 else 3 * (15 - ks)
                    if dt == 7 and ks < 8: f['post'] = xload(ks + 8)
                    frags.append(f)
            s.stream(frags)
        s.stamp(V_ST); s.dstamp(4)
        a('s_nop 7')
        for j in range(4):
            for qt in range(3):
                for t in range(2):
                    src = O0 + ((2 * j + t) * 3 + qt) * 4
                    dst = QF + (j * 3 + qt) * 4 + 2 * t
                    a(f'v_cvt_pk_bf16_f32 v{dst}, v{src}, v{src+1}')
                    a(f'v_cvt_pk_bf16_f32 v{dst+1}, v{src+2}, v{src+3}')
        for i in range(96): a(f'v_mov_b32 v{O0+i}, 0')
        for qt in range(3):
            a(f'v_mov_b32 v{V_M+qt}, 0xff800000')
            a(f'v_mov_b32 v{V_L+qt}, 0')
        a(f's_mov_b32 s{S_LOOP}, 8')
        a.label('L_ATT')
        addr8(V_AK)
        a('s_barrier'); s.stamp(V_ST)
        if s.o.dbg:
            a(f's_cmp_lg_u32 s{S_LOOP}, 8'); a('s_cbranch_scc1 L_DB0'); s.dstamp(5); a.label('L_DB0')
            a(f's_cmp_lg_u32 s{S_LOOP}, 4'); a('s_cbranch_scc1 L_DB1'); s.dstamp(6); a.label('L_DB1')
        SR = lambda kt, qt: S0 + ((kt >> 1) * 3 + qt) * 8 + (kt & 1) * 4
        frags = []
        for j in range(4):
            for kt in range(4):
                def rd(buf, j=j, kt=kt):
                    return [f'ds_read_b64 {vr(buf,2)}, v{V_AD+2*j} offset:{kt*4096}',
                            f'ds_read_b64 {vr(buf+2,2)}, v{V_AD+2*j+1} offset:{kt*4096}']
                def mm(buf, j=j, kt=kt):
                    r = []
                    for qt in range(3):
                        d = vr(SR(kt, qt), 4)
                        c = '0' if j == 0 else d
                        r.append(f'{MF} {d}, {vr(buf,4)}, {vr(QF+(j*3+qt)*4,4)}, {c}')
                    return r
                frags.append(dict(rd=rd, mm=mm))
        s.stream(frags)
        addr8(V_AV)
        a(f'v_xor_b32 v{V_AK}, 65536, v{V_AK}')
        a(f'v_xor_b32 v{V_AV}, 65536, v{V_AV}')
        SQ = lambda qt: [S0 + (kk * 3 + qt) * 8 + i for kk in range(2) for i in range(8)]
        PK = lambda qt: [S0 + (kk * 3 + qt) * 8 for kk in range(2)]
        MX = [V_NMC + q for q in range(3)]
        for qt in range(3):
            r = SQ(qt)
            a(f'v_max3_f32 v{MX[qt]}, v{r[0]}, v{r[1]}, v{r[2]}')
        for i in range(6):
            for qt in range(3):
                r = SQ(qt)
                a(f'v_max3_f32 v{MX[qt]}, v{MX[qt]}, v{r[3+2*i]}, v{r[4+2*i]}')
        for qt in range(3):
            r = SQ(qt)
            a(f'v_max3_f32 v{MX[qt]}, v{MX[qt]}, v{r[15]}, v{V_M+qt}')
        for sw in ('v_permlane16_swap_b32', 'v_permlane32_swap_b32'):
            for qt in range(3): a(f'v_mov_b32 v{V_T+qt}, v{MX[qt]}')
            a('s_nop 0')
            for qt in range(3): a(f'{sw} v{MX[qt]}, v{V_T+qt}')
            a('s_nop 0')
            for qt in range(3): a(f'v_max_f32 v{MX[qt]}, v{MX[qt]}, v{V_T+qt}')
        for qt in range(3): a(f'v_sub_f32 v{V_T+qt}, v{V_M+qt}, v{MX[qt]}')
        for qt in range(3): a(f'v_mul_f32 v{V_T+qt}, s{S_CS}, v{V_T+qt}')
        for qt in range(3): a(f'v_exp_f32 v{V_AL+2*qt}, v{V_T+qt}')
        for qt in range(3): a(f'v_mov_b32 v{V_M+qt}, v{MX[qt]}')
        for qt in range(3): a(f'v_mul_f32 v{V_NMC+qt}, s{S_NCS}, v{MX[qt]}')
        for qt in range(3):
            r = SQ(qt)
            for i in range(0, 16, 4):
                for k in range(4): a(f'v_fma_f32 v{r[i+k]}, v{r[i+k]}, s{S_CS}, v{V_NMC+qt}')
                for k in range(4): a(f'v_exp_f32 v{r[i+k]}, v{r[i+k]}')
        for dt in range(8):
            for qt in range(3):
                b = O0 + (dt * 3 + qt) * 4
                for hh in range(2):
                    a(f'v_pk_mul_f32 {vr(b+2*hh,2)}, {vr(b+2*hh,2)}, {vr(V_AL+2*qt,2)} op_sel_hi:[1,0]')
        TP = V_AB_T = AB
        for qt in range(3):
            r = SQ(qt)
            a(f'v_pk_add_f32 {vr(TP+2*qt,2)}, {vr(r[0],2)}, {vr(r[2],2)}')
        for i in range(2, 8):
            for qt in range(3):
                r = SQ(qt)
                a(f'v_pk_add_f32 {vr(TP+2*qt,2)}, {vr(TP+2*qt,2)}, {vr(r[2*i],2)}')
        for qt in range(3): a(f'v_fma_f32 v{V_L+qt}, v{V_L+qt}, v{V_AL+2*qt}, v{TP+2*qt}')
        for qt in range(3): a(f'v_add_f32 v{V_L+qt}, v{V_L+qt}, v{TP+2*qt+1}')
        for qt in range(3):
            for kk in range(2):
                b = S0 + (kk * 3 + qt) * 8
                for i in range(4): a(f'v_cvt_pk_bf16_f32 v{b+i}, v{b+2*i}, v{b+2*i+1}')
        a('s_barrier'); s.stamp(V_ST)
        frags = []
        for dt in range(8):
            for kk in range(2):
                def rd(buf, dt=dt, kk=kk):
                    return [f'ds_read_b64_tr_b16 {vr(buf,2)}, v{V_AD+dt} offset:{kk*8192}',
                            f'ds_read_b64_tr_b16 {vr(buf+2,2)}, v{V_AD+dt} offset:{kk*8192+4096}']
                def mm(buf, dt=dt, kk=kk):
                    r = []
                    for qt in range(3):
                        d = vr(O0 + (dt * 3 + qt) * 4, 4)
                        r.append(f'{MF} {d}, {vr(buf,4)}, {vr(S0+(kk*3+qt)*8,4)}, {d}')
                    return r
                frags.append(dict(rd=rd, mm=mm))
        s.stream(frags)
        a(f's_sub_u32 s{S_LOOP}, s{S_LOOP}, 1')
        a(f's_cmp_lg_u32 s{S_LOOP}, 0')
        a('s_cbranch_scc1 L_ATT')
        s.stamp(V_ST); s.dstamp(7)
        for sw in ('v_permlane16_swap_b32', 'v_permlane32_swap_b32'):
            for qt in range(3): a(f'v_mov_b32 v{V_T+qt}, v{V_L+qt}')
            a('s_nop 0')
            for qt in range(3): a(f'{sw} v{V_L+qt}, v{V_T+qt}')
            a('s_nop 0')
            for qt in range(3): a(f'v_add_f32 v{V_L+qt}, v{V_L+qt}, v{V_T+qt}')
        for qt in range(3): a(f'v_rcp_f32 v{V_AL+2*qt}, v{V_L+qt}')
        a('s_nop 0')
        a('v_mbcnt_lo_u32_b32 v251, -1, 0')
        a('v_mbcnt_hi_u32_b32 v251, -1, v251')
        a('v_lshlrev_b32 v251, 4, v251')
        a(f's_mul_i32 s7, s{S_WAVE}, 12288')
        a(f's_add_u32 s7, s7, {XCH}')
        a('v_add_u32 v252, s7, v251')
        a(f's_xor_b32 s18, s{S_WAVE}, 1')
        a(f's_mul_i32 s18, s18, 12288')
        a(f's_add_u32 s18, s18, {XCH}')
        a('v_add_u32 v253, s18, v251')
        a(f's_mul_i32 s7, s{S_WAVE}, 24576')
        a(f'v_add_u32 v{V_XO}, s7, v251')
        for j in range(4):
            for qt in range(3):
                for t in range(2):
                    b = O0 + ((2 * j + t) * 3 + qt) * 4
                    for hh in range(2):
                        a(f'v_pk_mul_f32 {vr(b+2*hh,2)}, {vr(b+2*hh,2)}, {vr(V_AL+2*qt,2)} op_sel_hi:[1,0]')
                for t in range(2):
                    src = O0 + ((2 * j + t) * 3 + qt) * 4
                    dst = QF + (j * 3 + qt) * 4 + 2 * t
                    a(f'v_cvt_pk_bf16_f32 v{dst}, v{src}, v{src+1}')
                    a(f'v_cvt_pk_bf16_f32 v{dst+1}, v{src+2}, v{src+3}')
                a(f'ds_write_b128 v252, {vr(QF+(j*3+qt)*4,4)} offset:{(j*3+qt)*1024}')
        a('s_waitcnt lgkmcnt(0)')
        a('s_barrier'); s.stamp(V_ST); s.dstamp(8)
        for i in range(12): a(f'ds_read_b128 {vr(S0+4*i,4)}, v253 offset:{i*1024}')
        a('s_waitcnt lgkmcnt(0)')
        stf = o.stflag
        def epi(j):
            r = []
            base = 48 * (j & 1)
            for u in range(2):
                for qt in range(3):
                    b = base + (u * 3 + qt) * 8
                    grp = [f'v_cvt_pk_bf16_f32 v{b+i}, v{b+2*i}, v{b+2*i+1}' for i in range(4)]
                    off = j * 6144 + (u * 3 + qt) * 1024
                    grp.append(f's_mov_b32 s7, {off}')
                    grp.append(f'buffer_store_dwordx4 {vr(b,4)}, v{V_XO}, s[{sWS}:{sWS+3}], s7 offen{stf}')
                    r.append(grp)
            return r
        for j in range(4):
            for half in range(2):
                a(f'v_add_u32 v{V_AD+4*half}, s{S_OB+2*j+half}, v{V_AO}')
                for nt_ in range(1, 4): a(f'v_xor_b32 v{V_AD+4*half+nt_}, {nt_<<5}, v{V_AD+4*half}')
            a('s_barrier'); s.stamp(V_ST); s.dstamp(9 + j)
            base = 48 * (j & 1)
            frags = []
            for half in range(2):
                for jj in range(4):
                    for nt_ in range(4):
                        def rd(buf, half=half, jj=jj, nt_=nt_):
                            return [f'ds_read_b64_tr_b16 {vr(buf,2)}, v{V_AD+4*half+nt_} offset:{jj*4096}',
                                    f'ds_read_b64_tr_b16 {vr(buf+2,2)}, v{V_AD+4*half+nt_} offset:{jj*4096+2048}']
                        def mm(buf, half=half, jj=jj, nt_=nt_):
                            r = []
                            for qt in range(3):
                                d = vr(base + ((nt_ >> 1) * 3 + qt) * 8 + (nt_ & 1) * 4, 4)
                                c = '0' if (half == 0 and jj == 0) else d
                                bsrc = (QF if half == 0 else S0) + (jj * 3 + qt) * 4
                                r.append(f'{MF} {d}, {vr(buf,4)}, {vr(bsrc,4)}, {c}')
                            return r
                        frags.append(dict(rd=rd, mm=mm))
            if j > 0:
                for k, grp in enumerate(epi(j - 1)):
                    frags[3 + 4 * k]['post'] = grp
            s.stream(frags)
        s.stamp(V_ST)
        a('s_nop 7')
        for grp in epi(3):
            for x in grp: a(x)
        s.stamp(V_ST); s.dstamp(13)
        if s.o.dbg:
            a('s_waitcnt vmcnt(0)'); s.dstamp(14)
        s.dflush()
        s.stamp_flush(V_ST)
        a('s_endpgm')

    def reduce(s):
        a = s.a; o = s.o
        a.raw('.p2align 8'); a.raw('.type red_kernel,@function'); a.label('red_kernel')
        a('s_cmp_ge_u32 s2, 24')
        a('s_cbranch_scc1 L_REND')
        a('s_load_dwordx2 s[4:5], s[0:1], 80')
        a('s_load_dwordx2 s[6:7], s[0:1], 96')
        a('v_lshrrev_b32 v1, 6, v0')
        a('v_and_b32 v0, 63, v0')
        a('v_readfirstlane_b32 s8, v1')
        a('s_nop 3')
        if o.dbg:
            a('s_load_dwordx2 s[32:33], s[0:1], 88')
            a('s_memrealtime s[34:35]')
            a('s_or_b32 s9, s2, s3'); a('s_or_b32 s9, s9, s8')
            a('s_cmp_lg_u32 s9, 0')
            a('s_cbranch_scc1 L_RNODBG')
            a('s_waitcnt lgkmcnt(0)')
            a('s_add_u32 s40, s6, 0x2000000'); a('s_addc_u32 s41, s7, 0'); a('s_mov_b32 s42, 0x100000'); a('s_mov_b32 s43, 0x00020000')
            a('s_mov_b32 s44, s32'); a('s_mov_b32 s45, s33'); a('s_mov_b32 s46, 256'); a('s_mov_b32 s47, 0x00020000')
            a('v_lshlrev_b32 v90, 8, v0')
            for k in range(4):
                a(f's_mov_b32 s9, {k*16384}')
                a(f'buffer_load_dwordx2 v[{92+2*k}:{93+2*k}], v90, s[40:43], s9 offen')
            a('v_lshlrev_b32 v91, 2, v0')
            a(f's_mov_b32 s9, {o.dbgwg*256}')
            a('buffer_load_dword v100, v91, s[40:43], s9 offen')
            a('s_waitcnt vmcnt(0)')
            a('v_min_u32 v92, v92, v94'); a('v_min_u32 v96, v96, v98'); a('v_min_u32 v102, v92, v96')
            a('v_max_u32 v93, v93, v95'); a('v_max_u32 v97, v97, v99'); a('v_max_u32 v103, v93, v97')
            a('v_readlane_b32 s36, v102, 0'); a('v_readlane_b32 s37, v103, 0')
            for l in range(1, 64):
                a(f'v_readlane_b32 s38, v102, {l}'); a(f'v_readlane_b32 s39, v103, {l}')
                a('s_min_u32 s36, s36, s38'); a('s_max_u32 s37, s37, s39')
            a('s_sub_u32 s38, s37, s36'); a('s_sub_u32 s39, s34, s37')
            a('v_writelane_b32 v100, s38, 0'); a('v_writelane_b32 v100, s39, 1')
            a('v_cmp_gt_u32 vcc, 16, v0'); a('s_and_saveexec_b64 s[48:49], vcc')
            a('buffer_store_dword v100, v91, s[44:47], 0 offen')
            a('s_mov_b64 exec, s[48:49]')
            a.label('L_RNODBG')
        a('s_lshl_b32 s9, s2, 2')
        a('s_add_u32 s8, s8, s9')
        a('s_lshr_b32 s10, s3, 3')
        a('s_and_b32 s11, s3, 7')
        a('s_lshl_b32 s12, s10, 7')
        a('s_add_u32 s12, s12, s11')
        a('s_mul_i32 s12, s12, 98304')
        a('s_lshl_b32 s13, s8, 10')
        a('s_add_u32 s12, s12, s13')
        a('v_lshlrev_b32 v1, 4, v0')
        a('s_waitcnt lgkmcnt(0)')
        a('s_add_u32 s16, s6, s12')
        a('s_addc_u32 s17, s7, 0')
        a(f's_mov_b32 s18, {15*786432+1024}')
        a('s_mov_b32 s19, 0x00020000')
        a('s_mov_b32 s14, 0')
        for hp in range(16):
            a(f'buffer_load_dwordx4 {vr(8+4*hp,4)}, v1, s[16:19], s14 offen{o.ldflag}')
            if hp < 15: a('s_add_u32 s14, s14, 786432')
        a('s_mul_i32 s20, s8, 43')
        a('s_lshr_b32 s20, s20, 8')
        a('s_mul_i32 s21, s20, 6')
        a('s_sub_u32 s21, s8, s21')
        a('s_cmp_ge_u32 s21, 3')
        a('s_cselect_b32 s22, 1, 0')
        a('s_mul_i32 s23, s22, 3')
        a('s_sub_u32 s23, s21, s23')
        a('s_lshr_b32 s24, s20, 2')
        a('s_and_b32 s25, s20, 3')
        a('s_and_b32 s26, s24, 1')
        a('s_lshr_b32 s27, s24, 1')
        a('s_mul_i32 s28, s11, 96')
        a('s_mul_i32 s29, s27, 48')
        a('s_add_u32 s28, s28, s29')
        a('s_lshl_b32 s29, s23, 4')
        a('s_add_u32 s28, s28, s29')
        a('s_lshl_b32 s28, s28, 11')
        a('s_lshl_b32 s29, s10, 10')
        a('s_add_u32 s28, s28, s29')
        a('s_lshl_b32 s29, s26, 9')
        a('s_add_u32 s28, s28, s29')
        a('s_lshl_b32 s29, s25, 7')
        a('s_add_u32 s28, s28, s29')
        a('s_lshl_b32 s29, s22, 6')
        a('s_add_u32 s28, s28, s29')
        a('v_and_b32 v2, 15, v0')
        a('v_lshlrev_b32 v2, 11, v2')
        a('v_lshrrev_b32 v3, 4, v0')
        a('v_and_b32 v4, 1, v3')
        a('v_lshlrev_b32 v4, 5, v4')
        a('v_lshrrev_b32 v3, 1, v3')
        a('v_lshlrev_b32 v3, 4, v3')
        a('v_add_u32 v2, v2, v3')
        a('v_add_u32 v2, v2, v4')
        a('v_add_u32 v2, s28, v2')
        a('s_mov_b32 s8, s4')
        a('s_mov_b32 s9, s5')
        a(f's_mov_b32 s10, {8*96*1024*2}')
        a('s_mov_b32 s11, 0x00020000')
        a('s_mov_b32 s30, 0xffff0000')
        for hp in range(16):
            a(f's_waitcnt vmcnt({15-hp})')
            b = 8 + 4 * hp
            for i in range(4):
                if hp == 0:
                    a(f'v_lshlrev_b32 v{72+2*i}, 16, v{b+i}')
                    a(f'v_and_b32 v{73+2*i}, s30, v{b+i}')
                else:
                    a(f'v_lshlrev_b32 v4, 16, v{b+i}')
                    a(f'v_and_b32 v5, s30, v{b+i}')
                    a(f'v_pk_add_f32 {vr(72+2*i,2)}, {vr(72+2*i,2)}, v[4:5]')
        for i in range(4): a(f'v_cvt_pk_bf16_f32 v{80+i}, v{72+2*i}, v{73+2*i}')
        a('s_nop 1')
        a('v_permlane16_swap_b32 v80, v82')
        a('v_permlane16_swap_b32 v81, v83')
        a('s_nop 1')
        a('buffer_store_dwordx4 v[80:83], v2, s[8:11], 0 offen')
        a.label('L_REND')
        a('s_endpgm')

    def build(s):
        a = s.a; o = s.o
        kn = o.kname
        hdr = open('cdna_kernels/' + NAME + '.s.ref').read().split('\n')
        for ln in hdr:
            if ln.startswith('; @launch'): break
            a.raw(ln)
        for ch in o.list:
            if ch == 'm': a.raw(f'; @launch kernel={kn} grid=(256,1,1) block=(512,1,1) lds=163840')
            if ch == 'r': a.raw(f'; @launch kernel=red_kernel grid=(24,16,1) block=(256,1,1) lds=0')
            if ch == 'n': a.raw(f'; @launch kernel=nop_kernel grid=(256,1,1) block=(64,1,1) lds=0')
        a.raw('.amdgcn_target "amdgcn-amd-amdhsa--gfx950"')
        a.raw('.text')
        a.raw(f'.globl {kn}'); a.raw('.p2align 8'); a.raw(f'.type {kn},@function'); a.label(kn)
        s.prologue()
        s.compute()
        s.loader()
        a.label('L_END'); a('s_endpgm')
        a.raw('.globl red_kernel')
        s.reduce()
        kl = [(kn, 256, 0), ('red_kernel', 104 if o.dbg else 88, 1)]
        if 'n' in o.list:
            a.raw('.globl nop_kernel'); a.raw('.p2align 8'); a.raw('.type nop_kernel,@function'); a.label('nop_kernel'); a('s_endpgm')
            kl.append(('nop_kernel', 8, 0))
        a.raw('.section .rodata,"a"')
        for k, nv, y in kl:
            a.raw('.p2align 6')
            a.raw(f'.amdhsa_kernel {k}')
            a.raw(f'  .amdhsa_next_free_vgpr {nv}')
            a.raw('  .amdhsa_next_free_sgpr 102')
            a.raw(f'  .amdhsa_accum_offset {nv}')
            a.raw('  .amdhsa_group_segment_fixed_size 0')
            a.raw('  .amdhsa_kernarg_size 104')
            a.raw('  .amdhsa_user_sgpr_count 2')
            a.raw('  .amdhsa_user_sgpr_kernarg_segment_ptr 1')
            a.raw('  .amdhsa_system_sgpr_workgroup_id_x 1')
            if y: a.raw('  .amdhsa_system_sgpr_workgroup_id_y 1')
            a.raw('.end_amdhsa_kernel')
        return a.text()

if __name__ == '__main__':
    p = argparse.ArgumentParser()
    p.add_argument('-o', default='cdna_kernels/' + NAME + '.s')
    p.add_argument('--kname', default=NAME + '_kernel')
    p.add_argument('--stamps', action='store_true')
    p.add_argument('--nt', action='store_true')
    p.add_argument('--list', default='mr')
    p.add_argument('--fine', action='store_true')
    p.add_argument('--dbg', action='store_true')
    p.add_argument('--dbgwg', type=int, default=37)
    p.add_argument('--tlb', type=int, default=0)
    p.add_argument('--lprio', type=int, default=0)
    p.add_argument('--stflag', default='')
    p.add_argument('--ldflag', default='')
    o = p.parse_args()
    if o.stflag: o.stflag = ' ' + o.stflag
    if o.ldflag: o.ldflag = ' ' + o.ldflag
    open(o.o, 'w').write(Gen(o).build())
```

```python
import sys, math, argparse

NAME = 'concat_heads__mha_block_cached__gqa_block_cached__near_ridge'

class Asm:
    def __init__(s): s.l = []
    def __call__(s, x):
        for y in x.split('\n'):
            y = y.strip()
            if y: s.l.append('    ' + y)
    def label(s, x): s.l.append(x + ':')
    def raw(s, x): s.l.append(x)
    def text(s): return '\n'.join(s.l) + '\n'

def vr(b, n=1):
    return f'v{b}' if n == 1 else f'v[{b}:{b+n-1}]'
def sr(b, n=1):
    return f's{b}' if n == 1 else f's[{b}:{b+n-1}]'

sX, sK, sV, sWQ, sWO, sWS, sST = 36, 40, 44, 48, 52, 56, 92
S_WAVE, S_BLK, S_HP, S_B = 3, 4, 5, 6
S_16K, S_32K, S_CS, S_NCS, S_LOOP, S_H, S_QG = 60, 61, 62, 63, 64, 65, 66
S_OB = 68
S_OFF, S_C, S_M0B, S_W1K = 76, 77, 78, 79
S_IDX = 80
O0, AB = 0, 192
QFr = lambda j, qt: 96 + (j * 3 + qt) * 8
SR = lambda kt, qt: 96 + (kt * 3 + qt) * 8 + 4
QA = lambda dt, qt: 96 + ((dt >> 1) * 3 + qt) * 8 + (dt & 1) * 4
XR = lambda ks, qt: ((ks >> 1) & 1) * 24 + (ks & 1) * 12 + qt * 4
XLDS = 131072
S_R2, S_T = 81, 82
S_JJ = 84
V_X0, V_X1 = 251, 252
V_AK, V_AV, V_AQ, V_AO = 224, 225, 226, 227
V_AD = 228
V_M, V_L, V_AL, V_NMC, V_T = 236, 239, 242, 248, 251
V_ST, V_XO = 254, 255
NB = 8

SLOT = lambda i: i * 16384
QSLOT = [65536, 98304, 131072, 0, 32768, 65536, 98304, 131072]
WSLOT = [[8, 9, 0, 1], [2, 6, 7, 3], [4, 5, 8, 9], [0, 1, 2, 6]]
XCH = 49152

class Gen:
    def __init__(s, opt):
        s.o = opt
        s.a = Asm()

    def dstamp(s, idx):
        if not s.o.dbg: return
        a = s.a
        a('s_memtime s[98:99]')
        a('s_waitcnt lgkmcnt(0)')
        a('s_sub_u32 s98, s98, s97')
        a(f'v_writelane_b32 v{V_ST}, s98, {idx}')

    def dflush(s):
        if not s.o.dbg: return
        a = s.a
        a('s_memrealtime s[98:99]')
        a('s_waitcnt lgkmcnt(0)')
        a(f'v_writelane_b32 v{V_ST}, s98, 1')
        a(f'v_writelane_b32 v{V_ST}, s96, 0')
        a(f's_cmp_lg_u32 s{S_WAVE}, 0')
        a('s_cbranch_scc1 L_DBG_SKIP')
        a('v_mbcnt_lo_u32_b32 v4, -1, 0')
        a('v_mbcnt_hi_u32_b32 v4, -1, v4')
        a('v_lshlrev_b32 v1, 2, v4')
        a('s_lshl_b32 s7, s2, 8')
        a(f'buffer_store_dword v{V_ST}, v1, s[{sST}:{sST+3}], s7 offen')
        a.label('L_DBG_SKIP')
        a('s_waitcnt vmcnt(0)')

    def stamp(s, vst):
        if not s.o.stamps: return
        a = s.a
        a('s_memtime s[98:99]')
        a('s_waitcnt lgkmcnt(0)')
        a(f's_mov_b32 m0, s{S_IDX}')
        a(f's_add_u32 s{S_IDX}, s{S_IDX}, 1')
        a(f'v_writelane_b32 v{vst}, s98, m0')

    def stamp_flush(s, vst):
        if not s.o.stamps: return
        a = s.a
        a('s_memrealtime s[98:99]')
        a('s_waitcnt lgkmcnt(0)')
        a(f's_mov_b32 m0, 63')
        a('s_nop 0')
        a(f'v_writelane_b32 v{vst}, s98, m0')
        a(f'v_mbcnt_lo_u32_b32 v1, -1, 0')
        a(f'v_mbcnt_hi_u32_b32 v1, -1, v1')
        a(f'v_lshlrev_b32 v1, 2, v1')
        a(f's_lshl_b32 s7, s2, 3')
        a(f's_add_u32 s7, s7, s{S_WAVE}')
        a(f's_lshl_b32 s7, s7, 8')
        a(f'buffer_store_dword v{vst}, v1, s[{sST}:{sST+3}], s7 offen')
        a('s_waitcnt vmcnt(0)')

    def stream(s, frags, nb=NB, pre=(), prebar=False):
        a = s.a
        n = len(frags)
        buf = lambda i: AB + 4 * (i % nb)
        issued = []
        done = [0]
        def iss(tag, ins):
            a(ins); issued.append(tag)
        def wait(tags, vm=None):
            idx = max([k for k, t in enumerate(issued) if t in tags], default=-1)
            for t in tags: assert t in issued, t
            cnt = len(issued) - 1 - idx
            w = []
            if vm is not None: w.append(f'vmcnt({vm})')
            if idx + 1 > done[0]:
                c = min(cnt, 15)
                w.append(f'lgkmcnt({c})')
                done[0] = len(issued) - c
            if w: a('s_waitcnt ' + ' '.join(w))
        for tag, ins in pre: iss(tag, ins)
        for i in range(min(nb - 1, n)):
            for x in frags[i]['rd'](buf(i)): iss(('A', i), x)
        for i, f in enumerate(frags):
            wait([('A', i)] + list(f.get('need', [])), f.get('pre_vm'))
            if f.get('bar'):
                a('s_barrier')
                if f.get('stamp'):
                    s.stamp(V_ST); done[0] = len(issued) if s.o.stamps else done[0]
            mm = f['mm'](buf(i))
            nx = [(('A', i + nb - 1), x) for x in frags[i + nb - 1]['rd'](buf(i + nb - 1))] if i + nb - 1 < n else []
            nx = nx + list(f.get('xrd', []))
            for k, m in enumerate(mm):
                a(m)
                if k < len(nx): iss(*nx[k])
            for t in nx[len(mm):]: iss(*t)
            for x in f.get('post', []): a(x)

    def prologue(s):
        a = s.a
        a('s_cmp_ge_u32 s2, 256')
        a('s_cbranch_scc1 L_END')
        a('s_load_dwordx8 s[8:15], s[0:1], 0')
        a('s_load_dwordx2 s[16:17], s[0:1], 32')
        a('s_load_dwordx8 s[20:27], s[0:1], 40')
        a('s_load_dwordx2 s[28:29], s[0:1], 72')
        a('s_load_dwordx2 s[30:31], s[0:1], 96')
        if s.o.dbg:
            a('s_memrealtime s[96:97]')
            a('s_memtime s[98:99]')
            a('s_waitcnt lgkmcnt(0)')
            a('s_mov_b32 s97, s98')
            a(f'v_mov_b32 v{V_ST}, 0')
        a('s_and_b32 s7, s2, 7')
        a('s_lshr_b32 s18, s2, 3')
        a('s_lshr_b32 s19, s18, 3')
        a('s_lshl_b32 s7, s7, 2')
        a('s_add_u32 s7, s7, s19')
        a(f's_lshr_b32 s{S_BLK}, s7, 4')
        a(f's_and_b32 s{S_HP}, s7, 15')
        a(f's_and_b32 s{S_B}, s18, 7')
        a('v_lshrrev_b32 v1, 6, v0')
        a('v_and_b32 v0, 63, v0')
        a(f'v_readfirstlane_b32 s{S_WAVE}, v1')
        if s.o.stamps:
            a(f's_mov_b32 s{S_IDX}, 0')
            a(f'v_mov_b32 v{V_ST}, 0')
            a('s_memrealtime s[98:99]')
            a('s_waitcnt lgkmcnt(0)')
            a('s_mov_b32 m0, 62')
            a('s_nop 0')
            a(f'v_writelane_b32 v{V_ST}, s98, m0')
            s.stamp(V_ST)
        a('s_waitcnt lgkmcnt(0)')
        a(f's_cmp_eq_u32 s{S_BLK}, 0')
        for i in range(8): a(f's_cselect_b32 s{8+i}, s{8+i}, s{20+i}')
        a('s_cselect_b32 s16, s16, s28')
        a('s_cselect_b32 s17, s17, s29')
        def srd(d, pb, offreg, nrec):
            a(f's_add_u32 s{d}, s{pb}, s{offreg}')
            a(f's_addc_u32 s{d+1}, s{pb+1}, 0')
            if isinstance(nrec, int): a(f's_mov_b32 s{d+2}, {nrec}')
            else: a(nrec)
            a(f's_mov_b32 s{d+3}, 0x00020000')
        a(f's_mul_i32 s7, s{S_B}, 98304')
        srd(sX, 8, 7, 98304)
        a(f's_lshl_b32 s7, s{S_B}, 22')
        a(f's_lshl_b32 s18, s{S_HP}, 18')
        a('s_add_u32 s7, s7, s18')
        srd(sK, 10, 7, 262144)
        srd(sV, 12, 7, 262144)
        a(f's_lshl_b32 s7, s{S_HP}, 9')
        srd(sWQ, 14, 7, f's_sub_u32 s{sWQ+2}, 4194304, s7')
        srd(sWO, 16, 18, 262144)
        a(f's_lshl_b32 s7, s{S_BLK}, 4')
        a(f's_add_u32 s7, s7, s{S_HP}')
        a('s_lshl_b32 s7, s7, 3')
        a(f's_add_u32 s7, s7, s{S_B}')
        a('s_mul_i32 s7, s7, 98304')
        srd(sWS, 30, 7, 98304)
        if s.o.stamps:
            a('s_mov_b32 s7, 0x2000000')
            srd(sST, 30, 7, 1 << 20)
        if s.o.dbg:
            a('s_mov_b32 s7, 0x2000000')
            srd(sST, 30, 7, 1 << 20)
        a(f's_and_b32 s7, s{S_HP}, 3')
        a('s_lshl_b32 s7, s7, 1')
        a(f's_add_u32 s7, s7, s{S_B}')
        a(f's_and_b32 s{S_R2}, s7, {7 if s.o.rot else 0}')
        for j in range(4):
            a(f's_add_u32 s7, s{S_B}, {j}')
            a(f's_and_b32 s{S_JJ+j}, s7, 3') if s.o.rot else a(f's_mov_b32 s{S_JJ+j}, {j}')
        a(f's_and_b32 s7, s{S_WAVE}, 3')
        a(f's_lshl_b32 s{S_W1K}, s7, 10')
        a('v_lshrrev_b32 v1, 4, v0')
        a('v_and_b32 v2, 15, v0')
        a('s_lshl_b32 s18, s7, 2')
        a('v_add_u32 v3, s18, v1')
        a('v_and_b32 v4, 7, v3')
        a('v_lshlrev_b32 v4, 1, v4')
        a('v_lshrrev_b32 v5, 3, v3')
        a('v_or_b32 v4, v4, v5')
        a('v_xor_b32 v5, v2, v4')
        a('v_lshlrev_b32 v5, 4, v5')
        a(f'v_lshlrev_b32 v6, 8, v3')
        a(f'v_add_u32 v10, v6, v5')
        a(f's_cmp_ge_u32 s{S_WAVE}, 4')
        a('s_cbranch_scc1 L_LOADER')

    def loader(s):
        a = s.a; o = s.o
        nt = ' nt' if o.nt else ''
        a.label('L_LOADER')
        if o.lprio: a(f's_setprio {o.lprio}')
        a(f's_sub_u32 s7, s{S_WAVE}, 4')
        VKV, VWQ, VWO, VXA, VXB = 10, 11, 12, 13, 14
        a('v_lshrrev_b32 v6, 3, v0')
        a('v_lshlrev_b32 v6, 10, v6')
        a('v_and_b32 v7, 7, v0')
        a('v_xor_b32 v7, v7, v1')
        a('v_lshlrev_b32 v7, 4, v7')
        a('v_add_u32 v6, v6, v7')
        a('s_mul_i32 s18, s7, 24576')
        a('v_add_u32 v6, s18, v6')
        a('s_and_b32 s18, s7, 1')
        a('s_lshl_b32 s18, s18, 6')
        a(f'v_xor_b32 v{VXA}, s18, v6')
        a(f'v_xor_b32 v{VXB}, 64, v{VXA}')
        S_XW = S_IDX + 8
        a(f's_mul_i32 s{S_XW}, s7, 3072')
        a(f's_add_u32 s{S_XW}, s{S_XW}, {XLDS}')
        a('s_lshl_b32 s18, s7, 3')
        a('v_add_u32 v6, s18, v1')
        a('v_lshlrev_b32 v6, 13, v6')
        a(f'v_add_u32 v{VWQ}, v6, v5')
        cnt = [0]
        mark = {}
        def piece(m0expr, offexpr, voff, srd, flag=''):
            a(m0expr); a(offexpr)
            a(f'buffer_load_dwordx4 v{voff}, s[{srd}:{srd+3}], s{S_OFF} offen{flag} lds')
            cnt[0] += 1
        def X(j):
            a(f's_add_u32 s{S_T}, s{S_R2}, {j}')
            a(f's_and_b32 s{S_T}, s{S_T}, 7')
            a(f's_lshl_b32 s{S_T}, s{S_T}, 7')
            for u in range(3):
                piece(f's_add_u32 m0, s{S_XW}, {(j&1)*12288 + u*1024}', f's_add_u32 s{S_OFF}, s{S_T}, {u*8192}', VXB if u == 1 else VXA, sX)
            mark[('X', j)] = cnt[0]
        def WQ(st):
            a(f's_lshl_b32 s{S_T}, s{S_R2}, 1')
            a(f's_add_u32 s{S_T}, s{S_T}, {st}')
            a(f's_and_b32 s{S_T}, s{S_T}, 15')
            a(f's_lshl_b32 s{S_T}, s{S_T}, 18')
            for aa in range(2):
                for h in range(2):
                    m0 = 65536 + (st & 3) * 16384 + h * 8192 + aa * 4096
                    piece(f's_add_u32 m0, s{S_W1K}, {m0}', f's_add_u32 s{S_OFF}, s{S_T}, {aa*32768 + h*256}', VWQ, sWQ)
            mark[('W', st)] = cnt[0]
        def KV(srd, c, isv, hs=(0, 1)):
            for h in hs:
                for m in range(4):
                    m0 = (c & 1) * 65536 + isv * 32768 + h * 16384 + m * 4096
                    off = h * 131072 + c * 16384 + m * 4096
                    piece(f's_add_u32 m0, s{S_W1K}, {m0}', f's_mov_b32 s{S_OFF}, {off}', VKV, srd, nt)
        def KVdyn(srd, isv):
            for h in range(2):
                for m in range(4):
                    m0 = isv * 32768 + h * 16384 + m * 4096
                    off = h * 131072 + m * 4096
                    piece(f's_add_u32 m0, s{S_M0B}, {m0}', f's_add_u32 s{S_OFF}, s{S_C}, {off}', VKV, srd, nt)
        def W(j, t):
            nh, kh = t >> 1, t & 1
            a(f's_lshl_b32 s{S_T}, s{S_JJ+j}, 7')
            for u in range(4):
                m0 = SLOT(WSLOT[j][t]) + u * 4096
                off = (kh * 128 + 32 * u) * 1024 + (nh * 256) * 2
                piece(f's_add_u32 m0, s{S_W1K}, {m0}', f's_add_u32 s{S_OFF}, s{S_T}, {off}', VWO, sWO)
        def wb(n):
            if n is not None: a(f's_waitcnt vmcnt({n})')
            a('s_barrier'); s.stamp(V_ST)
        def wbt(tags):
            m = max(mark[t] for t in tags)
            wb(cnt[0] - m)

        if o.fine:
            s.stamp(V_ST); X(0); s.stamp(V_ST); WQ(0); s.stamp(V_ST); WQ(1); X(1); WQ(2); WQ(3); s.stamp(V_ST)
            for n in (21, 19, 15, 11, 8, 4, 0):
                a(f's_waitcnt vmcnt({n})'); s.stamp(V_ST)
        else:
            X(0); WQ(0); WQ(1); X(1); WQ(2); WQ(3)
        a('v_lshrrev_b32 v6, 3, v0')
        a('v_lshlrev_b32 v6, 10, v6')
        a('v_and_b32 v7, 7, v0')
        a('v_lshrrev_b32 v7, 1, v7')
        a('v_xor_b32 v7, v7, v1')
        a('v_lshlrev_b32 v7, 5, v7')
        a('v_and_b32 v8, 1, v0')
        a('v_lshlrev_b32 v8, 4, v8')
        a('v_add_u32 v6, v6, v7')
        a('v_add_u32 v6, v6, v8')
        a('s_lshl_b32 s18, s7, 13')
        a(f'v_add_u32 v{VWO}, s18, v6')
        for st in range(16):
            tags = [('W', st)] + ([('X', st // 2)] if st % 2 == 0 else [])
            wbt(tags)
            if 2 <= st <= 13: WQ(st + 2)
            if st % 2 == 1 and (st + 3) // 2 <= 7: X((st + 3) // 2)
            if st == 14: KV(sK, 1, 0, (0,))
            if st == 15: KV(sK, 1, 0, (1,))
        wb(None); KV(sV, 1, 1)
        wb(None); KV(sK, 2, 0)
        a(f's_mov_b32 s{S_LOOP}, 5')
        a(f's_mov_b32 s{S_C}, {2*16384}')
        a(f's_mov_b32 s{S_M0B}, s{S_W1K}')
        a.label('L_LD_LOOP')
        wb(16); KVdyn(sV, 1)
        a(f's_add_u32 s{S_C}, s{S_C}, 16384')
        a(f's_xor_b32 s{S_M0B}, s{S_M0B}, 65536')
        wb(16); KVdyn(sK, 0)
        a(f's_sub_u32 s{S_LOOP}, s{S_LOOP}, 1')
        a(f's_cmp_lg_u32 s{S_LOOP}, 0')
        a('s_cbranch_scc1 L_LD_LOOP')
        wb(16); KV(sV, 7, 1)
        wb(16)
        for t in range(4): W(0, t)
        wb(24); W(1, 0)
        wb(20)
        a('s_barrier'); s.stamp(V_ST)
        W(1, 1); W(1, 2)
        wb(12); W(1, 3); W(2, 0); W(2, 1)
        wb(8); W(2, 2); W(2, 3); W(3, 0); W(3, 1)
        wb(8); W(3, 2); W(3, 3)
        wb(0)
        s.stamp_flush(V_ST)
        a('s_endpgm')

    def compute(s):
        a = s.a; o = s.o
        cs = (128 ** -0.5) * math.log2(math.e)
        import struct
        fb = lambda x: struct.unpack('<I', struct.pack('<f', x))[0]
        a(f's_and_b32 s{S_H}, s{S_WAVE}, 1')
        a(f's_lshr_b32 s{S_QG}, s{S_WAVE}, 1')
        a(f'v_mov_b32 v{V_XO}, v10')
        a('v_and_b32 v1, 15, v0')
        a('v_lshrrev_b32 v2, 4, v0')
        a(f's_mul_i32 s7, s{S_QG}, 48')
        a('v_add_u32 v3, s7, v1')
        a('v_lshlrev_b32 v3, 7, v3')
        a('v_lshrrev_b32 v4, 1, v1')
        a('v_xor_b32 v4, v4, v2')
        a('v_lshlrev_b32 v4, 4, v4')
        a('v_add_u32 v3, v3, v4')
        a(f'v_add_u32 v{V_X0}, {XLDS}, v3')
        a(f'v_xor_b32 v{V_X1}, 64, v{V_X0}')
        a(f's_mov_b32 s{S_CS}, {hex(fb(cs))}')
        a(f's_mov_b32 s{S_NCS}, {hex(fb(-cs))}')
        def ffun(dst, src, tmp):
            a(f'v_and_b32 v{dst}, 7, v{src}')
            a(f'v_lshlrev_b32 v{dst}, 1, v{dst}')
            a(f'v_lshrrev_b32 v{tmp}, 3, v{src}')
            a(f'v_or_b32 v{dst}, v{dst}, v{tmp}')
        ffun(5, 1, 6)
        a('v_lshrrev_b32 v6, 1, v2')
        a('v_xor_b32 v5, v5, v6')
        a('v_lshlrev_b32 v5, 4, v5')
        a('v_lshlrev_b32 v6, 8, v1')
        a('v_add_u32 v5, v5, v6')
        a('v_and_b32 v6, 1, v2')
        a('v_lshlrev_b32 v6, 3, v6')
        a('v_add_u32 v5, v5, v6')
        a(f's_lshl_b32 s7, s{S_H}, 14')
        a(f'v_add_u32 v{V_AK}, s7, v5')
        a('v_lshrrev_b32 v7, 2, v1')
        a('v_lshlrev_b32 v8, 2, v2')
        a('v_add_u32 v8, v8, v7')
        a('v_and_b32 v9, 3, v0')
        ffun(5, 8, 6)
        a('v_lshrrev_b32 v6, 1, v9')
        a('v_xor_b32 v5, v5, v6')
        a('v_lshlrev_b32 v5, 4, v5')
        a('v_lshlrev_b32 v6, 8, v8')
        a('v_add_u32 v5, v5, v6')
        a('v_and_b32 v6, 1, v9')
        a('v_lshlrev_b32 v6, 3, v6')
        a('v_add_u32 v5, v5, v6')
        a(f's_add_u32 s18, s7, 32768')
        a(f'v_add_u32 v{V_AV}, s18, v5')
        a(f's_lshl_b32 s7, s{S_H}, 13')
        a(f'v_add_u32 v{V_AQ}, s7, v5')
        a('v_lshrrev_b32 v5, 1, v8')
        a('v_and_b32 v5, 3, v5')
        a('v_lshlrev_b32 v5, 5, v5')
        a('v_lshlrev_b32 v6, 7, v8')
        a('v_add_u32 v5, v5, v6')
        a('v_lshlrev_b32 v6, 3, v9')
        a(f'v_add_u32 v{V_AO}, v5, v6')
        for j in range(4): a(f's_mul_i32 s{S_JJ+j}, s{S_JJ+j}, 6144')
        a(f's_cmp_eq_u32 s{S_H}, 0')
        for j in range(4):
            a(f's_cselect_b32 s{S_OB+2*j}, {WSLOT[j][0]}, {WSLOT[j][3]}')
            a(f's_cselect_b32 s{S_OB+2*j+1}, {WSLOT[j][1]}, {WSLOT[j][2]}')
        for j in range(8): a(f's_lshl_b32 s{S_OB+j}, s{S_OB+j}, 14')
        def addr8(base_v, add=None):
            if add is not None:
                a(f'v_add_u32 v{V_AD}, {add}, v{base_v}')
            else:
                a(f'v_mov_b32 v{V_AD}, v{base_v}')
            for u in range(1, 8): a(f'v_xor_b32 v{V_AD+u}, {u<<5}, v{V_AD}')
        MF = 'v_mfma_f32_16x16x32_bf16'
        nt = ' nt' if o.nt else ''
        addr8(V_AQ, 65536)
        def xrd(j):
            r = []
            for kk in range(2):
                for qt in range(3):
                    r.append((('X', j, kk), f'ds_read_b128 {vr(XR(2*j+kk,qt),4)}, v{V_X1 if kk else V_X0} offset:{(j&1)*12288+qt*2048}'))
            return r
        def kv0(isv, h, m):
            return [f's_add_u32 m0, s{S_W1K}, {isv*32768 + h*16384 + m*4096}', f's_mov_b32 s{S_OFF}, {h*131072 + m*4096}',
                    f'buffer_load_dwordx4 v{V_XO}, s[{(sV if isv else sK)}:{(sV if isv else sK)+3}], s{S_OFF} offen{nt} lds']
        frags = []
        for st in range(16):
            for dt in range(8):
                def rd(buf, dt=dt, st=st):
                    return [f'ds_read_b64_tr_b16 {vr(buf,2)}, v{V_AD+dt} offset:{(st&3)*16384}',
                            f'ds_read_b64_tr_b16 {vr(buf+2,2)}, v{V_AD+dt} offset:{(st&3)*16384+4096}']
                def mm(buf, dt=dt, st=st):
                    r = []
                    for qt in range(3):
                        d = vr(QA(dt, qt), 4)
                        c = '0' if st == 0 else d
                        r.append(f'{MF} {d}, {vr(buf,4)}, {vr(XR(st,qt),4)}, {c}')
                    return r
                f = dict(rd=rd, mm=mm, post=[], xrd=[])
                if dt == 0: f['need'] = [('X', st // 2, st & 1)]
                if dt == 1 and st < 15:
                    f['bar'] = True
                    if st in (3, 7, 11): f['stamp'] = True
                frags.append(f)
        for j in range(1, 8):
            xs = xrd(j)
            for k, t in enumerate(xs): frags[8 * (2 * j - 1) + 1 + k // 2]['xrd'].append(t)
            frags[8 * (2 * j) + 1]['need'] = [('X', j, 1)]
        k = o.kvat
        for isv in range(2):
            for h in range(2):
                for m in range(4):
                    frags[k]['post'] += kv0(isv, h, m); k += o.kvstep
        zl = list(range(48, 96))
        for i, z in enumerate(zl): frags[24 + i]['post'].append(f'v_mov_b32 v{z}, 0')
        for i in range(24): frags[8 * 14 + 1 + (i // 2)]['post'].append(f'v_mov_b32 v{i}, 0')
        for i in range(12): frags[8 * 15 + 1 + (i // 2)]['post'].append(f'v_mov_b32 v{24+i}, 0')
        def qcvt(j):
            r = []
            for qt in range(3):
                b = QFr(j, qt)
                for i in range(4): r.append(f'v_cvt_pk_bf16_f32 v{b+i}, v{b+2*i}, v{b+2*i+1}')
            return r
        c0, c1, c2 = qcvt(0), qcvt(1), qcvt(2)
        frags[8*15+3]['post'] += c0[:6]; frags[8*15+4]['post'] += c0[6:]
        frags[8*15+5]['post'] += c1[:6]; frags[8*15+6]['post'] += c1[6:]
        frags[8*15+7]['post'] += c2[:6]
        a('s_barrier'); s.stamp(V_ST); s.dstamp(2)
        s.stream(frags, pre=xrd(0))
        for x in c2[6:]: a(x)
        for i in range(12): a(f'v_mov_b32 v{36+i}, 0')
        for qt in range(3):
            a(f'v_mov_b32 v{V_M+qt}, 0xff800000')
            a(f'v_mov_b32 v{V_L+qt}, 0')
        for x in qcvt(3): a(x)
        s.stamp(V_ST); s.dstamp(4)
        a('s_waitcnt vmcnt(8)')
        a(f's_mov_b32 s{S_LOOP}, 8')
        a.label('L_ATT')
        addr8(V_AK)
        a('s_barrier'); s.stamp(V_ST)
        if s.o.dbg:
            a(f's_cmp_lg_u32 s{S_LOOP}, 8'); a('s_cbranch_scc1 L_DB0'); s.dstamp(5); a.label('L_DB0')
            a(f's_cmp_lg_u32 s{S_LOOP}, 4'); a('s_cbranch_scc1 L_DB1'); s.dstamp(6); a.label('L_DB1')
        frags = []
        for j in range(4):
            for kt in range(4):
                def rd(buf, j=j, kt=kt):
                    return [f'ds_read_b64 {vr(buf,2)}, v{V_AD+2*j} offset:{kt*4096}',
                            f'ds_read_b64 {vr(buf+2,2)}, v{V_AD+2*j+1} offset:{kt*4096}']
                def mm(buf, j=j, kt=kt):
                    r = []
                    for qt in range(3):
                        d = vr(SR(kt, qt), 4)
                        c = '0' if j == 0 else d
                        r.append(f'{MF} {d}, {vr(buf,4)}, {vr(QFr(j,qt),4)}, {c}')
                    return r
                frags.append(dict(rd=rd, mm=mm))
        s.stream(frags)
        addr8(V_AV)
        a(f'v_xor_b32 v{V_AK}, 65536, v{V_AK}')
        a(f'v_xor_b32 v{V_AV}, 65536, v{V_AV}')
        SQ = lambda qt: [SR(kt, qt) + i for kt in range(4) for i in range(4)]
        MX = [V_NMC + q for q in range(3)]
        for qt in range(3):
            r = SQ(qt)
            a(f'v_max3_f32 v{MX[qt]}, v{r[0]}, v{r[1]}, v{r[2]}')
        for i in range(6):
            for qt in range(3):
                r = SQ(qt)
                a(f'v_max3_f32 v{MX[qt]}, v{MX[qt]}, v{r[3+2*i]}, v{r[4+2*i]}')
        for qt in range(3):
            r = SQ(qt)
            a(f'v_max3_f32 v{MX[qt]}, v{MX[qt]}, v{r[15]}, v{V_M+qt}')
        for sw in ('v_permlane16_swap_b32', 'v_permlane32_swap_b32'):
            for qt in range(3): a(f'v_mov_b32 v{V_T+qt}, v{MX[qt]}')
            a('s_nop 0')
            for qt in range(3): a(f'{sw} v{MX[qt]}, v{V_T+qt}')
            a('s_nop 0')
            for qt in range(3): a(f'v_max_f32 v{MX[qt]}, v{MX[qt]}, v{V_T+qt}')
        for qt in range(3): a(f'v_sub_f32 v{V_T+qt}, v{V_M+qt}, v{MX[qt]}')
        for qt in range(3): a(f'v_mul_f32 v{V_T+qt}, s{S_CS}, v{V_T+qt}')
        for qt in range(3): a(f'v_exp_f32 v{V_AL+2*qt}, v{V_T+qt}')
        for qt in range(3): a(f'v_mov_b32 v{V_M+qt}, v{MX[qt]}')
        for qt in range(3): a(f'v_mul_f32 v{V_NMC+qt}, s{S_NCS}, v{MX[qt]}')
        for qt in range(3):
            r = SQ(qt)
            for i in range(0, 16, 4):
                for k in range(4): a(f'v_fma_f32 v{r[i+k]}, v{r[i+k]}, s{S_CS}, v{V_NMC+qt}')
                for k in range(4): a(f'v_exp_f32 v{r[i+k]}, v{r[i+k]}')
        for dt in range(8):
            for qt in range(3):
                b = O0 + (dt * 3 + qt) * 4
                for hh in range(2):
                    a(f'v_pk_mul_f32 {vr(b+2*hh,2)}, {vr(b+2*hh,2)}, {vr(V_AL+2*qt,2)} op_sel_hi:[1,0]')
        TP = V_AB_T = AB
        for qt in range(3):
            r = SQ(qt)
            a(f'v_pk_add_f32 {vr(TP+2*qt,2)}, {vr(r[0],2)}, {vr(r[2],2)}')
        for i in range(2, 8):
            for qt in range(3):
                r = SQ(qt)
                a(f'v_pk_add_f32 {vr(TP+2*qt,2)}, {vr(TP+2*qt,2)}, {vr(r[2*i],2)}')
        for qt in range(3): a(f'v_fma_f32 v{V_L+qt}, v{V_L+qt}, v{V_AL+2*qt}, v{TP+2*qt}')
        for qt in range(3): a(f'v_add_f32 v{V_L+qt}, v{V_L+qt}, v{TP+2*qt+1}')
        for qt in range(3):
            for kk in range(2):
                b = SR(2 * kk, qt); b2 = SR(2 * kk + 1, qt)
                a(f'v_cvt_pk_bf16_f32 v{b}, v{b}, v{b+1}')
                a(f'v_cvt_pk_bf16_f32 v{b+1}, v{b+2}, v{b+3}')
                a(f'v_cvt_pk_bf16_f32 v{b+2}, v{b2}, v{b2+1}')
                a(f'v_cvt_pk_bf16_f32 v{b+3}, v{b2+2}, v{b2+3}')
        a('s_waitcnt vmcnt(0)')
        a('s_barrier'); s.stamp(V_ST)
        frags = []
        for dt in range(8):
            for kk in range(2):
                def rd(buf, dt=dt, kk=kk):
                    return [f'ds_read_b64_tr_b16 {vr(buf,2)}, v{V_AD+dt} offset:{kk*8192}',
                            f'ds_read_b64_tr_b16 {vr(buf+2,2)}, v{V_AD+dt} offset:{kk*8192+4096}']
                def mm(buf, dt=dt, kk=kk):
                    r = []
                    for qt in range(3):
                        d = vr(O0 + (dt * 3 + qt) * 4, 4)
                        r.append(f'{MF} {d}, {vr(buf,4)}, {vr(SR(2*kk,qt),4)}, {d}')
                    return r
                frags.append(dict(rd=rd, mm=mm))
        s.stream(frags)
        a(f's_sub_u32 s{S_LOOP}, s{S_LOOP}, 1')
        a(f's_cmp_lg_u32 s{S_LOOP}, 0')
        a('s_cbranch_scc1 L_ATT')
        s.stamp(V_ST); s.dstamp(7)
        for sw in ('v_permlane16_swap_b32', 'v_permlane32_swap_b32'):
            for qt in range(3): a(f'v_mov_b32 v{V_T+qt}, v{V_L+qt}')
            a('s_nop 0')
            for qt in range(3): a(f'{sw} v{V_L+qt}, v{V_T+qt}')
            a('s_nop 0')
            for qt in range(3): a(f'v_add_f32 v{V_L+qt}, v{V_L+qt}, v{V_T+qt}')
        for qt in range(3): a(f'v_rcp_f32 v{V_AL+2*qt}, v{V_L+qt}')
        a('s_nop 0')
        a('v_mbcnt_lo_u32_b32 v251, -1, 0')
        a('v_mbcnt_hi_u32_b32 v251, -1, v251')
        a('v_lshlrev_b32 v251, 4, v251')
        a(f's_mul_i32 s7, s{S_WAVE}, 12288')
        a(f's_add_u32 s7, s7, {XCH}')
        a('v_add_u32 v252, s7, v251')
        a(f's_xor_b32 s18, s{S_WAVE}, 1')
        a(f's_mul_i32 s18, s18, 12288')
        a(f's_add_u32 s18, s18, {XCH}')
        a('v_add_u32 v253, s18, v251')
        a(f's_mul_i32 s7, s{S_WAVE}, 24576')
        a(f'v_add_u32 v{V_XO}, s7, v251')
        for j in range(4):
            for qt in range(3):
                for t in range(2):
                    b = O0 + ((2 * j + t) * 3 + qt) * 4
                    for hh in range(2):
                        a(f'v_pk_mul_f32 {vr(b+2*hh,2)}, {vr(b+2*hh,2)}, {vr(V_AL+2*qt,2)} op_sel_hi:[1,0]')
                for t in range(2):
                    src = O0 + ((2 * j + t) * 3 + qt) * 4
                    dst = QFr(j, qt) + 2 * t
                    a(f'v_cvt_pk_bf16_f32 v{dst}, v{src}, v{src+1}')
                    a(f'v_cvt_pk_bf16_f32 v{dst+1}, v{src+2}, v{src+3}')
                a(f'ds_write_b128 v252, {vr(QFr(j,qt),4)} offset:{(j*3+qt)*1024}')
        a('s_waitcnt lgkmcnt(0)')
        a('s_barrier'); s.stamp(V_ST); s.dstamp(8)
        for i in range(12): a(f'ds_read_b128 {vr(96+8*i+4,4)}, v253 offset:{i*1024}')
        a('s_waitcnt lgkmcnt(0)')
        stf = o.stflag
        def epi(j):
            r = []
            base = 48 * (j & 1)
            for u in range(2):
                for qt in range(3):
                    b = base + (u * 3 + qt) * 8
                    grp = [f'v_cvt_pk_bf16_f32 v{b+i}, v{b+2*i}, v{b+2*i+1}' for i in range(4)]
                    off = (u * 3 + qt) * 1024
                    grp.append(f's_add_u32 s7, s{S_JJ+j}, {off}')
                    grp.append(f'buffer_store_dwordx4 {vr(b,4)}, v{V_XO}, s[{sWS}:{sWS+3}], s7 offen{stf}')
                    r.append(grp)
            return r
        for j in range(4):
            for half in range(2):
                a(f'v_add_u32 v{V_AD+4*half}, s{S_OB+2*j+half}, v{V_AO}')
                for nt_ in range(1, 4): a(f'v_xor_b32 v{V_AD+4*half+nt_}, {nt_<<5}, v{V_AD+4*half}')
            a('s_barrier'); s.stamp(V_ST); s.dstamp(9 + j)
            base = 48 * (j & 1)
            frags = []
            for half in range(2):
                for jj in range(4):
                    for nt_ in range(4):
                        def rd(buf, half=half, jj=jj, nt_=nt_):
                            return [f'ds_read_b64_tr_b16 {vr(buf,2)}, v{V_AD+4*half+nt_} offset:{jj*4096}',
                                    f'ds_read_b64_tr_b16 {vr(buf+2,2)}, v{V_AD+4*half+nt_} offset:{jj*4096+2048}']
                        def mm(buf, half=half, jj=jj, nt_=nt_):
                            r = []
                            for qt in range(3):
                                d = vr(base + ((nt_ >> 1) * 3 + qt) * 8 + (nt_ & 1) * 4, 4)
                                c = '0' if (half == 0 and jj == 0) else d
                                bsrc = QFr(jj, qt) + 4 * half
                                r.append(f'{MF} {d}, {vr(buf,4)}, {vr(bsrc,4)}, {c}')
                            return r
                        frags.append(dict(rd=rd, mm=mm))
            if j > 0:
                for k, grp in enumerate(epi(j - 1)):
                    frags[3 + 4 * k]['post'] = grp
            s.stream(frags)
        s.stamp(V_ST)
        a('s_nop 7')
        for grp in epi(3):
            for x in grp: a(x)
        s.stamp(V_ST); s.dstamp(13)
        if s.o.dbg:
            a('s_waitcnt vmcnt(0)'); s.dstamp(14)
        s.dflush()
        s.stamp_flush(V_ST)
        a('s_endpgm')

    def reduce(s):
        a = s.a; o = s.o
        a.raw('.p2align 8'); a.raw('.type red_kernel,@function'); a.label('red_kernel')
        a('s_cmp_ge_u32 s2, 24')
        a('s_cbranch_scc1 L_REND')
        a('s_load_dwordx2 s[4:5], s[0:1], 80')
        a('s_load_dwordx2 s[6:7], s[0:1], 96')
        a('v_lshrrev_b32 v1, 6, v0')
        a('v_and_b32 v0, 63, v0')
        a('v_readfirstlane_b32 s8, v1')
        a('s_nop 3')
        if o.dbg:
            a('s_load_dwordx2 s[32:33], s[0:1], 88')
            a('s_memrealtime s[34:35]')
            a('s_or_b32 s9, s2, s3'); a('s_or_b32 s9, s9, s8')
            a('s_cmp_lg_u32 s9, 0')
            a('s_cbranch_scc1 L_RNODBG')
            a('s_waitcnt lgkmcnt(0)')
            a('s_add_u32 s40, s6, 0x2000000'); a('s_addc_u32 s41, s7, 0'); a('s_mov_b32 s42, 0x100000'); a('s_mov_b32 s43, 0x00020000')
            a('s_mov_b32 s44, s32'); a('s_mov_b32 s45, s33'); a('s_mov_b32 s46, 256'); a('s_mov_b32 s47, 0x00020000')
            a('v_lshlrev_b32 v90, 8, v0')
            for k in range(4):
                a(f's_mov_b32 s9, {k*16384}')
                a(f'buffer_load_dwordx2 v[{92+2*k}:{93+2*k}], v90, s[40:43], s9 offen')
            a('v_lshlrev_b32 v91, 2, v0')
            a(f's_mov_b32 s9, {o.dbgwg*256}')
            a('buffer_load_dword v100, v91, s[40:43], s9 offen')
            a('s_waitcnt vmcnt(0)')
            a('v_min_u32 v92, v92, v94'); a('v_min_u32 v96, v96, v98'); a('v_min_u32 v102, v92, v96')
            a('v_max_u32 v93, v93, v95'); a('v_max_u32 v97, v97, v99'); a('v_max_u32 v103, v93, v97')
            a('v_readlane_b32 s36, v102, 0'); a('v_readlane_b32 s37, v103, 0')
            for l in range(1, 64):
                a(f'v_readlane_b32 s38, v102, {l}'); a(f'v_readlane_b32 s39, v103, {l}')
                a('s_min_u32 s36, s36, s38'); a('s_max_u32 s37, s37, s39')
            a('s_sub_u32 s38, s37, s36'); a('s_sub_u32 s39, s34, s37')
            a('v_writelane_b32 v100, s38, 0'); a('v_writelane_b32 v100, s39, 1')
            a('v_cmp_gt_u32 vcc, 16, v0'); a('s_and_saveexec_b64 s[48:49], vcc')
            a('buffer_store_dword v100, v91, s[44:47], 0 offen')
            a('s_mov_b64 exec, s[48:49]')
            a.label('L_RNODBG')
        a('s_lshl_b32 s9, s2, 2')
        a('s_add_u32 s8, s8, s9')
        a('s_lshr_b32 s10, s3, 3')
        a('s_and_b32 s11, s3, 7')
        a('s_lshl_b32 s12, s10, 7')
        a('s_add_u32 s12, s12, s11')
        a('s_mul_i32 s12, s12, 98304')
        a('s_lshl_b32 s13, s8, 10')
        a('s_add_u32 s12, s12, s13')
        a('v_lshlrev_b32 v1, 4, v0')
        a('s_waitcnt lgkmcnt(0)')
        a('s_add_u32 s16, s6, s12')
        a('s_addc_u32 s17, s7, 0')
        a(f's_mov_b32 s18, {15*786432+1024}')
        a('s_mov_b32 s19, 0x00020000')
        a('s_mov_b32 s14, 0')
        for hp in range(16):
            a(f'buffer_load_dwordx4 {vr(8+4*hp,4)}, v1, s[16:19], s14 offen{o.ldflag}')
            if hp < 15: a('s_add_u32 s14, s14, 786432')
        a('s_mul_i32 s20, s8, 43')
        a('s_lshr_b32 s20, s20, 8')
        a('s_mul_i32 s21, s20, 6')
        a('s_sub_u32 s21, s8, s21')
        a('s_cmp_ge_u32 s21, 3')
        a('s_cselect_b32 s22, 1, 0')
        a('s_mul_i32 s23, s22, 3')
        a('s_sub_u32 s23, s21, s23')
        a('s_lshr_b32 s24, s20, 2')
        a('s_and_b32 s25, s20, 3')
        a('s_and_b32 s26, s24, 1')
        a('s_lshr_b32 s27, s24, 1')
        a('s_mul_i32 s28, s11, 96')
        a('s_mul_i32 s29, s27, 48')
        a('s_add_u32 s28, s28, s29')
        a('s_lshl_b32 s29, s23, 4')
        a('s_add_u32 s28, s28, s29')
        a('s_lshl_b32 s28, s28, 11')
        a('s_lshl_b32 s29, s10, 10')
        a('s_add_u32 s28, s28, s29')
        a('s_lshl_b32 s29, s26, 9')
        a('s_add_u32 s28, s28, s29')
        a('s_lshl_b32 s29, s25, 7')
        a('s_add_u32 s28, s28, s29')
        a('s_lshl_b32 s29, s22, 6')
        a('s_add_u32 s28, s28, s29')
        a('v_and_b32 v2, 15, v0')
        a('v_lshlrev_b32 v2, 11, v2')
        a('v_lshrrev_b32 v3, 4, v0')
        a('v_and_b32 v4, 1, v3')
        a('v_lshlrev_b32 v4, 5, v4')
        a('v_lshrrev_b32 v3, 1, v3')
        a('v_lshlrev_b32 v3, 4, v3')
        a('v_add_u32 v2, v2, v3')
        a('v_add_u32 v2, v2, v4')
        a('v_add_u32 v2, s28, v2')
        a('s_mov_b32 s8, s4')
        a('s_mov_b32 s9, s5')
        a(f's_mov_b32 s10, {8*96*1024*2}')
        a('s_mov_b32 s11, 0x00020000')
        a('s_mov_b32 s30, 0xffff0000')
        for hp in range(16):
            a(f's_waitcnt vmcnt({15-hp})')
            b = 8 + 4 * hp
            for i in range(4):
                if hp == 0:
                    a(f'v_lshlrev_b32 v{72+2*i}, 16, v{b+i}')
                    a(f'v_and_b32 v{73+2*i}, s30, v{b+i}')
                else:
                    a(f'v_lshlrev_b32 v4, 16, v{b+i}')
                    a(f'v_and_b32 v5, s30, v{b+i}')
                    a(f'v_pk_add_f32 {vr(72+2*i,2)}, {vr(72+2*i,2)}, v[4:5]')
        for i in range(4): a(f'v_cvt_pk_bf16_f32 v{80+i}, v{72+2*i}, v{73+2*i}')
        a('s_nop 1')
        a('v_permlane16_swap_b32 v80, v82')
        a('v_permlane16_swap_b32 v81, v83')
        a('s_nop 1')
        a('buffer_store_dwordx4 v[80:83], v2, s[8:11], 0 offen')
        a.label('L_REND')
        a('s_endpgm')

    def build(s):
        a = s.a; o = s.o
        kn = o.kname
        hdr = open('cdna_kernels/' + NAME + '.s.ref').read().split('\n')
        for ln in hdr:
            if ln.startswith('; @launch'): break
            a.raw(ln)
        for ch in o.list:
            if ch == 'm': a.raw(f'; @launch kernel={kn} grid=(256,1,1) block=(512,1,1) lds=163840')
            if ch == 'r': a.raw(f'; @launch kernel=red_kernel grid=(24,16,1) block=(256,1,1) lds=0')
            if ch == 'n': a.raw(f'; @launch kernel=nop_kernel grid=(256,1,1) block=(64,1,1) lds=0')
        a.raw('.amdgcn_target "amdgcn-amd-amdhsa--gfx950"')
        a.raw('.text')
        a.raw(f'.globl {kn}'); a.raw('.p2align 8'); a.raw(f'.type {kn},@function'); a.label(kn)
        s.prologue()
        s.compute()
        s.loader()
        a.label('L_END'); a('s_endpgm')
        a.raw('.globl red_kernel')
        s.reduce()
        kl = [(kn, 256, 0), ('red_kernel', 104 if o.dbg else 88, 1)]
        if 'n' in o.list:
            a.raw('.globl nop_kernel'); a.raw('.p2align 8'); a.raw('.type nop_kernel,@function'); a.label('nop_kernel'); a('s_endpgm')
            kl.append(('nop_kernel', 8, 0))
        a.raw('.section .rodata,"a"')
        for k, nv, y in kl:
            a.raw('.p2align 6')
            a.raw(f'.amdhsa_kernel {k}')
            a.raw(f'  .amdhsa_next_free_vgpr {nv}')
            a.raw('  .amdhsa_next_free_sgpr 102')
            a.raw(f'  .amdhsa_accum_offset {nv}')
            a.raw('  .amdhsa_group_segment_fixed_size 0')
            a.raw('  .amdhsa_kernarg_size 104')
            a.raw('  .amdhsa_user_sgpr_count 2')
            a.raw('  .amdhsa_user_sgpr_kernarg_segment_ptr 1')
            a.raw('  .amdhsa_system_sgpr_workgroup_id_x 1')
            if y: a.raw('  .amdhsa_system_sgpr_workgroup_id_y 1')
            a.raw('.end_amdhsa_kernel')
        return a.text()

if __name__ == '__main__':
    p = argparse.ArgumentParser()
    p.add_argument('-o', default='cdna_kernels/' + NAME + '.s')
    p.add_argument('--kname', default=NAME + '_kernel')
    p.add_argument('--stamps', action='store_true')
    p.add_argument('--nt', action='store_true')
    p.add_argument('--list', default='mr')
    p.add_argument('--fine', action='store_true')
    p.add_argument('--dbg', action='store_true')
    p.add_argument('--dbgwg', type=int, default=37)
    p.add_argument('--tlb', type=int, default=0)
    p.add_argument('--lprio', type=int, default=0)
    p.add_argument('--rot', type=int, default=1)
    p.add_argument('--kvat', type=int, default=0)
    p.add_argument('--kvstep', type=int, default=1)
    p.add_argument('--stflag', default='')
    p.add_argument('--ldflag', default='')
    o = p.parse_args()
    if o.stflag: o.stflag = ' ' + o.stflag
    if o.ldflag: o.ldflag = ' ' + o.ldflag
    open(o.o, 'w').write(Gen(o).build())
```

```python
import sys, math, argparse

NAME = 'concat_heads__mha_block_cached__gqa_block_cached__near_ridge'

class Asm:
    def __init__(s): s.l = []
    def __call__(s, x):
        for y in x.split('\n'):
            y = y.strip()
            if y: s.l.append(y if y.endswith(':') else '    ' + y)
    def label(s, x): s.l.append(x + ':')
    def raw(s, x): s.l.append(x)
    def text(s): return '\n'.join(s.l) + '\n'

def vr(b, n=1):
    return f'v{b}' if n == 1 else f'v[{b}:{b+n-1}]'
def sr(b, n=1):
    return f's{b}' if n == 1 else f's[{b}:{b+n-1}]'

sX, sK, sV, sWQ, sWO, sWS, sST = 36, 40, 44, 48, 52, 56, 92
S_WAVE, S_BLK, S_HP, S_B = 3, 4, 5, 6
S_16K, S_32K, S_CS, S_NCS, S_LOOP, S_H, S_QG = 60, 61, 62, 63, 64, 65, 66
S_OB = 68
S_OFF, S_C, S_M0B, S_W1K = 76, 77, 78, 79
S_IDX = 80
O0, AB = 0, 192
QFr = lambda j, qt: 96 + (j * 3 + qt) * 8
SR = lambda kt, qt: 96 + (kt * 3 + qt) * 8 + 4
QA = lambda dt, qt: 96 + ((dt >> 1) * 3 + qt) * 8 + (dt & 1) * 4
XR = lambda ks, qt: ((ks >> 1) & 1) * 24 + (ks & 1) * 12 + qt * 4
XLDS = 131072
S_R2, S_T = 81, 82
S_XW, S_KVP = 88, 89
S_JJ = 84
V_X0, V_X1 = 251, 252
V_AK, V_AV, V_AQ, V_AO = 224, 225, 226, 227
V_AD = 228
V_M, V_L, V_AL, V_NMC, V_T = 236, 239, 242, 248, 251
V_ST, V_XO = 254, 255
NB = 8

SLOT = lambda i: i * 16384
QSLOT = [65536, 98304, 131072, 0, 32768, 65536, 98304, 131072]
WSLOT = [[8, 9, 0, 1], [2, 6, 7, 3], [4, 5, 8, 9], [0, 1, 2, 6]]
XCH = 49152

class Gen:
    def __init__(s, opt):
        s.o = opt
        s.a = Asm()

    def dstamp(s, idx):
        if not s.o.dbg: return
        a = s.a
        a('s_memtime s[98:99]')
        a('s_waitcnt lgkmcnt(0)')
        a('s_sub_u32 s98, s98, s97')
        a(f'v_writelane_b32 v{V_ST}, s98, {idx}')

    def dflush(s):
        if not s.o.dbg: return
        a = s.a
        a('s_memrealtime s[98:99]')
        a('s_waitcnt lgkmcnt(0)')
        a(f'v_writelane_b32 v{V_ST}, s98, 1')
        a(f'v_writelane_b32 v{V_ST}, s96, 0')
        a(f's_cmp_lg_u32 s{S_WAVE}, 0')
        a('s_cbranch_scc1 L_DBG_SKIP')
        a('v_mbcnt_lo_u32_b32 v4, -1, 0')
        a('v_mbcnt_hi_u32_b32 v4, -1, v4')
        a('v_lshlrev_b32 v1, 2, v4')
        a('s_lshl_b32 s7, s2, 8')
        a(f'buffer_store_dword v{V_ST}, v1, s[{sST}:{sST+3}], s7 offen')
        a.label('L_DBG_SKIP')
        a('s_waitcnt vmcnt(0)')

    def stamp(s, vst):
        if not s.o.stamps: return
        a = s.a
        a('s_memtime s[98:99]')
        a('s_waitcnt lgkmcnt(0)')
        a(f's_mov_b32 m0, s{S_IDX}')
        a(f's_add_u32 s{S_IDX}, s{S_IDX}, 1')
        a(f'v_writelane_b32 v{vst}, s98, m0')

    def stamp_flush(s, vst):
        if not s.o.stamps: return
        a = s.a
        a('s_memrealtime s[98:99]')
        a('s_waitcnt lgkmcnt(0)')
        a(f's_mov_b32 m0, 63')
        a('s_nop 0')
        a(f'v_writelane_b32 v{vst}, s98, m0')
        a(f'v_mbcnt_lo_u32_b32 v1, -1, 0')
        a(f'v_mbcnt_hi_u32_b32 v1, -1, v1')
        a(f'v_lshlrev_b32 v1, 2, v1')
        a(f's_lshl_b32 s7, s2, 3')
        a(f's_add_u32 s7, s7, s{S_WAVE}')
        a(f's_lshl_b32 s7, s7, 8')
        a(f'buffer_store_dword v{vst}, v1, s[{sST}:{sST+3}], s7 offen')
        a('s_waitcnt vmcnt(0)')

    def stream(s, frags, nb=NB, pre=(), prebar=False):
        a = s.a
        n = len(frags)
        buf = lambda i: AB + 4 * (i % nb)
        issued = []
        done = [0]
        def iss(tag, ins):
            a(ins); issued.append(tag)
        def wait(tags, vm=None):
            idx = max([k for k, t in enumerate(issued) if t in tags], default=-1)
            for t in tags: assert t in issued, t
            cnt = len(issued) - 1 - idx
            w = []
            if vm is not None: w.append(f'vmcnt({vm})')
            if idx + 1 > done[0]:
                c = min(cnt, 15)
                w.append(f'lgkmcnt({c})')
                done[0] = len(issued) - c
            if w: a('s_waitcnt ' + ' '.join(w))
        for tag, ins in pre: iss(tag, ins)
        for i in range(min(nb - 1, n)):
            for x in frags[i]['rd'](buf(i)): iss(('A', i), x)
        for i, f in enumerate(frags):
            wait([('A', i)] + list(f.get('need', [])), f.get('pre_vm'))
            if f.get('bar'):
                a('s_barrier')
                if f.get('stamp'):
                    s.stamp(V_ST); done[0] = len(issued) if s.o.stamps else done[0]
            mm = f['mm'](buf(i))
            nx = [(('A', i + nb - 1), x) for x in frags[i + nb - 1]['rd'](buf(i + nb - 1))] if i + nb - 1 < n else []
            nx = nx + list(f.get('xrd', []))
            for k, m in enumerate(mm):
                a(m)
                if k < len(nx): iss(*nx[k])
            for t in nx[len(mm):]: iss(*t)
            for x in f.get('post', []): a(x)

    def srd(s, d, pb, offreg, nrec):
        a = s.a
        a(f's_add_u32 s{d}, s{pb}, s{offreg}')
        a(f's_addc_u32 s{d+1}, s{pb+1}, 0')
        if isinstance(nrec, int): a(f's_mov_b32 s{d+2}, {nrec}')
        else: a(nrec)
        a(f's_mov_b32 s{d+3}, 0x00020000')

    def srd_kv(s):
        a = s.a
        a(f's_lshl_b32 s7, s{S_B}, 22')
        a(f's_lshl_b32 s18, s{S_HP}, 18')
        a('s_add_u32 s7, s7, s18')
        s.srd(sK, 10, 7, 262144)
        s.srd(sV, 12, 7, 262144)

    def srd_st(s):
        if s.o.stamps or s.o.dbg:
            s.a('s_mov_b32 s7, 0x2000000')
            s.srd(sST, 30, 7, 1 << 20)

    def jj(s):
        a = s.a
        for j in range(4):
            if s.o.rot:
                a(f's_add_u32 s7, s{S_B}, {j}')
                a(f's_and_b32 s{S_JJ+j}, s7, 3')
            else: a(f's_mov_b32 s{S_JJ+j}, {j}')

    def prologue(s):
        a = s.a
        a('s_cmp_ge_u32 s2, 256')
        a('s_cbranch_scc1 L_END')
        a('s_load_dwordx8 s[8:15], s[0:1], 0')
        a('s_load_dwordx8 s[20:27], s[0:1], 40')
        a('s_load_dwordx2 s[16:17], s[0:1], 32')
        a('s_load_dwordx2 s[28:29], s[0:1], 72')
        a('s_load_dwordx2 s[30:31], s[0:1], 96')
        if s.o.dbg:
            a('s_memrealtime s[96:97]')
            a('s_memtime s[98:99]')
            a('s_waitcnt lgkmcnt(0)')
            a('s_mov_b32 s97, s98')
            a(f'v_mov_b32 v{V_ST}, 0')
        a('s_and_b32 s7, s2, 7')
        a('s_lshr_b32 s18, s2, 3')
        a('s_lshr_b32 s19, s18, 3')
        a('s_lshl_b32 s7, s7, 2')
        a('s_add_u32 s7, s7, s19')
        a(f's_lshr_b32 s{S_BLK}, s7, 4')
        a(f's_and_b32 s{S_HP}, s7, 15')
        a(f's_and_b32 s{S_B}, s18, 7')
        a('v_lshrrev_b32 v1, 6, v0')
        a('v_and_b32 v0, 63, v0')
        a(f'v_readfirstlane_b32 s{S_WAVE}, v1')
        if s.o.stamps:
            a(f's_mov_b32 s{S_IDX}, 0')
            a(f'v_mov_b32 v{V_ST}, 0')
            a('s_memrealtime s[98:99]')
            a('s_waitcnt lgkmcnt(0)')
            a('s_mov_b32 m0, 62')
            a('s_nop 0')
            a(f'v_writelane_b32 v{V_ST}, s98, m0')
            s.stamp(V_ST)
        a(f's_and_b32 s7, s{S_HP}, 3')
        a('s_lshl_b32 s7, s7, 1')
        if s.o.rot == 2:
            a(f's_lshr_b32 s18, s{S_B}, 1')
            a('s_lshl_b32 s18, s18, 1')
            a('s_add_u32 s7, s7, s18')
        elif s.o.rot == 3:
            a(f's_and_b32 s7, s{S_HP}, 2')
            a('s_lshl_b32 s7, s7, 1')
            a(f's_and_b32 s18, s{S_B}, 6')
            a('s_add_u32 s7, s7, s18')
        elif s.o.rot == 5:
            a(f's_and_b32 s7, s{S_B}, 6')
        else:
            a(f's_add_u32 s7, s7, s{S_B}')
        a(f's_and_b32 s{S_R2}, s7, {7 if s.o.rot else 0}')
        a(f's_and_b32 s7, s{S_WAVE}, 3')
        a(f's_lshl_b32 s{S_W1K}, s7, 10')
        a('v_lshrrev_b32 v1, 4, v0')
        a('v_and_b32 v2, 15, v0')
        a('s_lshl_b32 s18, s7, 2')
        a('v_add_u32 v3, s18, v1')
        a('v_and_b32 v4, 7, v3')
        a('v_lshlrev_b32 v4, 1, v4')
        a('v_lshrrev_b32 v5, 3, v3')
        a('v_or_b32 v4, v4, v5')
        a('v_xor_b32 v5, v2, v4')
        a('v_lshlrev_b32 v5, 4, v5')
        a(f'v_lshlrev_b32 v6, 8, v3')
        a(f'v_add_u32 v10, v6, v5')
        a('v_lshrrev_b32 v6, 3, v0')
        a('v_lshlrev_b32 v6, 10, v6')
        a('v_and_b32 v7, 7, v0')
        a('v_xor_b32 v7, v7, v1')
        a('v_lshlrev_b32 v7, 4, v7')
        a('v_add_u32 v6, v6, v7')
        a('s_mul_i32 s18, s7, 24576')
        a('v_add_u32 v6, s18, v6')
        a('s_and_b32 s18, s7, 1')
        a('s_lshl_b32 s18, s18, 6')
        a(f'v_xor_b32 v13, s18, v6')
        a(f'v_xor_b32 v14, 64, v13')
        a(f's_mul_i32 s{S_XW}, s7, 3072')
        a(f's_add_u32 s{S_XW}, s{S_XW}, {XLDS}')
        a('s_lshl_b32 s18, s7, 3')
        a('v_add_u32 v6, s18, v1')
        a('v_lshlrev_b32 v6, 13, v6')
        a(f'v_add_u32 v11, v6, v5')
        a(f's_mul_i32 s19, s{S_B}, 98304')
        a(f's_lshl_b32 s18, s{S_HP}, 9')
        a(f's_cmp_eq_u32 s{S_BLK}, 0')
        a('s_waitcnt lgkmcnt(0)')
        for i in range(8): a(f's_cselect_b32 s{8+i}, s{8+i}, s{20+i}')
        a('s_cselect_b32 s16, s16, s28')
        a('s_cselect_b32 s17, s17, s29')
        s.srd(sX, 8, 19, 98304)
        s.srd(sWQ, 14, 18, f's_sub_u32 s{sWQ+2}, 4194304, s18')
        a(f's_cmp_lt_u32 s{S_WAVE}, 4')
        a('s_cbranch_scc1 L_COMPUTE')

    def loader(s):
        a = s.a; o = s.o
        nt = ' nt' if o.nt else ''
        if o.lprio: a(f's_setprio {o.lprio}')
        VKV, VWQ, VWO, VXA, VXB = 10, 11, 12, 13, 14
        cnt = [0]
        mark = {}
        def piece(m0expr, offexpr, voff, srd, flag=''):
            a(m0expr); a(offexpr)
            a(f'buffer_load_dwordx4 v{voff}, s[{srd}:{srd+3}], s{S_OFF} offen{flag} lds')
            cnt[0] += 1
        def X(j):
            a(f's_add_u32 s{S_T}, s{S_R2}, {j}')
            a(f's_and_b32 s{S_T}, s{S_T}, 7')
            a(f's_lshl_b32 s{S_T}, s{S_T}, 7')
            for u in range(3):
                piece(f's_add_u32 m0, s{S_XW}, {(j&1)*12288 + u*1024}', f's_add_u32 s{S_OFF}, s{S_T}, {u*8192}', VXB if u == 1 else VXA, sX)
            mark[('X', j)] = cnt[0]
        def WQ(st):
            a(f's_lshl_b32 s{S_T}, s{S_R2}, 1')
            a(f's_add_u32 s{S_T}, s{S_T}, {st}')
            a(f's_and_b32 s{S_T}, s{S_T}, 15')
            a(f's_lshl_b32 s{S_T}, s{S_T}, 18')
            for aa in range(2):
                for h in range(2):
                    m0 = 65536 + (st & 3) * 16384 + h * 8192 + aa * 4096
                    piece(f's_add_u32 m0, s{S_W1K}, {m0}', f's_add_u32 s{S_OFF}, s{S_T}, {aa*32768 + h*256}', VWQ, sWQ)
            mark[('W', st)] = cnt[0]
        def KV(srd, c, isv, hs=(0, 1)):
            for h in hs:
                for m in range(4):
                    m0 = (c & 1) * 65536 + isv * 32768 + h * 16384 + m * 4096
                    off = h * 131072 + c * 16384 + m * 4096
                    piece(f's_add_u32 m0, s{S_W1K}, {m0}', f's_mov_b32 s{S_OFF}, {off}', VKV, srd, nt)
        def KVdyn(srd, isv):
            for h in range(2):
                for m in range(4):
                    m0 = isv * 32768 + h * 16384 + m * 4096
                    off = h * 131072 + m * 4096
                    piece(f's_add_u32 m0, s{S_M0B}, {m0}', f's_add_u32 s{S_OFF}, s{S_C}, {off}', VKV, srd, nt)
        def W(j, t):
            nh, kh = t >> 1, t & 1
            a(f's_lshl_b32 s{S_T}, s{S_JJ+j}, 7')
            for u in range(4):
                m0 = SLOT(WSLOT[j][t]) + u * 4096
                off = (kh * 128 + 32 * u) * 1024 + (nh * 256) * 2
                piece(f's_add_u32 m0, s{S_W1K}, {m0}', f's_add_u32 s{S_OFF}, s{S_T}, {off}', VWO, sWO)
        def wb(n):
            if n is not None: a(f's_waitcnt vmcnt({n})')
            a('s_barrier'); s.stamp(V_ST)
        def wbt(tags):
            m = max(mark[t] for t in tags)
            wb(cnt[0] - m)

        if o.fine:
            s.stamp(V_ST); X(0); s.stamp(V_ST); WQ(0); s.stamp(V_ST); WQ(1); X(1); WQ(2); WQ(3); s.stamp(V_ST)
            for n in (21, 19, 15, 11, 8, 4, 0):
                a(f's_waitcnt vmcnt({n})'); s.stamp(V_ST)
        elif o.init4:
            X(0); WQ(0); WQ(1); X(1); WQ(2); WQ(3)
        else:
            X(0); WQ(0); WQ(1); X(1)
        a(f's_and_b32 s7, s{S_WAVE}, 3')
        s.srd_kv()
        s.srd(sWO, 16, 18, 262144)
        s.srd_st()
        s.jj()
        a(f's_and_b32 s7, s{S_WAVE}, 3')
        a('v_lshrrev_b32 v6, 3, v0')
        a('v_lshlrev_b32 v6, 10, v6')
        a('v_and_b32 v7, 7, v0')
        a('v_lshrrev_b32 v7, 1, v7')
        a('v_xor_b32 v7, v7, v1')
        a('v_lshlrev_b32 v7, 5, v7')
        a('v_and_b32 v8, 1, v0')
        a('v_lshlrev_b32 v8, 4, v8')
        a('v_add_u32 v6, v6, v7')
        a('v_add_u32 v6, v6, v8')
        a('s_lshl_b32 s18, s7, 13')
        a(f'v_add_u32 v{VWO}, s18, v6')
        for st in range(16):
            tags = [('W', st)] + ([('X', st // 2)] if st % 2 == 0 else [])
            wbt(tags)
            if (2 if (o.init4 or o.fine) else 0) <= st <= 13: WQ(st + 2)
            if st % 2 == 1 and (st + 3) // 2 <= 7: X((st + 3) // 2)
            if st == 14: KV(sK, 1, 0, (0,))
            if st == 15: KV(sK, 1, 0, (1,))
        wb(None); KV(sV, 1, 1)
        wb(None); KV(sK, 2, 0)
        a(f's_mov_b32 s{S_LOOP}, 5')
        a(f's_mov_b32 s{S_C}, {2*16384}')
        a(f's_mov_b32 s{S_M0B}, s{S_W1K}')
        a.label('L_LD_LOOP')
        wb(16); KVdyn(sV, 1)
        a(f's_add_u32 s{S_C}, s{S_C}, 16384')
        a(f's_xor_b32 s{S_M0B}, s{S_M0B}, 65536')
        wb(16); KVdyn(sK, 0)
        a(f's_sub_u32 s{S_LOOP}, s{S_LOOP}, 1')
        a(f's_cmp_lg_u32 s{S_LOOP}, 0')
        a('s_cbranch_scc1 L_LD_LOOP')
        wb(16); KV(sV, 7, 1)
        wb(16)
        for t in range(4): W(0, t)
        wb(24); W(1, 0)
        wb(20)
        a('s_barrier'); s.stamp(V_ST)
        W(1, 1); W(1, 2)
        wb(12); W(1, 3); W(2, 0); W(2, 1)
        wb(8); W(2, 2); W(2, 3); W(3, 0); W(3, 1)
        wb(8); W(3, 2); W(3, 3)
        wb(0)
        s.stamp_flush(V_ST)
        a('s_endpgm')

    def compute(s):
        a = s.a; o = s.o
        cs = (128 ** -0.5) * math.log2(math.e)
        import struct
        fb = lambda x: struct.unpack('<I', struct.pack('<f', x))[0]
        a.label('L_COMPUTE')
        s.srd_kv()
        a(f's_lshl_b32 s7, s{S_BLK}, 4')
        a(f's_add_u32 s7, s7, s{S_HP}')
        a('s_lshl_b32 s7, s7, 3')
        a(f's_add_u32 s7, s7, s{S_B}')
        a('s_mul_i32 s7, s7, 98304')
        s.srd(sWS, 30, 7, 98304)
        s.srd_st()
        s.jj()
        a(f's_and_b32 s{S_H}, s{S_WAVE}, 1')
        a(f's_lshr_b32 s{S_QG}, s{S_WAVE}, 1')
        a(f's_mov_b32 s{S_KVP}, s{S_B}')
        a(f'v_mov_b32 v{V_XO}, v10')
        a('v_and_b32 v1, 15, v0')
        a('v_lshrrev_b32 v2, 4, v0')
        a(f's_mul_i32 s7, s{S_QG}, 48')
        a('v_add_u32 v3, s7, v1')
        a('v_lshlrev_b32 v3, 7, v3')
        a('v_lshrrev_b32 v4, 1, v1')
        a('v_xor_b32 v4, v4, v2')
        a('v_lshlrev_b32 v4, 4, v4')
        a('v_add_u32 v3, v3, v4')
        a(f'v_add_u32 v{V_X0}, {XLDS}, v3')
        a(f'v_xor_b32 v{V_X1}, 64, v{V_X0}')
        a(f's_mov_b32 s{S_CS}, {hex(fb(cs))}')
        a(f's_mov_b32 s{S_NCS}, {hex(fb(-cs))}')
        def ffun(dst, src, tmp):
            a(f'v_and_b32 v{dst}, 7, v{src}')
            a(f'v_lshlrev_b32 v{dst}, 1, v{dst}')
            a(f'v_lshrrev_b32 v{tmp}, 3, v{src}')
            a(f'v_or_b32 v{dst}, v{dst}, v{tmp}')
        ffun(5, 1, 6)
        a('v_lshrrev_b32 v6, 1, v2')
        a('v_xor_b32 v5, v5, v6')
        a('v_lshlrev_b32 v5, 4, v5')
        a('v_lshlrev_b32 v6, 8, v1')
        a('v_add_u32 v5, v5, v6')
        a('v_and_b32 v6, 1, v2')
        a('v_lshlrev_b32 v6, 3, v6')
        a('v_add_u32 v5, v5, v6')
        a(f's_lshl_b32 s7, s{S_H}, 14')
        a(f'v_add_u32 v{V_AK}, s7, v5')
        a('v_lshrrev_b32 v7, 2, v1')
        a('v_lshlrev_b32 v8, 2, v2')
        a('v_add_u32 v8, v8, v7')
        a('v_and_b32 v9, 3, v0')
        ffun(5, 8, 6)
        a('v_lshrrev_b32 v6, 1, v9')
        a('v_xor_b32 v5, v5, v6')
        a('v_lshlrev_b32 v5, 4, v5')
        a('v_lshlrev_b32 v6, 8, v8')
        a('v_add_u32 v5, v5, v6')
        a('v_and_b32 v6, 1, v9')
        a('v_lshlrev_b32 v6, 3, v6')
        a('v_add_u32 v5, v5, v6')
        a(f's_add_u32 s18, s7, 32768')
        a(f'v_add_u32 v{V_AV}, s18, v5')
        a(f's_lshl_b32 s7, s{S_H}, 13')
        a(f'v_add_u32 v{V_AQ}, s7, v5')
        a('v_lshrrev_b32 v5, 1, v8')
        a('v_and_b32 v5, 3, v5')
        a('v_lshlrev_b32 v5, 5, v5')
        a('v_lshlrev_b32 v6, 7, v8')
        a('v_add_u32 v5, v5, v6')
        a('v_lshlrev_b32 v6, 3, v9')
        a(f'v_add_u32 v{V_AO}, v5, v6')
        for j in range(4): a(f's_mul_i32 s{S_JJ+j}, s{S_JJ+j}, 6144')
        a(f's_cmp_eq_u32 s{S_H}, 0')
        for j in range(4):
            a(f's_cselect_b32 s{S_OB+2*j}, {WSLOT[j][0]}, {WSLOT[j][3]}')
            a(f's_cselect_b32 s{S_OB+2*j+1}, {WSLOT[j][1]}, {WSLOT[j][2]}')
        for j in range(8): a(f's_lshl_b32 s{S_OB+j}, s{S_OB+j}, 14')
        def addr8(base_v, add=None):
            if add is not None:
                a(f'v_add_u32 v{V_AD}, {add}, v{base_v}')
            else:
                a(f'v_mov_b32 v{V_AD}, v{base_v}')
            for u in range(1, 8): a(f'v_xor_b32 v{V_AD+u}, {u<<5}, v{V_AD}')
        MF = 'v_mfma_f32_16x16x32_bf16'
        nt = ' nt' if o.nt else ''
        addr8(V_AQ, 65536)
        def xrd(j):
            r = []
            for kk in range(2):
                for qt in range(3):
                    r.append((('X', j, kk), f'ds_read_b128 {vr(XR(2*j+kk,qt),4)}, v{V_X1 if kk else V_X0} offset:{(j&1)*12288+qt*2048}'))
            return r
        def kv0(isv, h, m):
            return [f's_add_u32 m0, s{S_W1K}, {isv*32768 + h*16384 + m*4096}', f's_mov_b32 s{S_OFF}, {h*131072 + m*4096}',
                    f'buffer_load_dwordx4 v{V_XO}, s[{(sV if isv else sK)}:{(sV if isv else sK)+3}], s{S_OFF} offen{nt} lds']
        frags = []
        for st in range(16):
            for dt in range(8):
                def rd(buf, dt=dt, st=st):
                    return [f'ds_read_b64_tr_b16 {vr(buf,2)}, v{V_AD+dt} offset:{(st&3)*16384}',
                            f'ds_read_b64_tr_b16 {vr(buf+2,2)}, v{V_AD+dt} offset:{(st&3)*16384+4096}']
                def mm(buf, dt=dt, st=st):
                    r = []
                    for qt in range(3):
                        d = vr(QA(dt, qt), 4)
                        c = '0' if st == 0 else d
                        r.append(f'{MF} {d}, {vr(buf,4)}, {vr(XR(st,qt),4)}, {c}')
                    return r
                f = dict(rd=rd, mm=mm, post=[], xrd=[])
                if dt == 0: f['need'] = [('X', st // 2, st & 1)]
                if dt == 1 and st < 15:
                    f['bar'] = True
                    if st in (3, 7, 11): f['stamp'] = True
                frags.append(f)
        for j in range(1, 8):
            xs = xrd(j)
            for k, t in enumerate(xs): frags[8 * (2 * j - 1) + 1 + k // 2]['xrd'].append(t)
            frags[8 * (2 * j) + 1]['need'] = [('X', j, 1)]
        if o.kvstag:
            pos = [int(x) for x in o.kvstag.split(',')]
            assert len(pos) == 8
            for fr in sorted(set(pos)):
                mask = sum(1 << p for p in range(8) if pos[p] == fr)
                blk = [f's_lshr_b32 s7, {mask}, s{S_KVP}', 's_bitcmp1_b32 s7, 0', f's_cbranch_scc0 L_KVS{fr}']
                for isv in range(2):
                    for h in range(2):
                        for m in range(4): blk += kv0(isv, h, m)
                blk.append(f'L_KVS{fr}:')
                frags[fr]['post'] += blk
        else:
            k = o.kvat
            for isv in range(2):
                for h in range(2):
                    for m in range(4):
                        frags[k]['post'] += kv0(isv, h, m); k += o.kvstep
        zl = list(range(48, 96))
        for i, z in enumerate(zl): frags[24 + i]['post'].append(f'v_mov_b32 v{z}, 0')
        for i in range(24): frags[8 * 14 + 1 + (i // 2)]['post'].append(f'v_mov_b32 v{i}, 0')
        for i in range(12): frags[8 * 15 + 1 + (i // 2)]['post'].append(f'v_mov_b32 v{24+i}, 0')
        def qcvt(j):
            r = []
            for qt in range(3):
                b = QFr(j, qt)
                for i in range(4): r.append(f'v_cvt_pk_bf16_f32 v{b+i}, v{b+2*i}, v{b+2*i+1}')
            return r
        c0, c1, c2 = qcvt(0), qcvt(1), qcvt(2)
        frags[8*15+3]['post'] += c0[:6]; frags[8*15+4]['post'] += c0[6:]
        frags[8*15+5]['post'] += c1[:6]; frags[8*15+6]['post'] += c1[6:]
        frags[8*15+7]['post'] += c2[:6]
        a('s_barrier'); s.stamp(V_ST); s.dstamp(2)
        s.stream(frags, pre=xrd(0))
        for x in c2[6:]: a(x)
        for i in range(12): a(f'v_mov_b32 v{36+i}, 0')
        for qt in range(3):
            a(f'v_mov_b32 v{V_M+qt}, 0xff800000')
            a(f'v_mov_b32 v{V_L+qt}, 0')
        for x in qcvt(3): a(x)
        s.stamp(V_ST); s.dstamp(4)
        a('s_waitcnt vmcnt(8)')
        a(f's_mov_b32 s{S_LOOP}, 8')
        a.label('L_ATT')
        addr8(V_AK)
        a('s_barrier'); s.stamp(V_ST)
        if s.o.dbg:
            a(f's_cmp_lg_u32 s{S_LOOP}, 8'); a('s_cbranch_scc1 L_DB0'); s.dstamp(5); a.label('L_DB0')
            a(f's_cmp_lg_u32 s{S_LOOP}, 4'); a('s_cbranch_scc1 L_DB1'); s.dstamp(6); a.label('L_DB1')
        frags = []
        for j in range(4):
            for kt in range(4):
                def rd(buf, j=j, kt=kt):
                    return [f'ds_read_b64 {vr(buf,2)}, v{V_AD+2*j} offset:{kt*4096}',
                            f'ds_read_b64 {vr(buf+2,2)}, v{V_AD+2*j+1} offset:{kt*4096}']
                def mm(buf, j=j, kt=kt):
                    r = []
                    for qt in range(3):
                        d = vr(SR(kt, qt), 4)
                        c = '0' if j == 0 else d
                        r.append(f'{MF} {d}, {vr(buf,4)}, {vr(QFr(j,qt),4)}, {c}')
                    return r
                frags.append(dict(rd=rd, mm=mm))
        s.stream(frags)
        addr8(V_AV)
        a(f'v_xor_b32 v{V_AK}, 65536, v{V_AK}')
        a(f'v_xor_b32 v{V_AV}, 65536, v{V_AV}')
        SQ = lambda qt: [SR(kt, qt) + i for kt in range(4) for i in range(4)]
        MX = [V_NMC + q for q in range(3)]
        for qt in range(3):
            r = SQ(qt)
            a(f'v_max3_f32 v{MX[qt]}, v{r[0]}, v{r[1]}, v{r[2]}')
        for i in range(6):
            for qt in range(3):
                r = SQ(qt)
                a(f'v_max3_f32 v{MX[qt]}, v{MX[qt]}, v{r[3+2*i]}, v{r[4+2*i]}')
        for qt in range(3):
            r = SQ(qt)
            a(f'v_max3_f32 v{MX[qt]}, v{MX[qt]}, v{r[15]}, v{V_M+qt}')
        for sw in ('v_permlane16_swap_b32', 'v_permlane32_swap_b32'):
            for qt in range(3): a(f'v_mov_b32 v{V_T+qt}, v{MX[qt]}')
            a('s_nop 0')
            for qt in range(3): a(f'{sw} v{MX[qt]}, v{V_T+qt}')
            a('s_nop 0')
            for qt in range(3): a(f'v_max_f32 v{MX[qt]}, v{MX[qt]}, v{V_T+qt}')
        for qt in range(3): a(f'v_sub_f32 v{V_T+qt}, v{V_M+qt}, v{MX[qt]}')
        for qt in range(3): a(f'v_mul_f32 v{V_T+qt}, s{S_CS}, v{V_T+qt}')
        for qt in range(3): a(f'v_exp_f32 v{V_AL+2*qt}, v{V_T+qt}')
        for qt in range(3): a(f'v_mov_b32 v{V_M+qt}, v{MX[qt]}')
        for qt in range(3): a(f'v_mul_f32 v{V_NMC+qt}, s{S_NCS}, v{MX[qt]}')
        for qt in range(3):
            r = SQ(qt)
            for i in range(0, 16, 4):
                for k in range(4): a(f'v_fma_f32 v{r[i+k]}, v{r[i+k]}, s{S_CS}, v{V_NMC+qt}')
                for k in range(4): a(f'v_exp_f32 v{r[i+k]}, v{r[i+k]}')
        for dt in range(8):
            for qt in range(3):
                b = O0 + (dt * 3 + qt) * 4
                for hh in range(2):
                    a(f'v_pk_mul_f32 {vr(b+2*hh,2)}, {vr(b+2*hh,2)}, {vr(V_AL+2*qt,2)} op_sel_hi:[1,0]')
        TP = V_AB_T = AB
        for qt in range(3):
            r = SQ(qt)
            a(f'v_pk_add_f32 {vr(TP+2*qt,2)}, {vr(r[0],2)}, {vr(r[2],2)}')
        for i in range(2, 8):
            for qt in range(3):
                r = SQ(qt)
                a(f'v_pk_add_f32 {vr(TP+2*qt,2)}, {vr(TP+2*qt,2)}, {vr(r[2*i],2)}')
        for qt in range(3): a(f'v_fma_f32 v{V_L+qt}, v{V_L+qt}, v{V_AL+2*qt}, v{TP+2*qt}')
        for qt in range(3): a(f'v_add_f32 v{V_L+qt}, v{V_L+qt}, v{TP+2*qt+1}')
        for qt in range(3):
            for kk in range(2):
                b = SR(2 * kk, qt); b2 = SR(2 * kk + 1, qt)
                a(f'v_cvt_pk_bf16_f32 v{b}, v{b}, v{b+1}')
                a(f'v_cvt_pk_bf16_f32 v{b+1}, v{b+2}, v{b+3}')
                a(f'v_cvt_pk_bf16_f32 v{b+2}, v{b2}, v{b2+1}')
                a(f'v_cvt_pk_bf16_f32 v{b+3}, v{b2+2}, v{b2+3}')
        a('s_waitcnt vmcnt(0)')
        a('s_barrier'); s.stamp(V_ST)
        frags = []
        for dt in range(8):
            for kk in range(2):
                def rd(buf, dt=dt, kk=kk):
                    return [f'ds_read_b64_tr_b16 {vr(buf,2)}, v{V_AD+dt} offset:{kk*8192}',
                            f'ds_read_b64_tr_b16 {vr(buf+2,2)}, v{V_AD+dt} offset:{kk*8192+4096}']
                def mm(buf, dt=dt, kk=kk):
                    r = []
                    for qt in range(3):
                        d = vr(O0 + (dt * 3 + qt) * 4, 4)
                        r.append(f'{MF} {d}, {vr(buf,4)}, {vr(SR(2*kk,qt),4)}, {d}')
                    return r
                frags.append(dict(rd=rd, mm=mm))
        s.stream(frags)
        a(f's_sub_u32 s{S_LOOP}, s{S_LOOP}, 1')
        a(f's_cmp_lg_u32 s{S_LOOP}, 0')
        a('s_cbranch_scc1 L_ATT')
        s.stamp(V_ST); s.dstamp(7)
        for sw in ('v_permlane16_swap_b32', 'v_permlane32_swap_b32'):
            for qt in range(3): a(f'v_mov_b32 v{V_T+qt}, v{V_L+qt}')
            a('s_nop 0')
            for qt in range(3): a(f'{sw} v{V_L+qt}, v{V_T+qt}')
            a('s_nop 0')
            for qt in range(3): a(f'v_add_f32 v{V_L+qt}, v{V_L+qt}, v{V_T+qt}')
        for qt in range(3): a(f'v_rcp_f32 v{V_AL+2*qt}, v{V_L+qt}')
        a('s_nop 0')
        a('v_mbcnt_lo_u32_b32 v251, -1, 0')
        a('v_mbcnt_hi_u32_b32 v251, -1, v251')
        a('v_lshlrev_b32 v251, 4, v251')
        a(f's_mul_i32 s7, s{S_WAVE}, 12288')
        a(f's_add_u32 s7, s7, {XCH}')
        a('v_add_u32 v252, s7, v251')
        a(f's_xor_b32 s18, s{S_WAVE}, 1')
        a(f's_mul_i32 s18, s18, 12288')
        a(f's_add_u32 s18, s18, {XCH}')
        a('v_add_u32 v253, s18, v251')
        a(f's_mul_i32 s7, s{S_WAVE}, 24576')
        a(f'v_add_u32 v{V_XO}, s7, v251')
        for j in range(4):
            for qt in range(3):
                for t in range(2):
                    b = O0 + ((2 * j + t) * 3 + qt) * 4
                    for hh in range(2):
                        a(f'v_pk_mul_f32 {vr(b+2*hh,2)}, {vr(b+2*hh,2)}, {vr(V_AL+2*qt,2)} op_sel_hi:[1,0]')
                for t in range(2):
                    src = O0 + ((2 * j + t) * 3 + qt) * 4
                    dst = QFr(j, qt) + 2 * t
                    a(f'v_cvt_pk_bf16_f32 v{dst}, v{src}, v{src+1}')
                    a(f'v_cvt_pk_bf16_f32 v{dst+1}, v{src+2}, v{src+3}')
                a(f'ds_write_b128 v252, {vr(QFr(j,qt),4)} offset:{(j*3+qt)*1024}')
        a('s_waitcnt lgkmcnt(0)')
        a('s_barrier'); s.stamp(V_ST); s.dstamp(8)
        for i in range(12): a(f'ds_read_b128 {vr(96+8*i+4,4)}, v253 offset:{i*1024}')
        a('s_waitcnt lgkmcnt(0)')
        stf = o.stflag
        def epi(j):
            r = []
            base = 48 * (j & 1)
            for u in range(2):
                for qt in range(3):
                    b = base + (u * 3 + qt) * 8
                    grp = [f'v_cvt_pk_bf16_f32 v{b+i}, v{b+2*i}, v{b+2*i+1}' for i in range(4)]
                    off = (u * 3 + qt) * 1024
                    grp.append(f's_add_u32 s7, s{S_JJ+j}, {off}')
                    grp.append(f'buffer_store_dwordx4 {vr(b,4)}, v{V_XO}, s[{sWS}:{sWS+3}], s7 offen{stf}')
                    r.append(grp)
            return r
        for j in range(4):
            for half in range(2):
                a(f'v_add_u32 v{V_AD+4*half}, s{S_OB+2*j+half}, v{V_AO}')
                for nt_ in range(1, 4): a(f'v_xor_b32 v{V_AD+4*half+nt_}, {nt_<<5}, v{V_AD+4*half}')
            a('s_barrier'); s.stamp(V_ST); s.dstamp(9 + j)
            base = 48 * (j & 1)
            frags = []
            for half in range(2):
                for jj in range(4):
                    for nt_ in range(4):
                        def rd(buf, half=half, jj=jj, nt_=nt_):
                            return [f'ds_read_b64_tr_b16 {vr(buf,2)}, v{V_AD+4*half+nt_} offset:{jj*4096}',
                                    f'ds_read_b64_tr_b16 {vr(buf+2,2)}, v{V_AD+4*half+nt_} offset:{jj*4096+2048}']
                        def mm(buf, half=half, jj=jj, nt_=nt_):
                            r = []
                            for qt in range(3):
                                d = vr(base + ((nt_ >> 1) * 3 + qt) * 8 + (nt_ & 1) * 4, 4)
                                c = '0' if (half == 0 and jj == 0) else d
                                bsrc = QFr(jj, qt) + 4 * half
                                r.append(f'{MF} {d}, {vr(buf,4)}, {vr(bsrc,4)}, {c}')
                            return r
                        frags.append(dict(rd=rd, mm=mm))
            if j > 0:
                for k, grp in enumerate(epi(j - 1)):
                    frags[3 + 4 * k]['post'] = grp
            s.stream(frags)
        s.stamp(V_ST)
        a('s_nop 7')
        for grp in epi(3):
            for x in grp: a(x)
        s.stamp(V_ST); s.dstamp(13)
        if s.o.dbg:
            a('s_waitcnt vmcnt(0)'); s.dstamp(14)
        s.dflush()
        s.stamp_flush(V_ST)
        a('s_endpgm')

    def reduce(s):
        a = s.a; o = s.o
        a.raw('.p2align 8'); a.raw('.type red_kernel,@function'); a.label('red_kernel')
        a('s_cmp_ge_u32 s2, 24')
        a('s_cbranch_scc1 L_REND')
        a('s_load_dwordx2 s[4:5], s[0:1], 80')
        a('s_load_dwordx2 s[6:7], s[0:1], 96')
        a('v_lshrrev_b32 v1, 6, v0')
        a('v_and_b32 v0, 63, v0')
        a('v_readfirstlane_b32 s8, v1')
        a('s_nop 3')
        if o.dbg:
            a('s_load_dwordx2 s[32:33], s[0:1], 88')
            a('s_memrealtime s[34:35]')
            a('s_or_b32 s9, s2, s3'); a('s_or_b32 s9, s9, s8')
            a('s_cmp_lg_u32 s9, 0')
            a('s_cbranch_scc1 L_RNODBG')
            a('s_waitcnt lgkmcnt(0)')
            a('s_add_u32 s40, s6, 0x2000000'); a('s_addc_u32 s41, s7, 0'); a('s_mov_b32 s42, 0x100000'); a('s_mov_b32 s43, 0x00020000')
            a('s_mov_b32 s44, s32'); a('s_mov_b32 s45, s33'); a('s_mov_b32 s46, 256'); a('s_mov_b32 s47, 0x00020000')
            a('v_lshlrev_b32 v90, 8, v0')
            for k in range(4):
                a(f's_mov_b32 s9, {k*16384}')
                a(f'buffer_load_dwordx2 v[{92+2*k}:{93+2*k}], v90, s[40:43], s9 offen')
            a('v_lshlrev_b32 v91, 2, v0')
            a(f's_mov_b32 s9, {o.dbgwg*256}')
            a('buffer_load_dword v100, v91, s[40:43], s9 offen')
            a('s_waitcnt vmcnt(0)')
            a('v_min_u32 v92, v92, v94'); a('v_min_u32 v96, v96, v98'); a('v_min_u32 v102, v92, v96')
            a('v_max_u32 v93, v93, v95'); a('v_max_u32 v97, v97, v99'); a('v_max_u32 v103, v93, v97')
            a('v_readlane_b32 s36, v102, 0'); a('v_readlane_b32 s37, v103, 0')
            for l in range(1, 64):
                a(f'v_readlane_b32 s38, v102, {l}'); a(f'v_readlane_b32 s39, v103, {l}')
                a('s_min_u32 s36, s36, s38'); a('s_max_u32 s37, s37, s39')
            a('s_sub_u32 s38, s37, s36'); a('s_sub_u32 s39, s34, s37')
            a('v_writelane_b32 v100, s38, 0'); a('v_writelane_b32 v100, s39, 1')
            a('v_cmp_gt_u32 vcc, 16, v0'); a('s_and_saveexec_b64 s[48:49], vcc')
            a('buffer_store_dword v100, v91, s[44:47], 0 offen')
            a('s_mov_b64 exec, s[48:49]')
            a.label('L_RNODBG')
        a('s_lshl_b32 s9, s2, 2')
        a('s_add_u32 s8, s8, s9')
        a('s_lshr_b32 s10, s3, 3')
        a('s_and_b32 s11, s3, 7')
        a('s_lshl_b32 s12, s10, 7')
        a('s_add_u32 s12, s12, s11')
        a('s_mul_i32 s12, s12, 98304')
        a('s_lshl_b32 s13, s8, 10')
        a('s_add_u32 s12, s12, s13')
        a('v_lshlrev_b32 v1, 4, v0')
        a('s_waitcnt lgkmcnt(0)')
        a('s_add_u32 s16, s6, s12')
        a('s_addc_u32 s17, s7, 0')
        a(f's_mov_b32 s18, {15*786432+1024}')
        a('s_mov_b32 s19, 0x00020000')
        a('s_mov_b32 s14, 0')
        for hp in range(16):
            a(f'buffer_load_dwordx4 {vr(8+4*hp,4)}, v1, s[16:19], s14 offen{o.ldflag}')
            if hp < 15: a('s_add_u32 s14, s14, 786432')
        a('s_mul_i32 s20, s8, 43')
        a('s_lshr_b32 s20, s20, 8')
        a('s_mul_i32 s21, s20, 6')
        a('s_sub_u32 s21, s8, s21')
        a('s_cmp_ge_u32 s21, 3')
        a('s_cselect_b32 s22, 1, 0')
        a('s_mul_i32 s23, s22, 3')
        a('s_sub_u32 s23, s21, s23')
        a('s_lshr_b32 s24, s20, 2')
        a('s_and_b32 s25, s20, 3')
        a('s_and_b32 s26, s24, 1')
        a('s_lshr_b32 s27, s24, 1')
        a('s_mul_i32 s28, s11, 96')
        a('s_mul_i32 s29, s27, 48')
        a('s_add_u32 s28, s28, s29')
        a('s_lshl_b32 s29, s23, 4')
        a('s_add_u32 s28, s28, s29')
        a('s_lshl_b32 s28, s28, 11')
        a('s_lshl_b32 s29, s10, 10')
        a('s_add_u32 s28, s28, s29')
        a('s_lshl_b32 s29, s26, 9')
        a('s_add_u32 s28, s28, s29')
        a('s_lshl_b32 s29, s25, 7')
        a('s_add_u32 s28, s28, s29')
        a('s_lshl_b32 s29, s22, 6')
        a('s_add_u32 s28, s28, s29')
        a('v_and_b32 v2, 15, v0')
        a('v_lshlrev_b32 v2, 11, v2')
        a('v_lshrrev_b32 v3, 4, v0')
        a('v_and_b32 v4, 1, v3')
        a('v_lshlrev_b32 v4, 5, v4')
        a('v_lshrrev_b32 v3, 1, v3')
        a('v_lshlrev_b32 v3, 4, v3')
        a('v_add_u32 v2, v2, v3')
        a('v_add_u32 v2, v2, v4')
        a('v_add_u32 v2, s28, v2')
        a('s_mov_b32 s8, s4')
        a('s_mov_b32 s9, s5')
        a(f's_mov_b32 s10, {8*96*1024*2}')
        a('s_mov_b32 s11, 0x00020000')
        a('s_mov_b32 s30, 0xffff0000')
        for hp in range(16):
            a(f's_waitcnt vmcnt({15-hp})')
            b = 8 + 4 * hp
            for i in range(4):
                if hp == 0:
                    a(f'v_lshlrev_b32 v{72+2*i}, 16, v{b+i}')
                    a(f'v_and_b32 v{73+2*i}, s30, v{b+i}')
                else:
                    a(f'v_lshlrev_b32 v4, 16, v{b+i}')
                    a(f'v_and_b32 v5, s30, v{b+i}')
                    a(f'v_pk_add_f32 {vr(72+2*i,2)}, {vr(72+2*i,2)}, v[4:5]')
        for i in range(4): a(f'v_cvt_pk_bf16_f32 v{80+i}, v{72+2*i}, v{73+2*i}')
        a('s_nop 1')
        a('v_permlane16_swap_b32 v80, v82')
        a('v_permlane16_swap_b32 v81, v83')
        a('s_nop 1')
        a('buffer_store_dwordx4 v[80:83], v2, s[8:11], 0 offen')
        a.label('L_REND')
        a('s_endpgm')

    def build(s):
        a = s.a; o = s.o
        kn = o.kname
        hdr = open('cdna_kernels/' + NAME + '.s.ref').read().split('\n')
        for ln in hdr:
            if ln.startswith('; @launch'): break
            a.raw(ln)
        for ch in o.list:
            if ch == 'm': a.raw(f'; @launch kernel={kn} grid=(256,1,1) block=(512,1,1) lds=163840')
            if ch == 'r': a.raw(f'; @launch kernel=red_kernel grid=(24,16,1) block=(256,1,1) lds=0')
            if ch == 'n': a.raw(f'; @launch kernel=nop_kernel grid=(256,1,1) block=(64,1,1) lds=0')
        a.raw('.amdgcn_target "amdgcn-amd-amdhsa--gfx950"')
        a.raw('.text')
        a.raw(f'.globl {kn}'); a.raw('.p2align 8'); a.raw(f'.type {kn},@function'); a.label(kn)
        s.prologue()
        s.loader()
        s.compute()
        a.label('L_END'); a('s_endpgm')
        a.raw('.globl red_kernel')
        s.reduce()
        kl = [(kn, 256, 0), ('red_kernel', 104 if o.dbg else 88, 1)]
        if 'n' in o.list:
            a.raw('.globl nop_kernel'); a.raw('.p2align 8'); a.raw('.type nop_kernel,@function'); a.label('nop_kernel'); a('s_endpgm')
            kl.append(('nop_kernel', 8, 0))
        a.raw('.section .rodata,"a"')
        for k, nv, y in kl:
            a.raw('.p2align 6')
            a.raw(f'.amdhsa_kernel {k}')
            a.raw(f'  .amdhsa_next_free_vgpr {nv}')
            a.raw('  .amdhsa_next_free_sgpr 102')
            a.raw(f'  .amdhsa_accum_offset {nv}')
            a.raw('  .amdhsa_group_segment_fixed_size 0')
            a.raw('  .amdhsa_kernarg_size 104')
            a.raw('  .amdhsa_user_sgpr_count 2')
            a.raw('  .amdhsa_user_sgpr_kernarg_segment_ptr 1')
            a.raw('  .amdhsa_system_sgpr_workgroup_id_x 1')
            if y: a.raw('  .amdhsa_system_sgpr_workgroup_id_y 1')
            a.raw('.end_amdhsa_kernel')
        return a.text()

if __name__ == '__main__':
    p = argparse.ArgumentParser()
    p.add_argument('-o', default='cdna_kernels/' + NAME + '.s')
    p.add_argument('--kname', default=NAME + '_kernel')
    p.add_argument('--stamps', action='store_true')
    p.add_argument('--nt', action='store_true')
    p.add_argument('--list', default='mr')
    p.add_argument('--fine', action='store_true')
    p.add_argument('--dbg', action='store_true')
    p.add_argument('--dbgwg', type=int, default=37)
    p.add_argument('--tlb', type=int, default=0)
    p.add_argument('--lprio', type=int, default=0)
    p.add_argument('--rot', type=int, default=1)
    p.add_argument('--init4', action='store_true')
    p.add_argument('--kvstag', default='')
    p.add_argument('--kvat', type=int, default=0)
    p.add_argument('--kvstep', type=int, default=1)
    p.add_argument('--stflag', default='')
    p.add_argument('--ldflag', default='')
    o = p.parse_args()
    if o.stflag: o.stflag = ' ' + o.stflag
    if o.ldflag: o.ldflag = ' ' + o.ldflag
    open(o.o, 'w').write(Gen(o).build())
```

```python
import sys, math, argparse

NAME = 'concat_heads__mha_block_cached__gqa_block_cached__near_ridge'

class Asm:
    def __init__(s): s.l = []
    def __call__(s, x):
        for y in x.split('\n'):
            y = y.strip()
            if y: s.l.append(y if y.endswith(':') else '    ' + y)
    def label(s, x): s.l.append(x + ':')
    def raw(s, x): s.l.append(x)
    def text(s): return '\n'.join(s.l) + '\n'

def vr(b, n=1):
    return f'v{b}' if n == 1 else f'v[{b}:{b+n-1}]'
def sr(b, n=1):
    return f's{b}' if n == 1 else f's[{b}:{b+n-1}]'

sX, sK, sV, sWQ, sWO, sWS, sST = 36, 40, 44, 48, 52, 56, 92
S_WAVE, S_BLK, S_HP, S_B = 3, 4, 5, 6
S_16K, S_32K, S_CS, S_NCS, S_LOOP, S_H, S_QG = 60, 61, 62, 63, 64, 65, 66
S_OB = 68
S_OFF, S_C, S_M0B, S_W1K = 76, 77, 78, 79
S_IDX = 80
O0, AB = 0, 192
QFr = lambda j, qt: 96 + (j * 3 + qt) * 8
SR = lambda kt, qt: 96 + (kt * 3 + qt) * 8 + 4
QA = lambda dt, qt: 96 + ((dt >> 1) * 3 + qt) * 8 + (dt & 1) * 4
XR = lambda ks, qt: ((ks >> 1) & 1) * 24 + (ks & 1) * 12 + qt * 4
XLDS = 131072
S_R2, S_T = 81, 82
S_XW, S_KVP = 88, 89
S_JJ = 84
V_X0, V_X1 = 251, 252
V_AK, V_AV, V_AQ, V_AO = 224, 225, 226, 227
V_AD = 228
V_M, V_L, V_AL, V_NMC, V_T = 236, 239, 242, 248, 251
V_ST, V_XO = 254, 255
NB = 8

SLOT = lambda i: i * 16384
QSLOT = [65536, 98304, 131072, 0, 32768, 65536, 98304, 131072]
WSLOT = [[8, 9, 0, 1], [2, 6, 7, 3], [4, 5, 8, 9], [0, 1, 2, 6]]
XCH = 49152

class Gen:
    def __init__(s, opt):
        s.o = opt
        s.a = Asm()

    def dstamp(s, idx):
        if not s.o.dbg: return
        a = s.a
        a('s_memtime s[98:99]')
        a('s_waitcnt lgkmcnt(0)')
        a('s_sub_u32 s98, s98, s97')
        a(f'v_writelane_b32 v{V_ST}, s98, {idx}')

    def dflush(s):
        if not s.o.dbg: return
        a = s.a
        a('s_memrealtime s[98:99]')
        a('s_waitcnt lgkmcnt(0)')
        a(f'v_writelane_b32 v{V_ST}, s98, 1')
        a(f'v_writelane_b32 v{V_ST}, s96, 0')
        a(f's_cmp_lg_u32 s{S_WAVE}, 0')
        a('s_cbranch_scc1 L_DBG_SKIP')
        a('v_mbcnt_lo_u32_b32 v4, -1, 0')
        a('v_mbcnt_hi_u32_b32 v4, -1, v4')
        a('v_lshlrev_b32 v1, 2, v4')
        a('s_lshl_b32 s7, s2, 8')
        a(f'buffer_store_dword v{V_ST}, v1, s[{sST}:{sST+3}], s7 offen')
        a.label('L_DBG_SKIP')
        a('s_waitcnt vmcnt(0)')

    def stamp(s, vst):
        if not s.o.stamps: return
        a = s.a
        a('s_memtime s[98:99]')
        a('s_waitcnt lgkmcnt(0)')
        a(f's_mov_b32 m0, s{S_IDX}')
        a(f's_add_u32 s{S_IDX}, s{S_IDX}, 1')
        a(f'v_writelane_b32 v{vst}, s98, m0')

    def stamp_flush(s, vst):
        if not s.o.stamps: return
        a = s.a
        a('s_memrealtime s[98:99]')
        a('s_waitcnt lgkmcnt(0)')
        a(f's_mov_b32 m0, 63')
        a('s_nop 0')
        a(f'v_writelane_b32 v{vst}, s98, m0')
        a(f'v_mbcnt_lo_u32_b32 v1, -1, 0')
        a(f'v_mbcnt_hi_u32_b32 v1, -1, v1')
        a(f'v_lshlrev_b32 v1, 2, v1')
        a(f's_lshl_b32 s7, s2, 3')
        a(f's_add_u32 s7, s7, s{S_WAVE}')
        a(f's_lshl_b32 s7, s7, 8')
        a(f'buffer_store_dword v{vst}, v1, s[{sST}:{sST+3}], s7 offen')
        a('s_waitcnt vmcnt(0)')

    def stream(s, frags, nb=NB, pre=(), prebar=False, mid=()):
        a = s.a
        n = len(frags)
        buf = lambda i: AB + 4 * (i % nb)
        issued = []
        done = [0]
        def iss(tag, ins):
            a(ins); issued.append(tag)
        def wait(tags, vm=None):
            idx = max([k for k, t in enumerate(issued) if t in tags], default=-1)
            for t in tags: assert t in issued, t
            cnt = len(issued) - 1 - idx
            w = []
            if vm is not None: w.append(f'vmcnt({vm})')
            if idx + 1 > done[0]:
                c = min(cnt, 15)
                w.append(f'lgkmcnt({c})')
                done[0] = len(issued) - c
            if w: a('s_waitcnt ' + ' '.join(w))
        for tag, ins in pre: iss(tag, ins)
        for i in range(min(nb - 1, n)):
            for x in frags[i]['rd'](buf(i)): iss(('A', i), x)
        for x in mid: a(x)
        for i, f in enumerate(frags):
            wait([('A', i)] + list(f.get('need', [])), f.get('pre_vm'))
            if f.get('bar'):
                a('s_barrier')
                if f.get('stamp'):
                    s.stamp(V_ST); done[0] = len(issued) if s.o.stamps else done[0]
            mm = f['mm'](buf(i))
            nx = [(('A', i + nb - 1), x) for x in frags[i + nb - 1]['rd'](buf(i + nb - 1))] if i + nb - 1 < n else []
            nx = nx + list(f.get('xrd', []))
            if 'ext' in f:
                ext = list(f['ext'])
                sh = [[], [], []]
                for k, t_ in enumerate(nx): sh[min(k, 2)].append(t_)
                k = 0
                while ext:
                    cap = 3 if k < 2 else 99
                    while ext and len(sh[k]) < cap: sh[k].append(ext.pop(0))
                    k += 1
                for k, m in enumerate(mm):
                    a(m)
                    for e in sh[k]:
                        if isinstance(e, tuple): iss(*e)
                        else: a(e)
                for x in f.get('post', []): a(x)
                continue
            for k, m in enumerate(mm):
                a(m)
                if k < len(nx): iss(*nx[k])
            for t in nx[len(mm):]: iss(*t)
            for x in f.get('post', []): a(x)

    def srd(s, d, pb, offreg, nrec):
        a = s.a
        a(f's_add_u32 s{d}, s{pb}, s{offreg}')
        a(f's_addc_u32 s{d+1}, s{pb+1}, 0')
        if isinstance(nrec, int): a(f's_mov_b32 s{d+2}, {nrec}')
        else: a(nrec)
        a(f's_mov_b32 s{d+3}, 0x00020000')

    def srd_kv(s):
        a = s.a
        a(f's_lshl_b32 s7, s{S_B}, 22')
        a(f's_lshl_b32 s18, s{S_HP}, 18')
        a('s_add_u32 s7, s7, s18')
        s.srd(sK, 10, 7, 262144)
        s.srd(sV, 12, 7, 262144)

    def srd_st(s):
        if s.o.stamps or s.o.dbg:
            s.a('s_mov_b32 s7, 0x2000000')
            s.srd(sST, 30, 7, 1 << 20)

    def jj(s):
        a = s.a
        for j in range(4):
            if s.o.rot:
                a(f's_add_u32 s7, s{S_B}, {j}')
                a(f's_and_b32 s{S_JJ+j}, s7, 3')
            else: a(f's_mov_b32 s{S_JJ+j}, {j}')

    def prologue(s):
        a = s.a
        a('s_cmp_ge_u32 s2, 256')
        a('s_cbranch_scc1 L_END')
        a('s_load_dwordx8 s[8:15], s[0:1], 0')
        a('s_load_dwordx8 s[20:27], s[0:1], 40')
        a('s_load_dwordx2 s[16:17], s[0:1], 32')
        a('s_load_dwordx2 s[28:29], s[0:1], 72')
        a('s_load_dwordx2 s[30:31], s[0:1], 96')
        if s.o.dbg:
            a('s_memrealtime s[96:97]')
            a('s_memtime s[98:99]')
            a('s_waitcnt lgkmcnt(0)')
            a('s_mov_b32 s97, s98')
            a(f'v_mov_b32 v{V_ST}, 0')
        a('s_and_b32 s7, s2, 7')
        a('s_lshr_b32 s18, s2, 3')
        a('s_lshr_b32 s19, s18, 3')
        a('s_lshl_b32 s7, s7, 2')
        a('s_add_u32 s7, s7, s19')
        a(f's_lshr_b32 s{S_BLK}, s7, 4')
        a(f's_and_b32 s{S_HP}, s7, 15')
        a(f's_and_b32 s{S_B}, s18, 7')
        a('v_lshrrev_b32 v1, 6, v0')
        a('v_and_b32 v0, 63, v0')
        a(f'v_readfirstlane_b32 s{S_WAVE}, v1')
        if s.o.stamps:
            a(f's_mov_b32 s{S_IDX}, 0')
            a(f'v_mov_b32 v{V_ST}, 0')
            a('s_memrealtime s[98:99]')
            a('s_waitcnt lgkmcnt(0)')
            a('s_mov_b32 m0, 62')
            a('s_nop 0')
            a(f'v_writelane_b32 v{V_ST}, s98, m0')
            s.stamp(V_ST)
        a(f's_and_b32 s7, s{S_HP}, 3')
        a('s_lshl_b32 s7, s7, 1')
        if s.o.rot == 2:
            a(f's_lshr_b32 s18, s{S_B}, 1')
            a('s_lshl_b32 s18, s18, 1')
            a('s_add_u32 s7, s7, s18')
        elif s.o.rot == 3:
            a(f's_and_b32 s7, s{S_HP}, 2')
            a('s_lshl_b32 s7, s7, 1')
            a(f's_and_b32 s18, s{S_B}, 6')
            a('s_add_u32 s7, s7, s18')
        elif s.o.rot == 5:
            a(f's_and_b32 s7, s{S_B}, 6')
        else:
            a(f's_add_u32 s7, s7, s{S_B}')
        a(f's_and_b32 s{S_R2}, s7, {7 if s.o.rot else 0}')
        a(f's_and_b32 s7, s{S_WAVE}, 3')
        a(f's_lshl_b32 s{S_W1K}, s7, 10')
        a('v_lshrrev_b32 v1, 4, v0')
        a('v_and_b32 v2, 15, v0')
        a('s_lshl_b32 s18, s7, 2')
        a('v_add_u32 v3, s18, v1')
        a('v_and_b32 v4, 7, v3')
        a('v_lshlrev_b32 v4, 1, v4')
        a('v_lshrrev_b32 v5, 3, v3')
        a('v_or_b32 v4, v4, v5')
        a('v_xor_b32 v5, v2, v4')
        a('v_lshlrev_b32 v5, 4, v5')
        a(f'v_lshlrev_b32 v6, 8, v3')
        a(f'v_add_u32 v10, v6, v5')
        a('v_lshrrev_b32 v6, 3, v0')
        a('v_lshlrev_b32 v6, 10, v6')
        a('v_and_b32 v7, 7, v0')
        a('v_xor_b32 v7, v7, v1')
        a('v_lshlrev_b32 v7, 4, v7')
        a('v_add_u32 v6, v6, v7')
        a('s_mul_i32 s18, s7, 24576')
        a('v_add_u32 v6, s18, v6')
        a('s_and_b32 s18, s7, 1')
        a('s_lshl_b32 s18, s18, 6')
        a(f'v_xor_b32 v13, s18, v6')
        a(f'v_xor_b32 v14, 64, v13')
        a(f's_mul_i32 s{S_XW}, s7, 3072')
        a(f's_add_u32 s{S_XW}, s{S_XW}, {XLDS}')
        a('s_lshl_b32 s18, s7, 3')
        a('v_add_u32 v6, s18, v1')
        a('v_lshlrev_b32 v6, 13, v6')
        a(f'v_add_u32 v11, v6, v5')
        a(f's_mul_i32 s19, s{S_B}, 98304')
        a(f's_lshl_b32 s18, s{S_HP}, 9')
        a(f's_cmp_eq_u32 s{S_BLK}, 0')
        a('s_waitcnt lgkmcnt(0)')
        for i in range(8): a(f's_cselect_b32 s{8+i}, s{8+i}, s{20+i}')
        a('s_cselect_b32 s16, s16, s28')
        a('s_cselect_b32 s17, s17, s29')
        s.srd(sX, 8, 19, 98304)
        s.srd(sWQ, 14, 18, f's_sub_u32 s{sWQ+2}, 4194304, s18')
        a(f's_cmp_lt_u32 s{S_WAVE}, 4')
        a('s_cbranch_scc1 L_COMPUTE')

    def loader(s):
        a = s.a; o = s.o
        nt = ' nt' if o.nt else ''
        if o.lprio: a(f's_setprio {o.lprio}')
        VKV, VWQ, VWO, VXA, VXB = 10, 11, 12, 13, 14
        cnt = [0]
        mark = {}
        def piece(m0expr, offexpr, voff, srd, flag=''):
            a(m0expr); a(offexpr)
            a(f'buffer_load_dwordx4 v{voff}, s[{srd}:{srd+3}], s{S_OFF} offen{flag} lds')
            cnt[0] += 1
        def X(j):
            a(f's_add_u32 s{S_T}, s{S_R2}, {j}')
            a(f's_and_b32 s{S_T}, s{S_T}, 7')
            a(f's_lshl_b32 s{S_T}, s{S_T}, 7')
            for u in range(3):
                piece(f's_add_u32 m0, s{S_XW}, {(j&1)*12288 + u*1024}', f's_add_u32 s{S_OFF}, s{S_T}, {u*8192}', VXB if u == 1 else VXA, sX)
            mark[('X', j)] = cnt[0]
        def WQ(st):
            a(f's_lshl_b32 s{S_T}, s{S_R2}, 1')
            a(f's_add_u32 s{S_T}, s{S_T}, {st}')
            a(f's_and_b32 s{S_T}, s{S_T}, 15')
            a(f's_lshl_b32 s{S_T}, s{S_T}, 18')
            for aa in range(2):
                for h in range(2):
                    m0 = 65536 + (st & 3) * 16384 + h * 8192 + aa * 4096
                    piece(f's_add_u32 m0, s{S_W1K}, {m0}', f's_add_u32 s{S_OFF}, s{S_T}, {aa*32768 + h*256}', VWQ, sWQ)
            mark[('W', st)] = cnt[0]
        def KV(srd, c, isv, hs=(0, 1)):
            for h in hs:
                for m in range(4):
                    m0 = (c & 1) * 65536 + isv * 32768 + h * 16384 + m * 4096
                    off = h * 131072 + c * 16384 + m * 4096
                    piece(f's_add_u32 m0, s{S_W1K}, {m0}', f's_mov_b32 s{S_OFF}, {off}', VKV, srd, nt)
        def KVdyn(srd, isv):
            for h in range(2):
                for m in range(4):
                    m0 = isv * 32768 + h * 16384 + m * 4096
                    off = h * 131072 + m * 4096
                    piece(f's_add_u32 m0, s{S_M0B}, {m0}', f's_add_u32 s{S_OFF}, s{S_C}, {off}', VKV, srd, nt)
        def W(j, t):
            nh, kh = t >> 1, t & 1
            a(f's_lshl_b32 s{S_T}, s{S_JJ+j}, 7')
            for u in range(4):
                m0 = SLOT(WSLOT[j][t]) + u * 4096
                off = (kh * 128 + 32 * u) * 1024 + (nh * 256) * 2
                piece(f's_add_u32 m0, s{S_W1K}, {m0}', f's_add_u32 s{S_OFF}, s{S_T}, {off}', VWO, sWO)
        def wb(n, pre=False):
            if n is not None: a(f's_waitcnt vmcnt({n})')
            if pre and o.ldst: s.stamp(V_ST)
            a('s_barrier'); s.stamp(V_ST)
        def wbt(tags):
            m = max(mark[t] for t in tags)
            wb(cnt[0] - m)

        if o.fine:
            s.stamp(V_ST); X(0); s.stamp(V_ST); WQ(0); s.stamp(V_ST); WQ(1); X(1); WQ(2); WQ(3); s.stamp(V_ST)
            for n in (21, 19, 15, 11, 8, 4, 0):
                a(f's_waitcnt vmcnt({n})'); s.stamp(V_ST)
        elif o.init4:
            X(0); WQ(0); WQ(1); X(1); WQ(2); WQ(3)
        else:
            X(0); WQ(0); WQ(1); X(1)
        a(f's_and_b32 s7, s{S_WAVE}, 3')
        s.srd_kv()
        s.srd(sWO, 16, 18, 262144)
        s.srd_st()
        s.jj()
        a(f's_and_b32 s7, s{S_WAVE}, 3')
        a('v_lshrrev_b32 v6, 3, v0')
        a('v_lshlrev_b32 v6, 10, v6')
        a('v_and_b32 v7, 7, v0')
        a('v_lshrrev_b32 v7, 1, v7')
        a('v_xor_b32 v7, v7, v1')
        a('v_lshlrev_b32 v7, 5, v7')
        a('v_and_b32 v8, 1, v0')
        a('v_lshlrev_b32 v8, 4, v8')
        a('v_add_u32 v6, v6, v7')
        a('v_add_u32 v6, v6, v8')
        a('s_lshl_b32 s18, s7, 13')
        a(f'v_add_u32 v{VWO}, s18, v6')
        for st in range(16):
            tags = [('W', st)] + ([('X', st // 2)] if st % 2 == 0 else [])
            wbt(tags)
            if (2 if (o.init4 or o.fine) else 0) <= st <= 13: WQ(st + 2)
            if st % 2 == 1 and (st + 3) // 2 <= 7: X((st + 3) // 2)
            if st == 14: KV(sK, 1, 0, (0,))
            if st == 15: KV(sK, 1, 0, (1,))
        wb(None); KV(sV, 1, 1)
        wb(None); KV(sK, 2, 0)
        a(f's_mov_b32 s{S_LOOP}, 5')
        a(f's_mov_b32 s{S_C}, {2*16384}')
        a(f's_mov_b32 s{S_M0B}, s{S_W1K}')
        a.label('L_LD_LOOP')
        wb(16)
        if o.cap >= 0: a(f's_waitcnt vmcnt({o.cap})')
        KVdyn(sV, 1)
        a(f's_add_u32 s{S_C}, s{S_C}, 16384')
        a(f's_xor_b32 s{S_M0B}, s{S_M0B}, 65536')
        wb(16)
        if o.cap >= 0: a(f's_waitcnt vmcnt({o.cap})')
        KVdyn(sK, 0)
        a(f's_sub_u32 s{S_LOOP}, s{S_LOOP}, 1')
        a(f's_cmp_lg_u32 s{S_LOOP}, 0')
        a('s_cbranch_scc1 L_LD_LOOP')
        if o.o2:
            W(0, 0); W(0, 3)
            wb(24); KV(sV, 7, 1)
            wb(24); W(0, 1); W(0, 2)
            wb(24); W(1, 0)
            wb(12, True)
            wb(None); W(1, 3); W(1, 1)
            wb(12, True)
            wb(None)
            wb(None); W(1, 2); W(2, 0); W(2, 3); W(2, 1); W(2, 2)
            wb(24, True)
            wb(16, True); W(3, 0); W(3, 3)
            wb(16, True); W(3, 1); W(3, 2)
            wb(16, True)
            wb(8, True)
            wb(0, True)
        else:
            wb(16)
            if o.cap >= 0: a(f's_waitcnt vmcnt({o.cap})')
            KV(sV, 7, 1)
            wb(16)
            for t in range(4): W(0, t)
            wb(24); W(1, 0)
            wb(20)
            a('s_barrier'); s.stamp(V_ST)
            W(1, 1); W(1, 2)
            wb(12); W(1, 3); W(2, 0); W(2, 1)
            wb(8); W(2, 2); W(2, 3); W(3, 0); W(3, 1)
            wb(8); W(3, 2); W(3, 3)
            wb(0)
        s.stamp_flush(V_ST)
        a('s_endpgm')

    def compute(s):
        a = s.a; o = s.o
        cs = (128 ** -0.5) * math.log2(math.e)
        import struct
        fb = lambda x: struct.unpack('<I', struct.pack('<f', x))[0]
        a.label('L_COMPUTE')
        s.srd_kv()
        a(f's_lshl_b32 s7, s{S_BLK}, 4')
        a(f's_add_u32 s7, s7, s{S_HP}')
        a('s_lshl_b32 s7, s7, 3')
        a(f's_add_u32 s7, s7, s{S_B}')
        a('s_mul_i32 s7, s7, 98304')
        s.srd(sWS, 30, 7, 98304)
        s.srd_st()
        s.jj()
        a(f's_and_b32 s{S_H}, s{S_WAVE}, 1')
        a(f's_lshr_b32 s{S_QG}, s{S_WAVE}, 1')
        a(f's_mov_b32 s{S_KVP}, s{S_B}')
        a(f'v_mov_b32 v{V_XO}, v10')
        a('v_and_b32 v1, 15, v0')
        a('v_lshrrev_b32 v2, 4, v0')
        a(f's_mul_i32 s7, s{S_QG}, 48')
        a('v_add_u32 v3, s7, v1')
        a('v_lshlrev_b32 v3, 7, v3')
        a('v_lshrrev_b32 v4, 1, v1')
        a('v_xor_b32 v4, v4, v2')
        a('v_lshlrev_b32 v4, 4, v4')
        a('v_add_u32 v3, v3, v4')
        a(f'v_add_u32 v{V_X0}, {XLDS}, v3')
        a(f'v_xor_b32 v{V_X1}, 64, v{V_X0}')
        a(f's_mov_b32 s{S_CS}, {hex(fb(cs))}')
        a(f's_mov_b32 s{S_NCS}, {hex(fb(-cs))}')
        def ffun(dst, src, tmp):
            a(f'v_and_b32 v{dst}, 7, v{src}')
            a(f'v_lshlrev_b32 v{dst}, 1, v{dst}')
            a(f'v_lshrrev_b32 v{tmp}, 3, v{src}')
            a(f'v_or_b32 v{dst}, v{dst}, v{tmp}')
        ffun(5, 1, 6)
        a('v_lshrrev_b32 v6, 1, v2')
        a('v_xor_b32 v5, v5, v6')
        a('v_lshlrev_b32 v5, 4, v5')
        a('v_lshlrev_b32 v6, 8, v1')
        a('v_add_u32 v5, v5, v6')
        a('v_and_b32 v6, 1, v2')
        a('v_lshlrev_b32 v6, 3, v6')
        a('v_add_u32 v5, v5, v6')
        a(f's_lshl_b32 s7, s{S_H}, 14')
        a(f'v_add_u32 v{V_AK}, s7, v5')
        a('v_lshrrev_b32 v7, 2, v1')
        a('v_lshlrev_b32 v8, 2, v2')
        a('v_add_u32 v8, v8, v7')
        a('v_and_b32 v9, 3, v0')
        ffun(5, 8, 6)
        a('v_lshrrev_b32 v6, 1, v9')
        a('v_xor_b32 v5, v5, v6')
        a('v_lshlrev_b32 v5, 4, v5')
        a('v_lshlrev_b32 v6, 8, v8')
        a('v_add_u32 v5, v5, v6')
        a('v_and_b32 v6, 1, v9')
        a('v_lshlrev_b32 v6, 3, v6')
        a('v_add_u32 v5, v5, v6')
        a(f's_add_u32 s18, s7, 32768')
        a(f'v_add_u32 v{V_AV}, s18, v5')
        a(f's_lshl_b32 s7, s{S_H}, 13')
        a(f'v_add_u32 v{V_AQ}, s7, v5')
        a('v_lshrrev_b32 v5, 1, v8')
        a('v_and_b32 v5, 3, v5')
        a('v_lshlrev_b32 v5, 5, v5')
        a('v_lshlrev_b32 v6, 7, v8')
        a('v_add_u32 v5, v5, v6')
        a('v_lshlrev_b32 v6, 3, v9')
        a(f'v_add_u32 v{V_AO}, v5, v6')
        for j in range(4): a(f's_mul_i32 s{S_JJ+j}, s{S_JJ+j}, 6144')
        a(f's_cmp_eq_u32 s{S_H}, 0')
        for j in range(4):
            a(f's_cselect_b32 s{S_OB+2*j}, {WSLOT[j][0]}, {WSLOT[j][3]}')
            a(f's_cselect_b32 s{S_OB+2*j+1}, {WSLOT[j][1]}, {WSLOT[j][2]}')
        for j in range(8): a(f's_lshl_b32 s{S_OB+j}, s{S_OB+j}, 14')
        def addr8(base_v, add=None):
            if add is not None:
                a(f'v_add_u32 v{V_AD}, {add}, v{base_v}')
            else:
                a(f'v_mov_b32 v{V_AD}, v{base_v}')
            for u in range(1, 8): a(f'v_xor_b32 v{V_AD+u}, {u<<5}, v{V_AD}')
        MF = 'v_mfma_f32_16x16x32_bf16'
        nt = ' nt' if o.nt else ''
        addr8(V_AQ, 65536)
        def xrd(j):
            r = []
            for kk in range(2):
                for qt in range(3):
                    r.append((('X', j, kk), f'ds_read_b128 {vr(XR(2*j+kk,qt),4)}, v{V_X1 if kk else V_X0} offset:{(j&1)*12288+qt*2048}'))
            return r
        def kv0(isv, h, m):
            return [f's_add_u32 m0, s{S_W1K}, {isv*32768 + h*16384 + m*4096}', f's_mov_b32 s{S_OFF}, {h*131072 + m*4096}',
                    f'buffer_load_dwordx4 v{V_XO}, s[{(sV if isv else sK)}:{(sV if isv else sK)+3}], s{S_OFF} offen{nt} lds']
        frags = []
        for st in range(16):
            for dt in range(8):
                def rd(buf, dt=dt, st=st):
                    return [f'ds_read_b64_tr_b16 {vr(buf,2)}, v{V_AD+dt} offset:{(st&3)*16384}',
                            f'ds_read_b64_tr_b16 {vr(buf+2,2)}, v{V_AD+dt} offset:{(st&3)*16384+4096}']
                def mm(buf, dt=dt, st=st):
                    r = []
                    for qt in range(3):
                        d = vr(QA(dt, qt), 4)
                        c = '0' if st == 0 else d
                        r.append(f'{MF} {d}, {vr(buf,4)}, {vr(XR(st,qt),4)}, {c}')
                    return r
                f = dict(rd=rd, mm=mm, post=[], xrd=[])
                if dt == 0: f['need'] = [('X', st // 2, st & 1)]
                if dt == 1 and st < 15:
                    f['bar'] = True
                    if st in (3, 7, 11): f['stamp'] = True
                frags.append(f)
        for j in range(1, 8):
            xs = xrd(j)
            for k, t in enumerate(xs): frags[8 * (2 * j - 1) + 1 + k // 2]['xrd'].append(t)
            frags[8 * (2 * j) + 1]['need'] = [('X', j, 1)]
        if o.kvstag:
            pos = [int(x) for x in o.kvstag.split(',')]
            assert len(pos) == 8
            for fr in sorted(set(pos)):
                mask = sum(1 << p for p in range(8) if pos[p] == fr)
                blk = [f's_lshr_b32 s7, {mask}, s{S_KVP}', 's_bitcmp1_b32 s7, 0', f's_cbranch_scc0 L_KVS{fr}']
                for isv in range(2):
                    for h in range(2):
                        for m in range(4): blk += kv0(isv, h, m)
                blk.append(f'L_KVS{fr}:')
                frags[fr]['post'] += blk
        else:
            k = o.kvat
            for isv in range(2):
                for h in range(2):
                    for m in range(4):
                        frags[k]['post'] += kv0(isv, h, m); k += o.kvstep
        zl = list(range(48, 96))
        for i, z in enumerate(zl): frags[24 + i]['post'].append(f'v_mov_b32 v{z}, 0')
        for i in range(24): frags[8 * 14 + 1 + (i // 2)]['post'].append(f'v_mov_b32 v{i}, 0')
        for i in range(12): frags[8 * 15 + 1 + (i // 2)]['post'].append(f'v_mov_b32 v{24+i}, 0')
        def qcvt(j):
            r = []
            for qt in range(3):
                b = QFr(j, qt)
                for i in range(4): r.append(f'v_cvt_pk_bf16_f32 v{b+i}, v{b+2*i}, v{b+2*i+1}')
            return r
        c0, c1, c2 = qcvt(0), qcvt(1), qcvt(2)
        frags[8*15+3]['post'] += c0[:6]; frags[8*15+4]['post'] += c0[6:]
        frags[8*15+5]['post'] += c1[:6]; frags[8*15+6]['post'] += c1[6:]
        frags[8*15+7]['post'] += c2[:6]
        a('s_barrier'); s.stamp(V_ST); s.dstamp(2)
        s.stream(frags, pre=xrd(0))
        for x in c2[6:]: a(x)
        for i in range(12): a(f'v_mov_b32 v{36+i}, 0')
        for qt in range(3):
            a(f'v_mov_b32 v{V_M+qt}, 0xff800000')
            a(f'v_mov_b32 v{V_L+qt}, 0')
        for x in qcvt(3): a(x)
        if s.o.lazy:
            for qt in range(3): a(f'v_mov_b32 v{V_NMC+qt}, 0x7f800000')
        s.stamp(V_ST); s.dstamp(4)
        a('s_waitcnt vmcnt(8)')
        a(f's_mov_b32 s{S_LOOP}, 8')
        a.label('L_ATT')
        addr8(V_AK)
        a('s_barrier'); s.stamp(V_ST)
        if s.o.dbg:
            a(f's_cmp_lg_u32 s{S_LOOP}, 8'); a('s_cbranch_scc1 L_DB0'); s.dstamp(5); a.label('L_DB0')
            a(f's_cmp_lg_u32 s{S_LOOP}, 4'); a('s_cbranch_scc1 L_DB1'); s.dstamp(6); a.label('L_DB1')
        frags = []
        for j in range(4):
            for kt in range(4):
                def rd(buf, j=j, kt=kt):
                    return [f'ds_read_b64 {vr(buf,2)}, v{V_AD+2*j} offset:{kt*4096}',
                            f'ds_read_b64 {vr(buf+2,2)}, v{V_AD+2*j+1} offset:{kt*4096}']
                def mm(buf, j=j, kt=kt):
                    r = []
                    for qt in range(3):
                        d = vr(SR(kt, qt), 4)
                        c = '0' if j == 0 else d
                        r.append(f'{MF} {d}, {vr(buf,4)}, {vr(QFr(j,qt),4)}, {c}')
                    return r
                frags.append(dict(rd=rd, mm=mm))
        s.stream(frags)
        addr8(V_AV)
        a(f'v_xor_b32 v{V_AK}, 65536, v{V_AK}')
        a(f'v_xor_b32 v{V_AV}, 65536, v{V_AV}')
        SQ = lambda qt: [SR(kt, qt) + i for kt in range(4) for i in range(4)]
        lazy = s.o.lazy
        MX = [V_AL + 2 * q + 1 for q in range(3)] if lazy else [V_NMC + q for q in range(3)]
        for qt in range(3):
            r = SQ(qt)
            a(f'v_max3_f32 v{MX[qt]}, v{r[0]}, v{r[1]}, v{r[2]}')
        for i in range(6):
            for qt in range(3):
                r = SQ(qt)
                a(f'v_max3_f32 v{MX[qt]}, v{MX[qt]}, v{r[3+2*i]}, v{r[4+2*i]}')
        for qt in range(3):
            r = SQ(qt)
            if lazy: a(f'v_max_f32 v{MX[qt]}, v{MX[qt]}, v{r[15]}')
            else: a(f'v_max3_f32 v{MX[qt]}, v{MX[qt]}, v{r[15]}, v{V_M+qt}')
        def rescale():
            for dt in range(8):
                for qt in range(3):
                    b = O0 + (dt * 3 + qt) * 4
                    for hh in range(2):
                        a(f'v_pk_mul_f32 {vr(b+2*hh,2)}, {vr(b+2*hh,2)}, {vr(V_AL+2*qt,2)} op_sel_hi:[1,0]')
        if lazy:
            for qt in range(3): a(f'v_fma_f32 v{V_T+qt}, v{MX[qt]}, s{S_CS}, v{V_NMC+qt}')
            a(f'v_max3_f32 v{V_T}, v{V_T}, v{V_T+1}, v{V_T+2}')
            a(f'v_cmp_lt_f32 vcc, {hex(fb(float(lazy)))}, v{V_T}')
            a('s_cbranch_vccz L_FAST')
            for qt in range(3): a(f'v_max_f32 v{MX[qt]}, v{MX[qt]}, v{V_M+qt}')
        for sw in ('v_permlane16_swap_b32', 'v_permlane32_swap_b32'):
            for qt in range(3): a(f'v_mov_b32 v{V_T+qt}, v{MX[qt]}')
            a('s_nop 0')
            for qt in range(3): a(f'{sw} v{MX[qt]}, v{V_T+qt}')
            a('s_nop 0')
            for qt in range(3): a(f'v_max_f32 v{MX[qt]}, v{MX[qt]}, v{V_T+qt}')
        for qt in range(3): a(f'v_sub_f32 v{V_T+qt}, v{V_M+qt}, v{MX[qt]}')
        for qt in range(3): a(f'v_mul_f32 v{V_T+qt}, s{S_CS}, v{V_T+qt}')
        for qt in range(3): a(f'v_exp_f32 v{V_AL+2*qt}, v{V_T+qt}')
        for qt in range(3): a(f'v_mov_b32 v{V_M+qt}, v{MX[qt]}')
        for qt in range(3): a(f'v_mul_f32 v{V_NMC+qt}, s{S_NCS}, v{MX[qt]}')
        if lazy:
            for qt in range(3): a(f'v_mul_f32 v{V_L+qt}, v{V_L+qt}, v{V_AL+2*qt}')
            rescale()
            a.label('L_FAST')
        for qt in range(3):
            r = SQ(qt)
            for i in range(0, 16, 4):
                for k in range(4): a(f'v_fma_f32 v{r[i+k]}, v{r[i+k]}, s{S_CS}, v{V_NMC+qt}')
                for k in range(4): a(f'v_exp_f32 v{r[i+k]}, v{r[i+k]}')
        if not lazy: rescale()
        TP = V_AB_T = AB
        for qt in range(3):
            r = SQ(qt)
            a(f'v_pk_add_f32 {vr(TP+2*qt,2)}, {vr(r[0],2)}, {vr(r[2],2)}')
        for i in range(2, 8):
            for qt in range(3):
                r = SQ(qt)
                a(f'v_pk_add_f32 {vr(TP+2*qt,2)}, {vr(TP+2*qt,2)}, {vr(r[2*i],2)}')
        if lazy:
            for qt in range(3): a(f'v_add_f32 v{V_L+qt}, v{V_L+qt}, v{TP+2*qt}')
        else:
            for qt in range(3): a(f'v_fma_f32 v{V_L+qt}, v{V_L+qt}, v{V_AL+2*qt}, v{TP+2*qt}')
        for qt in range(3): a(f'v_add_f32 v{V_L+qt}, v{V_L+qt}, v{TP+2*qt+1}')
        for qt in range(3):
            for kk in range(2):
                b = SR(2 * kk, qt); b2 = SR(2 * kk + 1, qt)
                a(f'v_cvt_pk_bf16_f32 v{b}, v{b}, v{b+1}')
                a(f'v_cvt_pk_bf16_f32 v{b+1}, v{b+2}, v{b+3}')
                a(f'v_cvt_pk_bf16_f32 v{b+2}, v{b2}, v{b2+1}')
                a(f'v_cvt_pk_bf16_f32 v{b+3}, v{b2+2}, v{b2+3}')
        a('s_waitcnt vmcnt(0)')
        a('s_barrier'); s.stamp(V_ST)
        frags = []
        for dt in range(8):
            for kk in range(2):
                def rd(buf, dt=dt, kk=kk):
                    return [f'ds_read_b64_tr_b16 {vr(buf,2)}, v{V_AD+dt} offset:{kk*8192}',
                            f'ds_read_b64_tr_b16 {vr(buf+2,2)}, v{V_AD+dt} offset:{kk*8192+4096}']
                def mm(buf, dt=dt, kk=kk):
                    r = []
                    for qt in range(3):
                        d = vr(O0 + (dt * 3 + qt) * 4, 4)
                        r.append(f'{MF} {d}, {vr(buf,4)}, {vr(SR(2*kk,qt),4)}, {d}')
                    return r
                frags.append(dict(rd=rd, mm=mm))
        s.stream(frags)
        a(f's_sub_u32 s{S_LOOP}, s{S_LOOP}, 1')
        a(f's_cmp_lg_u32 s{S_LOOP}, 0')
        a('s_cbranch_scc1 L_ATT')
        s.stamp(V_ST); s.dstamp(7)
        if o.o2: s.ophase2()
        else:
            for sw in ('v_permlane16_swap_b32', 'v_permlane32_swap_b32'):
                for qt in range(3): a(f'v_mov_b32 v{V_T+qt}, v{V_L+qt}')
                a('s_nop 0')
                for qt in range(3): a(f'{sw} v{V_L+qt}, v{V_T+qt}')
                a('s_nop 0')
                for qt in range(3): a(f'v_add_f32 v{V_L+qt}, v{V_L+qt}, v{V_T+qt}')
            for qt in range(3): a(f'v_rcp_f32 v{V_AL+2*qt}, v{V_L+qt}')
            a('s_nop 0')
            a('v_mbcnt_lo_u32_b32 v251, -1, 0')
            a('v_mbcnt_hi_u32_b32 v251, -1, v251')
            a('v_lshlrev_b32 v251, 4, v251')
            a(f's_mul_i32 s7, s{S_WAVE}, 12288')
            a(f's_add_u32 s7, s7, {XCH}')
            a('v_add_u32 v252, s7, v251')
            a(f's_xor_b32 s18, s{S_WAVE}, 1')
            a(f's_mul_i32 s18, s18, 12288')
            a(f's_add_u32 s18, s18, {XCH}')
            a('v_add_u32 v253, s18, v251')
            a(f's_mul_i32 s7, s{S_WAVE}, 24576')
            a(f'v_add_u32 v{V_XO}, s7, v251')
            for j in range(4):
                for qt in range(3):
                    for t in range(2):
                        b = O0 + ((2 * j + t) * 3 + qt) * 4
                        for hh in range(2):
                            a(f'v_pk_mul_f32 {vr(b+2*hh,2)}, {vr(b+2*hh,2)}, {vr(V_AL+2*qt,2)} op_sel_hi:[1,0]')
                    for t in range(2):
                        src = O0 + ((2 * j + t) * 3 + qt) * 4
                        dst = QFr(j, qt) + 2 * t
                        a(f'v_cvt_pk_bf16_f32 v{dst}, v{src}, v{src+1}')
                        a(f'v_cvt_pk_bf16_f32 v{dst+1}, v{src+2}, v{src+3}')
                    a(f'ds_write_b128 v252, {vr(QFr(j,qt),4)} offset:{(j*3+qt)*1024}')
            a('s_waitcnt lgkmcnt(0)')
            a('s_barrier'); s.stamp(V_ST); s.dstamp(8)
            for i in range(12): a(f'ds_read_b128 {vr(96+8*i+4,4)}, v253 offset:{i*1024}')
            a('s_waitcnt lgkmcnt(0)')
            stf = o.stflag
            def epi(j):
                r = []
                base = 48 * (j & 1)
                for u in range(2):
                    for qt in range(3):
                        b = base + (u * 3 + qt) * 8
                        grp = [f'v_cvt_pk_bf16_f32 v{b+i}, v{b+2*i}, v{b+2*i+1}' for i in range(4)]
                        off = (u * 3 + qt) * 1024
                        grp.append(f's_add_u32 s7, s{S_JJ+j}, {off}')
                        grp.append(f'buffer_store_dwordx4 {vr(b,4)}, v{V_XO}, s[{sWS}:{sWS+3}], s7 offen{stf}')
                        r.append(grp)
                return r
            for j in range(4):
                for half in range(2):
                    a(f'v_add_u32 v{V_AD+4*half}, s{S_OB+2*j+half}, v{V_AO}')
                    for nt_ in range(1, 4): a(f'v_xor_b32 v{V_AD+4*half+nt_}, {nt_<<5}, v{V_AD+4*half}')
                a('s_barrier'); s.stamp(V_ST); s.dstamp(9 + j)
                base = 48 * (j & 1)
                frags = []
                for half in range(2):
                    for jj in range(4):
                        for nt_ in range(4):
                            def rd(buf, half=half, jj=jj, nt_=nt_):
                                return [f'ds_read_b64_tr_b16 {vr(buf,2)}, v{V_AD+4*half+nt_} offset:{jj*4096}',
                                        f'ds_read_b64_tr_b16 {vr(buf+2,2)}, v{V_AD+4*half+nt_} offset:{jj*4096+2048}']
                            def mm(buf, half=half, jj=jj, nt_=nt_):
                                r = []
                                for qt in range(3):
                                    d = vr(base + ((nt_ >> 1) * 3 + qt) * 8 + (nt_ & 1) * 4, 4)
                                    c = '0' if (half == 0 and jj == 0) else d
                                    bsrc = QFr(jj, qt) + 4 * half
                                    r.append(f'{MF} {d}, {vr(buf,4)}, {vr(bsrc,4)}, {c}')
                                return r
                            frags.append(dict(rd=rd, mm=mm))
                if j > 0:
                    for k, grp in enumerate(epi(j - 1)):
                        frags[3 + 4 * k]['post'] = grp
                s.stream(frags)
            s.stamp(V_ST)
            a('s_nop 7')
            for grp in epi(3):
                for x in grp: a(x)
        s.stamp(V_ST); s.dstamp(13)
        if s.o.dbg:
            a('s_waitcnt vmcnt(0)'); s.dstamp(14)
        s.dflush()
        s.stamp_flush(V_ST)
        a('s_endpgm')


    def ophase2(s):
        a = s.a; o = s.o
        MF = 'v_mfma_f32_16x16x32_bf16'
        stf = o.stflag
        a('s_barrier'); s.stamp(V_ST)
        def aset(hs):
            st_ = V_AD + 4 * (hs & 1)
            return [f'v_add_u32 v{st_}, s{S_OB+hs}, v{V_AO}'] + [f'v_xor_b32 v{st_+k}, {k<<5}, v{st_}' for k in range(1, 4)]
        for x in aset(0) + aset(1): a(x)
        mid = []
        for sw in ('v_permlane16_swap_b32', 'v_permlane32_swap_b32'):
            for qt in range(3): mid.append(f'v_mov_b32 v{V_T+qt}, v{V_L+qt}')
            mid.append('s_nop 0')
            for qt in range(3): mid.append(f'{sw} v{V_L+qt}, v{V_T+qt}')
            mid.append('s_nop 0')
            for qt in range(3): mid.append(f'v_add_f32 v{V_L+qt}, v{V_L+qt}, v{V_T+qt}')
        for qt in range(3): mid.append(f'v_rcp_f32 v{V_AL+2*qt}, v{V_L+qt}')
        mid += ['v_mbcnt_lo_u32_b32 v251, -1, 0', 'v_mbcnt_hi_u32_b32 v251, -1, v251', 'v_lshlrev_b32 v251, 4, v251',
                f's_mul_i32 s7, s{S_WAVE}, 12288', f's_add_u32 s7, s7, {XCH}', 'v_add_u32 v252, s7, v251',
                f's_xor_b32 s18, s{S_WAVE}, 1', 's_mul_i32 s18, s18, 12288', f's_add_u32 s18, s18, {XCH}', 'v_add_u32 v253, s18, v251',
                f's_mul_i32 s7, s{S_WAVE}, 24576', f'v_add_u32 v{V_XO}, s7, v251']
        def grp(j):
            r = []
            for qt in range(3):
                for t in range(2):
                    b = O0 + ((2 * j + t) * 3 + qt) * 4
                    for hh in range(2):
                        r.append(f'v_pk_mul_f32 {vr(b+2*hh,2)}, {vr(b+2*hh,2)}, {vr(V_AL+2*qt,2)} op_sel_hi:[1,0]')
                for t in range(2):
                    src = O0 + ((2 * j + t) * 3 + qt) * 4
                    dst = QFr(j, qt) + 2 * t
                    r.append(f'v_cvt_pk_bf16_f32 v{dst}, v{src}, v{src+1}')
                    r.append(f'v_cvt_pk_bf16_f32 v{dst+1}, v{src+2}, v{src+3}')
            return r
        def xw(j): return [(('XW', j, qt), f'ds_write_b128 v252, {vr(QFr(j,qt),4)} offset:{(j*3+qt)*1024}') for qt in range(3)]
        mid += grp(0) + grp(1) + ['s_nop 1']
        L = grp(2) + xw(0) + xw(1) + xw(2) + grp(3) + xw(3)
        assert len(L) == 60
        def epi(j, us=(0, 1)):
            r = []
            base = 48 * (j & 1)
            for u in us:
                for qt in range(3):
                    b = base + (u * 3 + qt) * 8
                    r += [f'v_cvt_pk_bf16_f32 v{b+i}, v{b+2*i}, v{b+2*i+1}' for i in range(4)]
                    r.append(f's_add_u32 s7, s{S_JJ+j}, {(u * 3 + qt) * 1024}')
                    r.append(f'buffer_store_dwordx4 {vr(b,4)}, v{V_XO}, s[{sWS}:{sWS+3}], s7 offen{stf}')
            return r
        frags = []
        for hs in range(8):
            j, half = hs >> 1, hs & 1
            base = 48 * (j & 1)
            order = [(jj, n_) for jj in range(4) for n_ in range(4)]
            if hs == 7: order = [(jj, n_) for n_ in range(4) for jj in range(4)]
            for jj, nt_ in order:
                def rd(buf, half=half, jj=jj, nt_=nt_):
                    return [f'ds_read_b64_tr_b16 {vr(buf,2)}, v{V_AD+4*half+nt_} offset:{jj*4096}',
                            f'ds_read_b64_tr_b16 {vr(buf+2,2)}, v{V_AD+4*half+nt_} offset:{jj*4096+2048}']
                def mm(buf, half=half, jj=jj, nt_=nt_, base=base):
                    r = []
                    for qt in range(3):
                        d = vr(base + ((nt_ >> 1) * 3 + qt) * 8 + (nt_ & 1) * 4, 4)
                        c = '0' if (half == 0 and jj == 0) else d
                        r.append(f'{MF} {d}, {vr(buf,4)}, {vr(QFr(jj, qt) + 4 * half,4)}, {c}')
                    return r
                frags.append(dict(rd=rd, mm=mm, ext=[], need=[]))
        for i in range(10): frags[i]['ext'] += L[6 * i:6 * i + 6]
        for i in (9, 11, 18, 25, 41, 57, 73, 89, 105):
            frags[i]['bar'] = True
            if i in (25, 57, 89): frags[i]['stamp'] = True
        frags[11]['need'] += [('XW', j, qt) for j in range(4) for qt in range(3)]
        for j in range(4):
            frags[11 + j]['ext'] += [(('XR', j, qt), f'ds_read_b128 {vr(QFr(j,qt)+4,4)}, v253 offset:{(j*3+qt)*1024}') for qt in range(3)]
            frags[16 + 4 * j]['need'] += [('XR', j, qt) for qt in range(3)]
        frags[18]['need'] += [('XR', j, qt) for j in range(4) for qt in range(3)]
        for hs in range(2, 8): frags[16 * hs - 12]['ext'] += aset(hs)
        for j in range(3):
            e = epi(j)
            for k in range(12): frags[32 * (j + 1) + 5 + k]['ext'] += e[3 * k:3 * k + 3]
        e = epi(3, (0,))
        for k in range(6): frags[122 + k]['ext'] += e[3 * k:3 * k + 3]
        s.stream(frags, mid=mid)
        s.stamp(V_ST)
        a('s_nop 7')
        for x in epi(3, (1,)): a(x)

    def reduce(s):
        a = s.a; o = s.o
        a.raw('.p2align 8'); a.raw('.type red_kernel,@function'); a.label('red_kernel')
        a('s_cmp_ge_u32 s2, 24')
        a('s_cbranch_scc1 L_REND')
        a('s_load_dwordx2 s[4:5], s[0:1], 80')
        a('s_load_dwordx2 s[6:7], s[0:1], 96')
        a('v_lshrrev_b32 v1, 6, v0')
        a('v_and_b32 v0, 63, v0')
        a('v_readfirstlane_b32 s8, v1')
        a('s_nop 3')
        if o.dbg:
            a('s_load_dwordx2 s[32:33], s[0:1], 88')
            a('s_memrealtime s[34:35]')
            a('s_or_b32 s9, s2, s3'); a('s_or_b32 s9, s9, s8')
            a('s_cmp_lg_u32 s9, 0')
            a('s_cbranch_scc1 L_RNODBG')
            a('s_waitcnt lgkmcnt(0)')
            a('s_add_u32 s40, s6, 0x2000000'); a('s_addc_u32 s41, s7, 0'); a('s_mov_b32 s42, 0x100000'); a('s_mov_b32 s43, 0x00020000')
            a('s_mov_b32 s44, s32'); a('s_mov_b32 s45, s33'); a('s_mov_b32 s46, 256'); a('s_mov_b32 s47, 0x00020000')
            a('v_lshlrev_b32 v90, 8, v0')
            for k in range(4):
                a(f's_mov_b32 s9, {k*16384}')
                a(f'buffer_load_dwordx2 v[{92+2*k}:{93+2*k}], v90, s[40:43], s9 offen')
            a('v_lshlrev_b32 v91, 2, v0')
            a(f's_mov_b32 s9, {o.dbgwg*256}')
            a('buffer_load_dword v100, v91, s[40:43], s9 offen')
            a('s_waitcnt vmcnt(0)')
            a('v_min_u32 v92, v92, v94'); a('v_min_u32 v96, v96, v98'); a('v_min_u32 v102, v92, v96')
            a('v_max_u32 v93, v93, v95'); a('v_max_u32 v97, v97, v99'); a('v_max_u32 v103, v93, v97')
            a('v_readlane_b32 s36, v102, 0'); a('v_readlane_b32 s37, v103, 0')
            for l in range(1, 64):
                a(f'v_readlane_b32 s38, v102, {l}'); a(f'v_readlane_b32 s39, v103, {l}')
                a('s_min_u32 s36, s36, s38'); a('s_max_u32 s37, s37, s39')
            a('s_sub_u32 s38, s37, s36'); a('s_sub_u32 s39, s34, s37')
            a('v_writelane_b32 v100, s38, 0'); a('v_writelane_b32 v100, s39, 1')
            a('v_cmp_gt_u32 vcc, 16, v0'); a('s_and_saveexec_b64 s[48:49], vcc')
            a('buffer_store_dword v100, v91, s[44:47], 0 offen')
            a('s_mov_b64 exec, s[48:49]')
            a.label('L_RNODBG')
        a('s_lshl_b32 s9, s2, 2')
        a('s_add_u32 s8, s8, s9')
        a('s_lshr_b32 s10, s3, 3')
        a('s_and_b32 s11, s3, 7')
        a('s_lshl_b32 s12, s10, 7')
        a('s_add_u32 s12, s12, s11')
        a('s_mul_i32 s12, s12, 98304')
        a('s_lshl_b32 s13, s8, 10')
        a('s_add_u32 s12, s12, s13')
        a('v_lshlrev_b32 v1, 4, v0')
        a('s_waitcnt lgkmcnt(0)')
        a('s_add_u32 s16, s6, s12')
        a('s_addc_u32 s17, s7, 0')
        a(f's_mov_b32 s18, {15*786432+1024}')
        a('s_mov_b32 s19, 0x00020000')
        a('s_mov_b32 s14, 0')
        for hp in range(16):
            a(f'buffer_load_dwordx4 {vr(8+4*hp,4)}, v1, s[16:19], s14 offen{o.ldflag}')
            if hp < 15: a('s_add_u32 s14, s14, 786432')
        a('s_mul_i32 s20, s8, 43')
        a('s_lshr_b32 s20, s20, 8')
        a('s_mul_i32 s21, s20, 6')
        a('s_sub_u32 s21, s8, s21')
        a('s_cmp_ge_u32 s21, 3')
        a('s_cselect_b32 s22, 1, 0')
        a('s_mul_i32 s23, s22, 3')
        a('s_sub_u32 s23, s21, s23')
        a('s_lshr_b32 s24, s20, 2')
        a('s_and_b32 s25, s20, 3')
        a('s_and_b32 s26, s24, 1')
        a('s_lshr_b32 s27, s24, 1')
        a('s_mul_i32 s28, s11, 96')
        a('s_mul_i32 s29, s27, 48')
        a('s_add_u32 s28, s28, s29')
        a('s_lshl_b32 s29, s23, 4')
        a('s_add_u32 s28, s28, s29')
        a('s_lshl_b32 s28, s28, 11')
        a('s_lshl_b32 s29, s10, 10')
        a('s_add_u32 s28, s28, s29')
        a('s_lshl_b32 s29, s26, 9')
        a('s_add_u32 s28, s28, s29')
        a('s_lshl_b32 s29, s25, 7')
        a('s_add_u32 s28, s28, s29')
        a('s_lshl_b32 s29, s22, 6')
        a('s_add_u32 s28, s28, s29')
        a('v_and_b32 v2, 15, v0')
        a('v_lshlrev_b32 v2, 11, v2')
        a('v_lshrrev_b32 v3, 4, v0')
        a('v_and_b32 v4, 1, v3')
        a('v_lshlrev_b32 v4, 5, v4')
        a('v_lshrrev_b32 v3, 1, v3')
        a('v_lshlrev_b32 v3, 4, v3')
        a('v_add_u32 v2, v2, v3')
        a('v_add_u32 v2, v2, v4')
        a('v_add_u32 v2, s28, v2')
        a('s_mov_b32 s8, s4')
        a('s_mov_b32 s9, s5')
        a(f's_mov_b32 s10, {8*96*1024*2}')
        a('s_mov_b32 s11, 0x00020000')
        a('s_mov_b32 s30, 0xffff0000')
        for hp in range(16):
            a(f's_waitcnt vmcnt({15-hp})')
            b = 8 + 4 * hp
            for i in range(4):
                if hp == 0:
                    a(f'v_lshlrev_b32 v{72+2*i}, 16, v{b+i}')
                    a(f'v_and_b32 v{73+2*i}, s30, v{b+i}')
                else:
                    a(f'v_lshlrev_b32 v4, 16, v{b+i}')
                    a(f'v_and_b32 v5, s30, v{b+i}')
                    a(f'v_pk_add_f32 {vr(72+2*i,2)}, {vr(72+2*i,2)}, v[4:5]')
        for i in range(4): a(f'v_cvt_pk_bf16_f32 v{80+i}, v{72+2*i}, v{73+2*i}')
        a('s_nop 1')
        a('v_permlane16_swap_b32 v80, v82')
        a('v_permlane16_swap_b32 v81, v83')
        a('s_nop 1')
        a('buffer_store_dwordx4 v[80:83], v2, s[8:11], 0 offen')
        a.label('L_REND')
        a('s_endpgm')

    def build(s):
        a = s.a; o = s.o
        kn = o.kname
        hdr = open('cdna_kernels/' + NAME + '.s.ref').read().split('\n')
        for ln in hdr:
            if ln.startswith('; @launch'): break
            a.raw(ln)
        for ch in o.list:
            if ch == 'm': a.raw(f'; @launch kernel={kn} grid=(256,1,1) block=(512,1,1) lds=163840')
            if ch == 'r': a.raw(f'; @launch kernel=red_kernel grid=(24,16,1) block=(256,1,1) lds=0')
            if ch == 'n': a.raw(f'; @launch kernel=nop_kernel grid=(256,1,1) block=(64,1,1) lds=0')
        a.raw('.amdgcn_target "amdgcn-amd-amdhsa--gfx950"')
        a.raw('.text')
        a.raw(f'.globl {kn}'); a.raw('.p2align 8'); a.raw(f'.type {kn},@function'); a.label(kn)
        s.prologue()
        s.loader()
        s.compute()
        a.label('L_END'); a('s_endpgm')
        a.raw('.globl red_kernel')
        s.reduce()
        kl = [(kn, 256, 0), ('red_kernel', 104 if o.dbg else 88, 1)]
        if 'n' in o.list:
            a.raw('.globl nop_kernel'); a.raw('.p2align 8'); a.raw('.type nop_kernel,@function'); a.label('nop_kernel'); a('s_endpgm')
            kl.append(('nop_kernel', 8, 0))
        a.raw('.section .rodata,"a"')
        for k, nv, y in kl:
            a.raw('.p2align 6')
            a.raw(f'.amdhsa_kernel {k}')
            a.raw(f'  .amdhsa_next_free_vgpr {nv}')
            a.raw('  .amdhsa_next_free_sgpr 102')
            a.raw(f'  .amdhsa_accum_offset {nv}')
            a.raw('  .amdhsa_group_segment_fixed_size 0')
            a.raw('  .amdhsa_kernarg_size 104')
            a.raw('  .amdhsa_user_sgpr_count 2')
            a.raw('  .amdhsa_user_sgpr_kernarg_segment_ptr 1')
            a.raw('  .amdhsa_system_sgpr_workgroup_id_x 1')
            if y: a.raw('  .amdhsa_system_sgpr_workgroup_id_y 1')
            a.raw('.end_amdhsa_kernel')
        return a.text()

if __name__ == '__main__':
    p = argparse.ArgumentParser()
    p.add_argument('-o', default='cdna_kernels/' + NAME + '.s')
    p.add_argument('--kname', default=NAME + '_kernel')
    p.add_argument('--stamps', action='store_true')
    p.add_argument('--lazy', type=float, default=0)
    p.add_argument('--nt', action='store_true')
    p.add_argument('--list', default='mr')
    p.add_argument('--fine', action='store_true')
    p.add_argument('--dbg', action='store_true')
    p.add_argument('--dbgwg', type=int, default=37)
    p.add_argument('--tlb', type=int, default=0)
    p.add_argument('--lprio', type=int, default=0)
    p.add_argument('--rot', type=int, default=1)
    p.add_argument('--init4', action='store_true')
    p.add_argument('--kvstag', default='')
    p.add_argument('--kvat', type=int, default=0)
    p.add_argument('--kvstep', type=int, default=1)
    p.add_argument('--cap', type=int, default=-1)
    p.add_argument('--o2', action='store_true')
    p.add_argument('--ldst', action='store_true')
    p.add_argument('--stflag', default='')
    p.add_argument('--ldflag', default='')
    o = p.parse_args()
    if o.o2:
        WSLOT = [[8, 0, 1, 9], [2, 7, 3, 6], [4, 8, 9, 5], [0, 2, 6, 1]]
    if o.stflag: o.stflag = ' ' + o.stflag
    if o.ldflag: o.ldflag = ' ' + o.ldflag
    open(o.o, 'w').write(Gen(o).build())
```

```python
import sys, math, argparse

NAME = 'concat_heads__mha_block_cached__gqa_block_cached__near_ridge'

class Asm:
    def __init__(s): s.l = []
    def __call__(s, x):
        for y in x.split('\n'):
            y = y.strip()
            if y: s.l.append(y if y.endswith(':') else '    ' + y)
    def label(s, x): s.l.append(x + ':')
    def raw(s, x): s.l.append(x)
    def text(s): return '\n'.join(s.l) + '\n'

def vr(b, n=1):
    return f'v{b}' if n == 1 else f'v[{b}:{b+n-1}]'
def sr(b, n=1):
    return f's{b}' if n == 1 else f's[{b}:{b+n-1}]'

sX, sK, sV, sWQ, sWO, sWS, sST = 36, 40, 44, 48, 52, 56, 92
S_WAVE, S_BLK, S_HP, S_B = 3, 4, 5, 6
S_16K, S_32K, S_CS, S_NCS, S_LOOP, S_H, S_QG = 60, 61, 62, 63, 64, 65, 66
S_OB = 68
S_OFF, S_C, S_M0B, S_W1K = 76, 77, 78, 79
S_IDX = 80
O0, AB = 0, 192
QFr = lambda j, qt: 96 + (j * 3 + qt) * 8
SR = lambda kt, qt: 96 + (kt * 3 + qt) * 8 + 4
QA = lambda dt, qt: 96 + ((dt >> 1) * 3 + qt) * 8 + (dt & 1) * 4
XR = lambda ks, qt: ((ks >> 1) & 1) * 24 + (ks & 1) * 12 + qt * 4
XLDS = 131072
S_R2, S_T = 81, 82
S_XW, S_KVP = 88, 89
S_JJ = 84
V_X0, V_X1 = 251, 252
V_AK, V_AV, V_AQ, V_AO = 224, 225, 226, 227
V_AD = 228
V_M, V_L, V_AL, V_NMC, V_T = 236, 239, 242, 248, 251
V_ST, V_XO = 254, 255
NB = 8

SLOT = lambda i: i * 16384
QSLOT = [65536, 98304, 131072, 0, 32768, 65536, 98304, 131072]
WSLOT = [[8, 9, 0, 1], [2, 6, 7, 3], [4, 5, 8, 9], [0, 1, 2, 6]]
XCH = 49152

class Gen:
    def __init__(s, opt):
        s.o = opt
        s.a = Asm()

    def dstamp(s, idx):
        if not s.o.dbg: return
        a = s.a
        a('s_memtime s[98:99]')
        a('s_waitcnt lgkmcnt(0)')
        a('s_sub_u32 s98, s98, s97')
        a(f'v_writelane_b32 v{V_ST}, s98, {idx}')

    def dflush(s):
        if not s.o.dbg: return
        a = s.a
        a('s_memrealtime s[98:99]')
        a('s_waitcnt lgkmcnt(0)')
        a(f'v_writelane_b32 v{V_ST}, s98, 1')
        a(f'v_writelane_b32 v{V_ST}, s96, 0')
        a(f's_cmp_lg_u32 s{S_WAVE}, 0')
        a('s_cbranch_scc1 L_DBG_SKIP')
        a('v_mbcnt_lo_u32_b32 v4, -1, 0')
        a('v_mbcnt_hi_u32_b32 v4, -1, v4')
        a('v_lshlrev_b32 v1, 2, v4')
        a('s_lshl_b32 s7, s2, 8')
        a(f'buffer_store_dword v{V_ST}, v1, s[{sST}:{sST+3}], s7 offen')
        a.label('L_DBG_SKIP')
        a('s_waitcnt vmcnt(0)')

    def stamp(s, vst):
        if not s.o.stamps: return
        a = s.a
        a('s_memtime s[98:99]')
        a('s_waitcnt lgkmcnt(0)')
        a(f's_mov_b32 m0, s{S_IDX}')
        a(f's_add_u32 s{S_IDX}, s{S_IDX}, 1')
        a(f'v_writelane_b32 v{vst}, s98, m0')

    def stamp_flush(s, vst):
        if not s.o.stamps: return
        a = s.a
        a('s_memrealtime s[98:99]')
        a('s_waitcnt lgkmcnt(0)')
        a(f's_mov_b32 m0, 63')
        a('s_nop 0')
        a(f'v_writelane_b32 v{vst}, s98, m0')
        a(f'v_mbcnt_lo_u32_b32 v1, -1, 0')
        a(f'v_mbcnt_hi_u32_b32 v1, -1, v1')
        a(f'v_lshlrev_b32 v1, 2, v1')
        a(f's_lshl_b32 s7, s2, 3')
        a(f's_add_u32 s7, s7, s{S_WAVE}')
        a(f's_lshl_b32 s7, s7, 8')
        a(f'buffer_store_dword v{vst}, v1, s[{sST}:{sST+3}], s7 offen')
        a('s_waitcnt vmcnt(0)')

    def stream(s, frags, nb=NB, pre=(), prebar=False, mid=()):
        a = s.a
        n = len(frags)
        buf = lambda i: AB + 4 * (i % nb)
        issued = []
        done = [0]
        def iss(tag, ins):
            a(ins); issued.append(tag)
        def wait(tags, vm=None):
            idx = max([k for k, t in enumerate(issued) if t in tags], default=-1)
            for t in tags: assert t in issued, t
            cnt = len(issued) - 1 - idx
            w = []
            if vm is not None: w.append(f'vmcnt({vm})')
            if idx + 1 > done[0]:
                c = min(cnt, 15)
                w.append(f'lgkmcnt({c})')
                done[0] = len(issued) - c
            if w: a('s_waitcnt ' + ' '.join(w))
        for tag, ins in pre: iss(tag, ins)
        for i in range(min(nb - 1, n)):
            for x in frags[i]['rd'](buf(i)): iss(('A', i), x)
        for x in mid: a(x)
        for i, f in enumerate(frags):
            wait([('A', i)] + list(f.get('need', [])), f.get('pre_vm'))
            if f.get('bar'):
                a('s_barrier')
                if f.get('stamp'):
                    s.stamp(V_ST); done[0] = len(issued) if s.o.stamps else done[0]
            mm = f['mm'](buf(i))
            nx = [(('A', i + nb - 1), x) for x in frags[i + nb - 1]['rd'](buf(i + nb - 1))] if i + nb - 1 < n else []
            nx = nx + list(f.get('xrd', []))
            if 'ext' in f:
                ext = list(f['ext'])
                sh = [[], [], []]
                for k, t_ in enumerate(nx): sh[min(k, 2)].append(t_)
                k = 0
                while ext:
                    cap = 3 if k < 2 else 99
                    while ext and len(sh[k]) < cap: sh[k].append(ext.pop(0))
                    k += 1
                for k, m in enumerate(mm):
                    a(m)
                    for e in sh[k]:
                        if isinstance(e, tuple): iss(*e)
                        else: a(e)
                for x in f.get('post', []): a(x)
                continue
            for k, m in enumerate(mm):
                a(m)
                if k < len(nx): iss(*nx[k])
            for t in nx[len(mm):]: iss(*t)
            for x in f.get('post', []): a(x)

    def srd(s, d, pb, offreg, nrec):
        a = s.a
        a(f's_add_u32 s{d}, s{pb}, s{offreg}')
        a(f's_addc_u32 s{d+1}, s{pb+1}, 0')
        if isinstance(nrec, int): a(f's_mov_b32 s{d+2}, {nrec}')
        else: a(nrec)
        a(f's_mov_b32 s{d+3}, 0x00020000')

    def srd_kv(s):
        a = s.a
        a(f's_lshl_b32 s7, s{S_B}, 22')
        a(f's_lshl_b32 s18, s{S_HP}, 18')
        a('s_add_u32 s7, s7, s18')
        s.srd(sK, 10, 7, 262144)
        s.srd(sV, 12, 7, 262144)

    def srd_st(s):
        if s.o.stamps or s.o.dbg:
            s.a('s_mov_b32 s7, 0x2000000')
            s.srd(sST, 30, 7, 1 << 20)

    def jj(s):
        a = s.a
        for j in range(4):
            if s.o.rot:
                a(f's_add_u32 s7, s{S_B}, {j}')
                a(f's_and_b32 s{S_JJ+j}, s7, 3')
            else: a(f's_mov_b32 s{S_JJ+j}, {j}')

    def prologue(s):
        a = s.a
        a('s_cmp_ge_u32 s2, 256')
        a('s_cbranch_scc1 L_END')
        a('s_load_dwordx8 s[8:15], s[0:1], 0')
        a('s_load_dwordx8 s[20:27], s[0:1], 40')
        a('s_load_dwordx2 s[16:17], s[0:1], 32')
        a('s_load_dwordx2 s[28:29], s[0:1], 72')
        a('s_load_dwordx2 s[30:31], s[0:1], 96')
        if s.o.dbg:
            a('s_memrealtime s[96:97]')
            a('s_memtime s[98:99]')
            a('s_waitcnt lgkmcnt(0)')
            a('s_mov_b32 s97, s98')
            a(f'v_mov_b32 v{V_ST}, 0')
        a('s_and_b32 s7, s2, 7')
        a('s_lshr_b32 s18, s2, 3')
        a('s_lshr_b32 s19, s18, 3')
        if s.o.map == 0:
            a('s_lshl_b32 s7, s7, 2')
            a('s_add_u32 s7, s7, s19')
            a(f's_lshr_b32 s{S_BLK}, s7, 4')
            a(f's_and_b32 s{S_HP}, s7, 15')
        elif s.o.map == 1:
            a('s_lshl_b32 s7, s7, 1')
            a(f's_lshr_b32 s{S_BLK}, s19, 1')
            a('s_and_b32 s19, s19, 1')
            a(f's_add_u32 s{S_HP}, s7, s19')
        elif s.o.map == 2:
            a('s_lshl_b32 s7, s7, 1')
            a(f's_and_b32 s{S_BLK}, s19, 1')
            a('s_lshr_b32 s19, s19, 1')
            a(f's_add_u32 s{S_HP}, s7, s19')
        a(f's_and_b32 s{S_B}, s18, 7')
        a('v_lshrrev_b32 v1, 6, v0')
        a('v_and_b32 v0, 63, v0')
        a(f'v_readfirstlane_b32 s{S_WAVE}, v1')
        if s.o.stamps:
            a(f's_mov_b32 s{S_IDX}, 0')
            a(f'v_mov_b32 v{V_ST}, 0')
            a('s_memrealtime s[98:99]')
            a('s_waitcnt lgkmcnt(0)')
            a('s_mov_b32 m0, 62')
            a('s_nop 0')
            a(f'v_writelane_b32 v{V_ST}, s98, m0')
            s.stamp(V_ST)
        a(f's_and_b32 s7, s{S_HP}, 3')
        a('s_lshl_b32 s7, s7, 1')
        if s.o.rot == 2:
            a(f's_lshr_b32 s18, s{S_B}, 1')
            a('s_lshl_b32 s18, s18, 1')
            a('s_add_u32 s7, s7, s18')
        elif s.o.rot == 3:
            a(f's_and_b32 s7, s{S_HP}, 2')
            a('s_lshl_b32 s7, s7, 1')
            a(f's_and_b32 s18, s{S_B}, 6')
            a('s_add_u32 s7, s7, s18')
        elif s.o.rot == 5:
            a(f's_and_b32 s7, s{S_B}, 6')
        else:
            a(f's_add_u32 s7, s7, s{S_B}')
        a(f's_and_b32 s{S_R2}, s7, {7 if s.o.rot else 0}')
        a(f's_and_b32 s7, s{S_WAVE}, 3')
        a(f's_lshl_b32 s{S_W1K}, s7, 10')
        a('v_lshrrev_b32 v1, 4, v0')
        a('v_and_b32 v2, 15, v0')
        a('s_lshl_b32 s18, s7, 2')
        a('v_add_u32 v3, s18, v1')
        a('v_and_b32 v4, 7, v3')
        a('v_lshlrev_b32 v4, 1, v4')
        a('v_lshrrev_b32 v5, 3, v3')
        a('v_or_b32 v4, v4, v5')
        a('v_xor_b32 v5, v2, v4')
        a('v_lshlrev_b32 v5, 4, v5')
        a(f'v_lshlrev_b32 v6, 8, v3')
        a(f'v_add_u32 v10, v6, v5')
        a('v_lshrrev_b32 v6, 3, v0')
        a('v_lshlrev_b32 v6, 10, v6')
        a('v_and_b32 v7, 7, v0')
        a('v_xor_b32 v7, v7, v1')
        a('v_lshlrev_b32 v7, 4, v7')
        a('v_add_u32 v6, v6, v7')
        a('s_mul_i32 s18, s7, 24576')
        a('v_add_u32 v6, s18, v6')
        a('s_and_b32 s18, s7, 1')
        a('s_lshl_b32 s18, s18, 6')
        a(f'v_xor_b32 v13, s18, v6')
        a(f'v_xor_b32 v14, 64, v13')
        a(f's_mul_i32 s{S_XW}, s7, 3072')
        a(f's_add_u32 s{S_XW}, s{S_XW}, {XLDS}')
        a('s_lshl_b32 s18, s7, 3')
        a('v_add_u32 v6, s18, v1')
        a('v_lshlrev_b32 v6, 13, v6')
        a(f'v_add_u32 v11, v6, v5')
        a(f's_mul_i32 s19, s{S_B}, 98304')
        a(f's_lshl_b32 s18, s{S_HP}, 9')
        a(f's_cmp_eq_u32 s{S_BLK}, 0')
        a('s_waitcnt lgkmcnt(0)')
        for i in range(8): a(f's_cselect_b32 s{8+i}, s{8+i}, s{20+i}')
        a('s_cselect_b32 s16, s16, s28')
        a('s_cselect_b32 s17, s17, s29')
        s.srd(sX, 8, 19, 98304)
        s.srd(sWQ, 14, 18, f's_sub_u32 s{sWQ+2}, 4194304, s18')
        a(f's_cmp_lt_u32 s{S_WAVE}, 4')
        a('s_cbranch_scc1 L_COMPUTE')

    def loader(s):
        a = s.a; o = s.o
        nt = ' nt' if o.nt else ''
        if o.lprio: a(f's_setprio {o.lprio}')
        VKV, VWQ, VWO, VXA, VXB = 10, 11, 12, 13, 14
        cnt = [0]
        mark = {}
        def piece(m0expr, offexpr, voff, srd, flag=''):
            a(m0expr); a(offexpr)
            a(f'buffer_load_dwordx4 v{voff}, s[{srd}:{srd+3}], s{S_OFF} offen{flag} lds')
            cnt[0] += 1
        def X(j):
            a(f's_add_u32 s{S_T}, s{S_R2}, {j}')
            a(f's_and_b32 s{S_T}, s{S_T}, 7')
            a(f's_lshl_b32 s{S_T}, s{S_T}, 7')
            for u in range(3):
                piece(f's_add_u32 m0, s{S_XW}, {(j&1)*12288 + u*1024}', f's_add_u32 s{S_OFF}, s{S_T}, {u*8192}', VXB if u == 1 else VXA, sX)
            mark[('X', j)] = cnt[0]
        def WQ(st):
            a(f's_lshl_b32 s{S_T}, s{S_R2}, 1')
            a(f's_add_u32 s{S_T}, s{S_T}, {st}')
            a(f's_and_b32 s{S_T}, s{S_T}, 15')
            a(f's_lshl_b32 s{S_T}, s{S_T}, 18')
            for aa in range(2):
                for h in range(2):
                    m0 = 65536 + (st & 3) * 16384 + h * 8192 + aa * 4096
                    piece(f's_add_u32 m0, s{S_W1K}, {m0}', f's_add_u32 s{S_OFF}, s{S_T}, {aa*32768 + h*256}', VWQ, sWQ)
            mark[('W', st)] = cnt[0]
        def KV(srd, c, isv, hs=(0, 1)):
            for h in hs:
                for m in range(4):
                    m0 = (c & 1) * 65536 + isv * 32768 + h * 16384 + m * 4096
                    off = h * 131072 + c * 16384 + m * 4096
                    piece(f's_add_u32 m0, s{S_W1K}, {m0}', f's_mov_b32 s{S_OFF}, {off}', VKV, srd, nt)
        def KVdyn(srd, isv):
            for h in range(2):
                for m in range(4):
                    m0 = isv * 32768 + h * 16384 + m * 4096
                    off = h * 131072 + m * 4096
                    piece(f's_add_u32 m0, s{S_M0B}, {m0}', f's_add_u32 s{S_OFF}, s{S_C}, {off}', VKV, srd, nt)
        VLA = 16
        VKV2, VWQ2 = 18, 19
        SBUF = [32, 96, 160]
        ALLP = [(h, m, z) for h in range(2) for m in range(4) for z in range(2)]
        def STG(buf, srd, c, pcs, tag):
            for (h, m, z) in pcs:
                a(f's_mov_b32 s{S_OFF}, {h * 131072 + c * 16384 + m * 4096}')
                a(f'buffer_load_dwordx4 {vr(buf + 4 * (8 * h + 2 * m + z), 4)}, v{VKV2 if z == 0 else VKV}, s[{srd}:{srd+3}], s{S_OFF} offen{nt}')
                cnt[0] += 1
                mark[tag] = cnt[0]
        def STW(buf, c, isv, tag, hs=(0, 1)):
            a(f's_waitcnt vmcnt({cnt[0] - mark[tag]})')
            for h in hs:
                for m in range(4):
                    for z in range(2):
                        a(f'ds_write_b128 v{VLA + (c & 1)}, {vr(buf + 4 * (8 * h + 2 * m + z), 4)} offset:{isv * 32768 + h * 16384 + m * 4096 + z * 2048}')
            a('s_waitcnt lgkmcnt(0)')
        def X2(j):
            a(f's_add_u32 s{S_T}, s{S_R2}, {j}')
            a(f's_and_b32 s{S_T}, s{S_T}, 7')
            a(f's_lshl_b32 s{S_T}, s{S_T}, 7')
            for z in range(2):
                for u in range(3):
                    piece(f's_add_u32 m0, s{S_XW}, {(j&1)*12288 + u*1024 + z*6144}', f's_add_u32 s{S_OFF}, s{S_T}, {u*8192 + z*49152}', VXB if u == 1 else VXA, sX)
            mark[('X', j)] = cnt[0]
        def WQ2(st):
            a(f's_lshl_b32 s{S_T}, s{S_R2}, 1')
            a(f's_add_u32 s{S_T}, s{S_T}, {st}')
            a(f's_and_b32 s{S_T}, s{S_T}, 15')
            a(f's_lshl_b32 s{S_T}, s{S_T}, 18')
            for aa in range(2):
                for h in range(2):
                    for z in range(2):
                        m0 = 65536 + (st & 3) * 16384 + h * 8192 + aa * 4096 + z * 2048
                        piece(f's_add_u32 m0, s{S_W1K}, {m0}', f's_add_u32 s{S_OFF}, s{S_T}, {aa*32768 + h*256 + z*131072}', VWQ2 if z else VWQ, sWQ)
            mark[('W', st)] = cnt[0]
        def W(j, t):
            nh, kh = t >> 1, t & 1
            a(f's_lshl_b32 s{S_T}, s{S_JJ+j}, 7')
            for u in range(4):
                m0 = SLOT(WSLOT[j][t]) + u * 4096
                off = (kh * 128 + 32 * u) * 1024 + (nh * 256) * 2
                piece(f's_add_u32 m0, s{S_W1K}, {m0}', f's_add_u32 s{S_OFF}, s{S_T}, {off}', VWO, sWO)
        def wb(n, pre=False):
            if n is not None: a(f's_waitcnt vmcnt({n})')
            if pre and o.ldst: s.stamp(V_ST)
            a('s_barrier'); s.stamp(V_ST)
        def wbt(tags):
            m = max(mark[t] for t in tags)
            wb(cnt[0] - m)

        if o.fine:
            s.stamp(V_ST); X(0); s.stamp(V_ST); WQ(0); s.stamp(V_ST); WQ(1); X(1); WQ(2); WQ(3); s.stamp(V_ST)
            for n in (21, 19, 15, 11, 8, 4, 0):
                a(f's_waitcnt vmcnt({n})'); s.stamp(V_ST)
        elif o.init4:
            X(0); WQ(0); WQ(1); X(1); WQ(2); WQ(3)
        else:
            X(0); WQ(0); WQ(1); X(1)
        a(f's_and_b32 s7, s{S_WAVE}, 3')
        s.srd_kv()
        s.srd(sWO, 16, 18, 262144)
        s.srd_st()
        s.jj()
        a(f's_and_b32 s7, s{S_WAVE}, 3')
        a('v_lshrrev_b32 v6, 3, v0')
        a('v_lshlrev_b32 v6, 10, v6')
        a('v_and_b32 v7, 7, v0')
        a('v_lshrrev_b32 v7, 1, v7')
        a('v_xor_b32 v7, v7, v1')
        a('v_lshlrev_b32 v7, 5, v7')
        a('v_and_b32 v8, 1, v0')
        a('v_lshlrev_b32 v8, 4, v8')
        a('v_add_u32 v6, v6, v7')
        a('v_add_u32 v6, v6, v8')
        a('s_lshl_b32 s18, s7, 13')
        a(f'v_add_u32 v{VWO}, s18, v6')
        if o.stg:
            s0, npp = [int(x) for x in o.stg.split(',')]
            a(f's_cmp_ge_u32 s{S_WAVE}, 6')
            a('s_cbranch_scc1 L_LD_S')
            c_fork, m_fork = cnt[0], dict(mark)
            a(f'v_xor_b32 v{VWQ2}, 16, v{VWQ}')
            for st in range(16):
                tags = [('W', st)] + ([('X', st // 2)] if st % 2 == 0 else [])
                wbt(tags)
                if st <= 13: WQ2(st + 2)
                if st % 2 == 1 and (st + 3) // 2 <= 7: X2((st + 3) // 2)
            for _ in range(5): wb(None)
            wb(None); KV(sK, 4, 0)
            wb(None); KV(sV, 4, 1)
            wb(None); KV(sK, 5, 0)
            a('s_branch L_LD_M')
            a.label('L_LD_S')
            cnt[0] = c_fork; mark.clear(); mark.update(m_fork)
            a(f'v_xor_b32 v{VKV2}, 16, v{VKV}')
            a(f'v_subrev_u32 v{VKV2}, 2048, v{VKV2}')
            a(f'v_lshlrev_b32 v{VLA}, 4, v0')
            a(f's_sub_u32 s7, s{S_W1K}, 2048')
            a(f'v_add_u32 v{VLA}, s7, v{VLA}')
            a(f'v_add_u32 v{VLA+1}, 0x10000, v{VLA}')
            stg = [(SBUF[0], sK, 1, pc, 'K1') for pc in ALLP] + [(SBUF[1], sV, 1, pc, 'V1') for pc in ALLP] + [(SBUF[2], sK, 2, pc, 'K2') for pc in ALLP]
            for st in range(16):
                if st <= 2:
                    tags = [('W', st)] if st < 2 else []
                    tags += [('X', st // 2)] if st % 2 == 0 else []
                    wbt(tags)
                else: wb(None)
                if st >= s0:
                    k = npp if st < 13 else 99
                    while stg and k > 0:
                        b_, srd_, c_, pc_, tg_ = stg.pop(0)
                        STG(b_, srd_, c_, [pc_], tg_); k -= 1
                if st == 14: STW(SBUF[0], 1, 0, 'K1', (0,))
                if st == 15:
                    STW(SBUF[0], 1, 0, 'K1', (1,))
                    STG(SBUF[0], sV, 2, ALLP, 'V2')
            wb(None); STW(SBUF[1], 1, 1, 'V1'); STG(SBUF[1], sK, 3, ALLP, 'K3')
            wb(None); STW(SBUF[2], 2, 0, 'K2'); STG(SBUF[2], sV, 3, ALLP, 'V3')
            wb(None)
            wb(None)
            wb(None); STW(SBUF[0], 2, 1, 'V2')
            wb(None); KV(sK, 4, 0); STW(SBUF[1], 3, 0, 'K3')
            wb(None); KV(sV, 4, 1); STW(SBUF[2], 3, 1, 'V3')
            wb(None); KV(sK, 5, 0)
            a.label('L_LD_M')
            a(f's_mov_b32 s{S_LOOP}, 2')
            a(f's_mov_b32 s{S_C}, {5*16384}')
            a(f's_add_u32 s{S_M0B}, s{S_W1K}, 65536')
        else:
            for st in range(16):
                tags = [('W', st)] + ([('X', st // 2)] if st % 2 == 0 else [])
                wbt(tags)
                if (2 if (o.init4 or o.fine) else 0) <= st <= 13: WQ(st + 2)
                if st % 2 == 1 and (st + 3) // 2 <= 7: X((st + 3) // 2)
                if st == 14: KV(sK, 1, 0, (0,))
                if st == 15: KV(sK, 1, 0, (1,))
            wb(None); KV(sV, 1, 1)
            wb(None); KV(sK, 2, 0)
            a(f's_mov_b32 s{S_LOOP}, 5')
            a(f's_mov_b32 s{S_C}, {2*16384}')
            a(f's_mov_b32 s{S_M0B}, s{S_W1K}')
        a.label('L_LD_LOOP')
        wb(16)
        if o.cap >= 0: a(f's_waitcnt vmcnt({o.cap})')
        KVdyn(sV, 1)
        a(f's_add_u32 s{S_C}, s{S_C}, 16384')
        a(f's_xor_b32 s{S_M0B}, s{S_M0B}, 65536')
        wb(16)
        if o.cap >= 0: a(f's_waitcnt vmcnt({o.cap})')
        KVdyn(sK, 0)
        a(f's_sub_u32 s{S_LOOP}, s{S_LOOP}, 1')
        a(f's_cmp_lg_u32 s{S_LOOP}, 0')
        a('s_cbranch_scc1 L_LD_LOOP')
        if o.o2:
            W(0, 0); W(0, 3)
            wb(24); KV(sV, 7, 1)
            wb(24); W(0, 1); W(0, 2)
            wb(24); W(1, 0)
            wb(12, True)
            wb(None); W(1, 3); W(1, 1)
            wb(12, True)
            wb(None)
            wb(None); W(1, 2); W(2, 0); W(2, 3); W(2, 1); W(2, 2)
            wb(24, True)
            wb(16, True); W(3, 0); W(3, 3)
            wb(16, True); W(3, 1); W(3, 2)
            wb(16, True)
            wb(8, True)
            wb(0, True)
        else:
            wb(16)
            if o.cap >= 0: a(f's_waitcnt vmcnt({o.cap})')
            KV(sV, 7, 1)
            wb(16)
            for t in range(4): W(0, t)
            wb(24); W(1, 0)
            wb(20)
            a('s_barrier'); s.stamp(V_ST)
            W(1, 1); W(1, 2)
            wb(12); W(1, 3); W(2, 0); W(2, 1)
            wb(8); W(2, 2); W(2, 3); W(3, 0); W(3, 1)
            wb(8); W(3, 2); W(3, 3)
            wb(0)
        s.stamp_flush(V_ST)
        a('s_endpgm')

    def compute(s):
        a = s.a; o = s.o
        cs = (128 ** -0.5) * math.log2(math.e)
        import struct
        fb = lambda x: struct.unpack('<I', struct.pack('<f', x))[0]
        a.label('L_COMPUTE')
        s.srd_kv()
        a(f's_lshl_b32 s7, s{S_BLK}, 4')
        a(f's_add_u32 s7, s7, s{S_HP}')
        a('s_lshl_b32 s7, s7, 3')
        a(f's_add_u32 s7, s7, s{S_B}')
        a('s_mul_i32 s7, s7, 98304')
        s.srd(sWS, 30, 7, 98304)
        s.srd_st()
        s.jj()
        a(f's_and_b32 s{S_H}, s{S_WAVE}, 1')
        a(f's_lshr_b32 s{S_QG}, s{S_WAVE}, 1')
        a(f's_mov_b32 s{S_KVP}, s{S_B}')
        a(f'v_mov_b32 v{V_XO}, v10')
        a('v_and_b32 v1, 15, v0')
        a('v_lshrrev_b32 v2, 4, v0')
        a(f's_mul_i32 s7, s{S_QG}, 48')
        a('v_add_u32 v3, s7, v1')
        a('v_lshlrev_b32 v3, 7, v3')
        a('v_lshrrev_b32 v4, 1, v1')
        a('v_xor_b32 v4, v4, v2')
        a('v_lshlrev_b32 v4, 4, v4')
        a('v_add_u32 v3, v3, v4')
        a(f'v_add_u32 v{V_X0}, {XLDS}, v3')
        a(f'v_xor_b32 v{V_X1}, 64, v{V_X0}')
        a(f's_mov_b32 s{S_CS}, {hex(fb(cs))}')
        a(f's_mov_b32 s{S_NCS}, {hex(fb(-cs))}')
        def ffun(dst, src, tmp):
            a(f'v_and_b32 v{dst}, 7, v{src}')
            a(f'v_lshlrev_b32 v{dst}, 1, v{dst}')
            a(f'v_lshrrev_b32 v{tmp}, 3, v{src}')
            a(f'v_or_b32 v{dst}, v{dst}, v{tmp}')
        ffun(5, 1, 6)
        a('v_lshrrev_b32 v6, 1, v2')
        a('v_xor_b32 v5, v5, v6')
        a('v_lshlrev_b32 v5, 4, v5')
        a('v_lshlrev_b32 v6, 8, v1')
        a('v_add_u32 v5, v5, v6')
        a('v_and_b32 v6, 1, v2')
        a('v_lshlrev_b32 v6, 3, v6')
        a('v_add_u32 v5, v5, v6')
        a(f's_lshl_b32 s7, s{S_H}, 14')
        a(f'v_add_u32 v{V_AK}, s7, v5')
        a('v_lshrrev_b32 v7, 2, v1')
        a('v_lshlrev_b32 v8, 2, v2')
        a('v_add_u32 v8, v8, v7')
        a('v_and_b32 v9, 3, v0')
        ffun(5, 8, 6)
        a('v_lshrrev_b32 v6, 1, v9')
        a('v_xor_b32 v5, v5, v6')
        a('v_lshlrev_b32 v5, 4, v5')
        a('v_lshlrev_b32 v6, 8, v8')
        a('v_add_u32 v5, v5, v6')
        a('v_and_b32 v6, 1, v9')
        a('v_lshlrev_b32 v6, 3, v6')
        a('v_add_u32 v5, v5, v6')
        a(f's_add_u32 s18, s7, 32768')
        a(f'v_add_u32 v{V_AV}, s18, v5')
        a(f's_lshl_b32 s7, s{S_H}, 13')
        a(f'v_add_u32 v{V_AQ}, s7, v5')
        a('v_lshrrev_b32 v5, 1, v8')
        a('v_and_b32 v5, 3, v5')
        a('v_lshlrev_b32 v5, 5, v5')
        a('v_lshlrev_b32 v6, 7, v8')
        a('v_add_u32 v5, v5, v6')
        a('v_lshlrev_b32 v6, 3, v9')
        a(f'v_add_u32 v{V_AO}, v5, v6')
        for j in range(4): a(f's_mul_i32 s{S_JJ+j}, s{S_JJ+j}, 6144')
        a(f's_cmp_eq_u32 s{S_H}, 0')
        for j in range(4):
            a(f's_cselect_b32 s{S_OB+2*j}, {WSLOT[j][0]}, {WSLOT[j][3]}')
            a(f's_cselect_b32 s{S_OB+2*j+1}, {WSLOT[j][1]}, {WSLOT[j][2]}')
        for j in range(8): a(f's_lshl_b32 s{S_OB+j}, s{S_OB+j}, 14')
        def addr8(base_v, add=None):
            if add is not None:
                a(f'v_add_u32 v{V_AD}, {add}, v{base_v}')
            else:
                a(f'v_mov_b32 v{V_AD}, v{base_v}')
            for u in range(1, 8): a(f'v_xor_b32 v{V_AD+u}, {u<<5}, v{V_AD}')
        MF = 'v_mfma_f32_16x16x32_bf16'
        nt = ' nt' if o.nt else ''
        addr8(V_AQ, 65536)
        def xrd(j):
            r = []
            for kk in range(2):
                for qt in range(3):
                    r.append((('X', j, kk), f'ds_read_b128 {vr(XR(2*j+kk,qt),4)}, v{V_X1 if kk else V_X0} offset:{(j&1)*12288+qt*2048}'))
            return r
        def kv0(isv, h, m):
            return [f's_add_u32 m0, s{S_W1K}, {isv*32768 + h*16384 + m*4096}', f's_mov_b32 s{S_OFF}, {h*131072 + m*4096}',
                    f'buffer_load_dwordx4 v{V_XO}, s[{(sV if isv else sK)}:{(sV if isv else sK)+3}], s{S_OFF} offen{nt} lds']
        frags = []
        for st in range(16):
            for dt in range(8):
                def rd(buf, dt=dt, st=st):
                    return [f'ds_read_b64_tr_b16 {vr(buf,2)}, v{V_AD+dt} offset:{(st&3)*16384}',
                            f'ds_read_b64_tr_b16 {vr(buf+2,2)}, v{V_AD+dt} offset:{(st&3)*16384+4096}']
                def mm(buf, dt=dt, st=st):
                    r = []
                    for qt in range(3):
                        d = vr(QA(dt, qt), 4)
                        c = '0' if st == 0 else d
                        r.append(f'{MF} {d}, {vr(buf,4)}, {vr(XR(st,qt),4)}, {c}')
                    return r
                f = dict(rd=rd, mm=mm, post=[], xrd=[])
                if dt == 0: f['need'] = [('X', st // 2, st & 1)]
                if dt == 1 and st < 15:
                    f['bar'] = True
                    if st in (3, 7, 11): f['stamp'] = True
                frags.append(f)
        for j in range(1, 8):
            xs = xrd(j)
            for k, t in enumerate(xs): frags[8 * (2 * j - 1) + 1 + k // 2]['xrd'].append(t)
            frags[8 * (2 * j) + 1]['need'] = [('X', j, 1)]
        preblk = []
        if o.kvstag:
            pos = [int(x) for x in o.kvstag.split(',')]
            assert len(pos) == 8
            for fr in sorted(set(pos)):
                mask = sum(1 << p for p in range(8) if pos[p] == fr)
                blk = [f's_lshr_b32 s7, {mask}, s{S_KVP}', 's_bitcmp1_b32 s7, 0', f's_cbranch_scc0 L_KVS{fr}']
                for isv in range(2):
                    for h in range(2):
                        for m in range(4): blk += kv0(isv, h, m)
                blk.append(f'L_KVS{fr}:')
                if fr >= 900: preblk += blk
                else: frags[fr]['post'] += blk
        else:
            k = o.kvat
            for isv in range(2):
                for h in range(2):
                    for m in range(4):
                        frags[k]['post'] += kv0(isv, h, m); k += o.kvstep
        zl = list(range(48, 96))
        for i, z in enumerate(zl): frags[24 + i]['post'].append(f'v_mov_b32 v{z}, 0')
        for i in range(24): frags[8 * 14 + 1 + (i // 2)]['post'].append(f'v_mov_b32 v{i}, 0')
        for i in range(12): frags[8 * 15 + 1 + (i // 2)]['post'].append(f'v_mov_b32 v{24+i}, 0')
        def qcvt(j):
            r = []
            for qt in range(3):
                b = QFr(j, qt)
                for i in range(4): r.append(f'v_cvt_pk_bf16_f32 v{b+i}, v{b+2*i}, v{b+2*i+1}')
            return r
        c0, c1, c2 = qcvt(0), qcvt(1), qcvt(2)
        frags[8*15+3]['post'] += c0[:6]; frags[8*15+4]['post'] += c0[6:]
        frags[8*15+5]['post'] += c1[:6]; frags[8*15+6]['post'] += c1[6:]
        frags[8*15+7]['post'] += c2[:6]
        for x in preblk: a(x)
        a('s_barrier'); s.stamp(V_ST); s.dstamp(2)
        s.stream(frags, pre=xrd(0))
        for x in c2[6:]: a(x)
        for i in range(12): a(f'v_mov_b32 v{36+i}, 0')
        for qt in range(3):
            a(f'v_mov_b32 v{V_M+qt}, 0xff800000')
            a(f'v_mov_b32 v{V_L+qt}, 0')
        for x in qcvt(3): a(x)
        if s.o.lazy:
            for qt in range(3): a(f'v_mov_b32 v{V_NMC+qt}, 0x7f800000')
        s.stamp(V_ST); s.dstamp(4)
        a('s_waitcnt vmcnt(8)')
        a(f's_mov_b32 s{S_LOOP}, 8')
        a.label('L_ATT')
        addr8(V_AK)
        a('s_barrier'); s.stamp(V_ST)
        if s.o.dbg:
            a(f's_cmp_lg_u32 s{S_LOOP}, 8'); a('s_cbranch_scc1 L_DB0'); s.dstamp(5); a.label('L_DB0')
            a(f's_cmp_lg_u32 s{S_LOOP}, 4'); a('s_cbranch_scc1 L_DB1'); s.dstamp(6); a.label('L_DB1')
        frags = []
        for j in range(4):
            for kt in range(4):
                def rd(buf, j=j, kt=kt):
                    return [f'ds_read_b64 {vr(buf,2)}, v{V_AD+2*j} offset:{kt*4096}',
                            f'ds_read_b64 {vr(buf+2,2)}, v{V_AD+2*j+1} offset:{kt*4096}']
                def mm(buf, j=j, kt=kt):
                    r = []
                    for qt in range(3):
                        d = vr(SR(kt, qt), 4)
                        c = '0' if j == 0 else d
                        r.append(f'{MF} {d}, {vr(buf,4)}, {vr(QFr(j,qt),4)}, {c}')
                    return r
                frags.append(dict(rd=rd, mm=mm))
        s.stream(frags)
        addr8(V_AV)
        a(f'v_xor_b32 v{V_AK}, 65536, v{V_AK}')
        a(f'v_xor_b32 v{V_AV}, 65536, v{V_AV}')
        SQ = lambda qt: [SR(kt, qt) + i for kt in range(4) for i in range(4)]
        lazy = s.o.lazy
        MX = [V_AL + 2 * q + 1 for q in range(3)] if lazy else [V_NMC + q for q in range(3)]
        for qt in range(3):
            r = SQ(qt)
            a(f'v_max3_f32 v{MX[qt]}, v{r[0]}, v{r[1]}, v{r[2]}')
        for i in range(6):
            for qt in range(3):
                r = SQ(qt)
                a(f'v_max3_f32 v{MX[qt]}, v{MX[qt]}, v{r[3+2*i]}, v{r[4+2*i]}')
        for qt in range(3):
            r = SQ(qt)
            if lazy: a(f'v_max_f32 v{MX[qt]}, v{MX[qt]}, v{r[15]}')
            else: a(f'v_max3_f32 v{MX[qt]}, v{MX[qt]}, v{r[15]}, v{V_M+qt}')
        def rescale():
            for dt in range(8):
                for qt in range(3):
                    b = O0 + (dt * 3 + qt) * 4
                    for hh in range(2):
                        a(f'v_pk_mul_f32 {vr(b+2*hh,2)}, {vr(b+2*hh,2)}, {vr(V_AL+2*qt,2)} op_sel_hi:[1,0]')
        if lazy:
            for qt in range(3): a(f'v_fma_f32 v{V_T+qt}, v{MX[qt]}, s{S_CS}, v{V_NMC+qt}')
            a(f'v_max3_f32 v{V_T}, v{V_T}, v{V_T+1}, v{V_T+2}')
            a(f'v_cmp_lt_f32 vcc, {hex(fb(float(lazy)))}, v{V_T}')
            a('s_cbranch_vccz L_FAST')
            for qt in range(3): a(f'v_max_f32 v{MX[qt]}, v{MX[qt]}, v{V_M+qt}')
        for sw in ('v_permlane16_swap_b32', 'v_permlane32_swap_b32'):
            for qt in range(3): a(f'v_mov_b32 v{V_T+qt}, v{MX[qt]}')
            a('s_nop 0')
            for qt in range(3): a(f'{sw} v{MX[qt]}, v{V_T+qt}')
            a('s_nop 0')
            for qt in range(3): a(f'v_max_f32 v{MX[qt]}, v{MX[qt]}, v{V_T+qt}')
        for qt in range(3): a(f'v_sub_f32 v{V_T+qt}, v{V_M+qt}, v{MX[qt]}')
        for qt in range(3): a(f'v_mul_f32 v{V_T+qt}, s{S_CS}, v{V_T+qt}')
        for qt in range(3): a(f'v_exp_f32 v{V_AL+2*qt}, v{V_T+qt}')
        for qt in range(3): a(f'v_mov_b32 v{V_M+qt}, v{MX[qt]}')
        for qt in range(3): a(f'v_mul_f32 v{V_NMC+qt}, s{S_NCS}, v{MX[qt]}')
        if lazy:
            for qt in range(3): a(f'v_mul_f32 v{V_L+qt}, v{V_L+qt}, v{V_AL+2*qt}')
            rescale()
            a.label('L_FAST')
        for qt in range(3):
            r = SQ(qt)
            for i in range(0, 16, 4):
                for k in range(4): a(f'v_fma_f32 v{r[i+k]}, v{r[i+k]}, s{S_CS}, v{V_NMC+qt}')
                for k in range(4): a(f'v_exp_f32 v{r[i+k]}, v{r[i+k]}')
        if not lazy: rescale()
        TP = V_AB_T = AB
        for qt in range(3):
            r = SQ(qt)
            a(f'v_pk_add_f32 {vr(TP+2*qt,2)}, {vr(r[0],2)}, {vr(r[2],2)}')
        for i in range(2, 8):
            for qt in range(3):
                r = SQ(qt)
                a(f'v_pk_add_f32 {vr(TP+2*qt,2)}, {vr(TP+2*qt,2)}, {vr(r[2*i],2)}')
        if lazy:
            for qt in range(3): a(f'v_add_f32 v{V_L+qt}, v{V_L+qt}, v{TP+2*qt}')
        else:
            for qt in range(3): a(f'v_fma_f32 v{V_L+qt}, v{V_L+qt}, v{V_AL+2*qt}, v{TP+2*qt}')
        for qt in range(3): a(f'v_add_f32 v{V_L+qt}, v{V_L+qt}, v{TP+2*qt+1}')
        for qt in range(3):
            for kk in range(2):
                b = SR(2 * kk, qt); b2 = SR(2 * kk + 1, qt)
                a(f'v_cvt_pk_bf16_f32 v{b}, v{b}, v{b+1}')
                a(f'v_cvt_pk_bf16_f32 v{b+1}, v{b+2}, v{b+3}')
                a(f'v_cvt_pk_bf16_f32 v{b+2}, v{b2}, v{b2+1}')
                a(f'v_cvt_pk_bf16_f32 v{b+3}, v{b2+2}, v{b2+3}')
        a('s_waitcnt vmcnt(0)')
        a('s_barrier'); s.stamp(V_ST)
        frags = []
        for dt in range(8):
            for kk in range(2):
                def rd(buf, dt=dt, kk=kk):
                    return [f'ds_read_b64_tr_b16 {vr(buf,2)}, v{V_AD+dt} offset:{kk*8192}',
                            f'ds_read_b64_tr_b16 {vr(buf+2,2)}, v{V_AD+dt} offset:{kk*8192+4096}']
                def mm(buf, dt=dt, kk=kk):
                    r = []
                    for qt in range(3):
                        d = vr(O0 + (dt * 3 + qt) * 4, 4)
                        r.append(f'{MF} {d}, {vr(buf,4)}, {vr(SR(2*kk,qt),4)}, {d}')
                    return r
                frags.append(dict(rd=rd, mm=mm))
        s.stream(frags)
        a(f's_sub_u32 s{S_LOOP}, s{S_LOOP}, 1')
        a(f's_cmp_lg_u32 s{S_LOOP}, 0')
        a('s_cbranch_scc1 L_ATT')
        s.stamp(V_ST); s.dstamp(7)
        if o.o2: s.ophase2()
        else:
            for sw in ('v_permlane16_swap_b32', 'v_permlane32_swap_b32'):
                for qt in range(3): a(f'v_mov_b32 v{V_T+qt}, v{V_L+qt}')
                a('s_nop 0')
                for qt in range(3): a(f'{sw} v{V_L+qt}, v{V_T+qt}')
                a('s_nop 0')
                for qt in range(3): a(f'v_add_f32 v{V_L+qt}, v{V_L+qt}, v{V_T+qt}')
            for qt in range(3): a(f'v_rcp_f32 v{V_AL+2*qt}, v{V_L+qt}')
            a('s_nop 0')
            a('v_mbcnt_lo_u32_b32 v251, -1, 0')
            a('v_mbcnt_hi_u32_b32 v251, -1, v251')
            a('v_lshlrev_b32 v251, 4, v251')
            a(f's_mul_i32 s7, s{S_WAVE}, 12288')
            a(f's_add_u32 s7, s7, {XCH}')
            a('v_add_u32 v252, s7, v251')
            a(f's_xor_b32 s18, s{S_WAVE}, 1')
            a(f's_mul_i32 s18, s18, 12288')
            a(f's_add_u32 s18, s18, {XCH}')
            a('v_add_u32 v253, s18, v251')
            a(f's_mul_i32 s7, s{S_WAVE}, 24576')
            a(f'v_add_u32 v{V_XO}, s7, v251')
            for j in range(4):
                for qt in range(3):
                    for t in range(2):
                        b = O0 + ((2 * j + t) * 3 + qt) * 4
                        for hh in range(2):
                            a(f'v_pk_mul_f32 {vr(b+2*hh,2)}, {vr(b+2*hh,2)}, {vr(V_AL+2*qt,2)} op_sel_hi:[1,0]')
                    for t in range(2):
                        src = O0 + ((2 * j + t) * 3 + qt) * 4
                        dst = QFr(j, qt) + 2 * t
                        a(f'v_cvt_pk_bf16_f32 v{dst}, v{src}, v{src+1}')
                        a(f'v_cvt_pk_bf16_f32 v{dst+1}, v{src+2}, v{src+3}')
                    a(f'ds_write_b128 v252, {vr(QFr(j,qt),4)} offset:{(j*3+qt)*1024}')
            a('s_waitcnt lgkmcnt(0)')
            a('s_barrier'); s.stamp(V_ST); s.dstamp(8)
            for i in range(12): a(f'ds_read_b128 {vr(96+8*i+4,4)}, v253 offset:{i*1024}')
            a('s_waitcnt lgkmcnt(0)')
            stf = o.stflag
            def epi(j):
                r = []
                base = 48 * (j & 1)
                for u in range(2):
                    for qt in range(3):
                        b = base + (u * 3 + qt) * 8
                        grp = [f'v_cvt_pk_bf16_f32 v{b+i}, v{b+2*i}, v{b+2*i+1}' for i in range(4)]
                        off = (u * 3 + qt) * 1024
                        grp.append(f's_add_u32 s7, s{S_JJ+j}, {off}')
                        grp.append(f'buffer_store_dwordx4 {vr(b,4)}, v{V_XO}, s[{sWS}:{sWS+3}], s7 offen{stf}')
                        r.append(grp)
                return r
            for j in range(4):
                for half in range(2):
                    a(f'v_add_u32 v{V_AD+4*half}, s{S_OB+2*j+half}, v{V_AO}')
                    for nt_ in range(1, 4): a(f'v_xor_b32 v{V_AD+4*half+nt_}, {nt_<<5}, v{V_AD+4*half}')
                a('s_barrier'); s.stamp(V_ST); s.dstamp(9 + j)
                base = 48 * (j & 1)
                frags = []
                for half in range(2):
                    for jj in range(4):
                        for nt_ in range(4):
                            def rd(buf, half=half, jj=jj, nt_=nt_):
                                return [f'ds_read_b64_tr_b16 {vr(buf,2)}, v{V_AD+4*half+nt_} offset:{jj*4096}',
                                        f'ds_read_b64_tr_b16 {vr(buf+2,2)}, v{V_AD+4*half+nt_} offset:{jj*4096+2048}']
                            def mm(buf, half=half, jj=jj, nt_=nt_):
                                r = []
                                for qt in range(3):
                                    d = vr(base + ((nt_ >> 1) * 3 + qt) * 8 + (nt_ & 1) * 4, 4)
                                    c = '0' if (half == 0 and jj == 0) else d
                                    bsrc = QFr(jj, qt) + 4 * half
                                    r.append(f'{MF} {d}, {vr(buf,4)}, {vr(bsrc,4)}, {c}')
                                return r
                            frags.append(dict(rd=rd, mm=mm))
                if j > 0:
                    for k, grp in enumerate(epi(j - 1)):
                        frags[3 + 4 * k]['post'] = grp
                s.stream(frags)
            s.stamp(V_ST)
            a('s_nop 7')
            for grp in epi(3):
                for x in grp: a(x)
        s.stamp(V_ST); s.dstamp(13)
        if s.o.dbg:
            a('s_waitcnt vmcnt(0)'); s.dstamp(14)
        s.dflush()
        s.stamp_flush(V_ST)
        a('s_endpgm')


    def ophase2(s):
        a = s.a; o = s.o
        MF = 'v_mfma_f32_16x16x32_bf16'
        stf = o.stflag
        a('s_barrier'); s.stamp(V_ST)
        def aset(hs):
            st_ = V_AD + 4 * (hs & 1)
            return [f'v_add_u32 v{st_}, s{S_OB+hs}, v{V_AO}'] + [f'v_xor_b32 v{st_+k}, {k<<5}, v{st_}' for k in range(1, 4)]
        for x in aset(0) + aset(1): a(x)
        mid = []
        for sw in ('v_permlane16_swap_b32', 'v_permlane32_swap_b32'):
            for qt in range(3): mid.append(f'v_mov_b32 v{V_T+qt}, v{V_L+qt}')
            mid.append('s_nop 0')
            for qt in range(3): mid.append(f'{sw} v{V_L+qt}, v{V_T+qt}')
            mid.append('s_nop 0')
            for qt in range(3): mid.append(f'v_add_f32 v{V_L+qt}, v{V_L+qt}, v{V_T+qt}')
        for qt in range(3): mid.append(f'v_rcp_f32 v{V_AL+2*qt}, v{V_L+qt}')
        mid += ['v_mbcnt_lo_u32_b32 v251, -1, 0', 'v_mbcnt_hi_u32_b32 v251, -1, v251', 'v_lshlrev_b32 v251, 4, v251',
                f's_mul_i32 s7, s{S_WAVE}, 12288', f's_add_u32 s7, s7, {XCH}', 'v_add_u32 v252, s7, v251',
                f's_xor_b32 s18, s{S_WAVE}, 1', 's_mul_i32 s18, s18, 12288', f's_add_u32 s18, s18, {XCH}', 'v_add_u32 v253, s18, v251',
                f's_mul_i32 s7, s{S_WAVE}, 24576', f'v_add_u32 v{V_XO}, s7, v251']
        def grp(j):
            r = []
            for qt in range(3):
                for t in range(2):
                    b = O0 + ((2 * j + t) * 3 + qt) * 4
                    for hh in range(2):
                        r.append(f'v_pk_mul_f32 {vr(b+2*hh,2)}, {vr(b+2*hh,2)}, {vr(V_AL+2*qt,2)} op_sel_hi:[1,0]')
                for t in range(2):
                    src = O0 + ((2 * j + t) * 3 + qt) * 4
                    dst = QFr(j, qt) + 2 * t
                    r.append(f'v_cvt_pk_bf16_f32 v{dst}, v{src}, v{src+1}')
                    r.append(f'v_cvt_pk_bf16_f32 v{dst+1}, v{src+2}, v{src+3}')
            return r
        def xw(j): return [(('XW', j, qt), f'ds_write_b128 v252, {vr(QFr(j,qt),4)} offset:{(j*3+qt)*1024}') for qt in range(3)]
        mid += grp(0) + grp(1) + ['s_nop 1']
        L = grp(2) + xw(0) + xw(1) + xw(2) + grp(3) + xw(3)
        assert len(L) == 60
        def epi(j, us=(0, 1)):
            r = []
            base = 48 * (j & 1)
            for u in us:
                for qt in range(3):
                    b = base + (u * 3 + qt) * 8
                    r += [f'v_cvt_pk_bf16_f32 v{b+i}, v{b+2*i}, v{b+2*i+1}' for i in range(4)]
                    r.append(f's_add_u32 s7, s{S_JJ+j}, {(u * 3 + qt) * 1024}')
                    r.append(f'buffer_store_dwordx4 {vr(b,4)}, v{V_XO}, s[{sWS}:{sWS+3}], s7 offen{stf}')
            return r
        frags = []
        for hs in range(8):
            j, half = hs >> 1, hs & 1
            base = 48 * (j & 1)
            order = [(jj, n_) for jj in range(4) for n_ in range(4)]
            if hs == 7: order = [(jj, n_) for n_ in range(4) for jj in range(4)]
            for jj, nt_ in order:
                def rd(buf, half=half, jj=jj, nt_=nt_):
                    return [f'ds_read_b64_tr_b16 {vr(buf,2)}, v{V_AD+4*half+nt_} offset:{jj*4096}',
                            f'ds_read_b64_tr_b16 {vr(buf+2,2)}, v{V_AD+4*half+nt_} offset:{jj*4096+2048}']
                def mm(buf, half=half, jj=jj, nt_=nt_, base=base):
                    r = []
                    for qt in range(3):
                        d = vr(base + ((nt_ >> 1) * 3 + qt) * 8 + (nt_ & 1) * 4, 4)
                        c = '0' if (half == 0 and jj == 0) else d
                        r.append(f'{MF} {d}, {vr(buf,4)}, {vr(QFr(jj, qt) + 4 * half,4)}, {c}')
                    return r
                frags.append(dict(rd=rd, mm=mm, ext=[], need=[]))
        for i in range(10): frags[i]['ext'] += L[6 * i:6 * i + 6]
        for i in (9, 11, 18, 25, 41, 57, 73, 89, 105):
            frags[i]['bar'] = True
            if i in (25, 57, 89): frags[i]['stamp'] = True
        frags[11]['need'] += [('XW', j, qt) for j in range(4) for qt in range(3)]
        for j in range(4):
            frags[11 + j]['ext'] += [(('XR', j, qt), f'ds_read_b128 {vr(QFr(j,qt)+4,4)}, v253 offset:{(j*3+qt)*1024}') for qt in range(3)]
            frags[16 + 4 * j]['need'] += [('XR', j, qt) for qt in range(3)]
        frags[18]['need'] += [('XR', j, qt) for j in range(4) for qt in range(3)]
        for hs in range(2, 8): frags[16 * hs - 12]['ext'] += aset(hs)
        for j in range(3):
            e = epi(j)
            for k in range(12): frags[32 * (j + 1) + 5 + k]['ext'] += e[3 * k:3 * k + 3]
        e = epi(3, (0,))
        for k in range(6): frags[122 + k]['ext'] += e[3 * k:3 * k + 3]
        s.stream(frags, mid=mid)
        s.stamp(V_ST)
        a('s_nop 7')
        for x in epi(3, (1,)): a(x)

    def reduce(s):
        a = s.a; o = s.o
        a.raw('.p2align 8'); a.raw('.type red_kernel,@function'); a.label('red_kernel')
        a('s_cmp_ge_u32 s2, 24')
        a('s_cbranch_scc1 L_REND')
        a('s_load_dwordx2 s[4:5], s[0:1], 80')
        a('s_load_dwordx2 s[6:7], s[0:1], 96')
        a('v_lshrrev_b32 v1, 6, v0')
        a('v_and_b32 v0, 63, v0')
        a('v_readfirstlane_b32 s8, v1')
        a('s_nop 3')
        if o.dbg:
            a('s_load_dwordx2 s[32:33], s[0:1], 88')
            a('s_memrealtime s[34:35]')
            a('s_or_b32 s9, s2, s3'); a('s_or_b32 s9, s9, s8')
            a('s_cmp_lg_u32 s9, 0')
            a('s_cbranch_scc1 L_RNODBG')
            a('s_waitcnt lgkmcnt(0)')
            a('s_add_u32 s40, s6, 0x2000000'); a('s_addc_u32 s41, s7, 0'); a('s_mov_b32 s42, 0x100000'); a('s_mov_b32 s43, 0x00020000')
            a('s_mov_b32 s44, s32'); a('s_mov_b32 s45, s33'); a('s_mov_b32 s46, 256'); a('s_mov_b32 s47, 0x00020000')
            a('v_lshlrev_b32 v90, 8, v0')
            for k in range(4):
                a(f's_mov_b32 s9, {k*16384}')
                a(f'buffer_load_dwordx2 v[{92+2*k}:{93+2*k}], v90, s[40:43], s9 offen')
            a('v_lshlrev_b32 v91, 2, v0')
            a(f's_mov_b32 s9, {o.dbgwg*256}')
            a('buffer_load_dword v100, v91, s[40:43], s9 offen')
            a('s_waitcnt vmcnt(0)')
            a('v_min_u32 v92, v92, v94'); a('v_min_u32 v96, v96, v98'); a('v_min_u32 v102, v92, v96')
            a('v_max_u32 v93, v93, v95'); a('v_max_u32 v97, v97, v99'); a('v_max_u32 v103, v93, v97')
            a('v_readlane_b32 s36, v102, 0'); a('v_readlane_b32 s37, v103, 0')
            for l in range(1, 64):
                a(f'v_readlane_b32 s38, v102, {l}'); a(f'v_readlane_b32 s39, v103, {l}')
                a('s_min_u32 s36, s36, s38'); a('s_max_u32 s37, s37, s39')
            a('s_sub_u32 s38, s37, s36'); a('s_sub_u32 s39, s34, s37')
            a('v_writelane_b32 v100, s38, 0'); a('v_writelane_b32 v100, s39, 1')
            a('v_cmp_gt_u32 vcc, 16, v0'); a('s_and_saveexec_b64 s[48:49], vcc')
            a('buffer_store_dword v100, v91, s[44:47], 0 offen')
            a('s_mov_b64 exec, s[48:49]')
            a.label('L_RNODBG')
        a('s_lshl_b32 s9, s2, 2')
        a('s_add_u32 s8, s8, s9')
        a('s_lshr_b32 s10, s3, 3')
        a('s_and_b32 s11, s3, 7')
        a('s_lshl_b32 s12, s10, 7')
        a('s_add_u32 s12, s12, s11')
        a('s_mul_i32 s12, s12, 98304')
        a('s_lshl_b32 s13, s8, 10')
        a('s_add_u32 s12, s12, s13')
        a('v_lshlrev_b32 v1, 4, v0')
        a('s_waitcnt lgkmcnt(0)')
        a('s_add_u32 s16, s6, s12')
        a('s_addc_u32 s17, s7, 0')
        a(f's_mov_b32 s18, {15*786432+1024}')
        a('s_mov_b32 s19, 0x00020000')
        a('s_mov_b32 s14, 0')
        for hp in range(16):
            a(f'buffer_load_dwordx4 {vr(8+4*hp,4)}, v1, s[16:19], s14 offen{o.ldflag}')
            if hp < 15: a('s_add_u32 s14, s14, 786432')
        a('s_mul_i32 s20, s8, 43')
        a('s_lshr_b32 s20, s20, 8')
        a('s_mul_i32 s21, s20, 6')
        a('s_sub_u32 s21, s8, s21')
        a('s_cmp_ge_u32 s21, 3')
        a('s_cselect_b32 s22, 1, 0')
        a('s_mul_i32 s23, s22, 3')
        a('s_sub_u32 s23, s21, s23')
        a('s_lshr_b32 s24, s20, 2')
        a('s_and_b32 s25, s20, 3')
        a('s_and_b32 s26, s24, 1')
        a('s_lshr_b32 s27, s24, 1')
        a('s_mul_i32 s28, s11, 96')
        a('s_mul_i32 s29, s27, 48')
        a('s_add_u32 s28, s28, s29')
        a('s_lshl_b32 s29, s23, 4')
        a('s_add_u32 s28, s28, s29')
        a('s_lshl_b32 s28, s28, 11')
        a('s_lshl_b32 s29, s10, 10')
        a('s_add_u32 s28, s28, s29')
        a('s_lshl_b32 s29, s26, 9')
        a('s_add_u32 s28, s28, s29')
        a('s_lshl_b32 s29, s25, 7')
        a('s_add_u32 s28, s28, s29')
        a('s_lshl_b32 s29, s22, 6')
        a('s_add_u32 s28, s28, s29')
        a('v_and_b32 v2, 15, v0')
        a('v_lshlrev_b32 v2, 11, v2')
        a('v_lshrrev_b32 v3, 4, v0')
        a('v_and_b32 v4, 1, v3')
        a('v_lshlrev_b32 v4, 5, v4')
        a('v_lshrrev_b32 v3, 1, v3')
        a('v_lshlrev_b32 v3, 4, v3')
        a('v_add_u32 v2, v2, v3')
        a('v_add_u32 v2, v2, v4')
        a('v_add_u32 v2, s28, v2')
        a('s_mov_b32 s8, s4')
        a('s_mov_b32 s9, s5')
        a(f's_mov_b32 s10, {8*96*1024*2}')
        a('s_mov_b32 s11, 0x00020000')
        a('s_mov_b32 s30, 0xffff0000')
        for hp in range(16):
            a(f's_waitcnt vmcnt({15-hp})')
            b = 8 + 4 * hp
            for i in range(4):
                if hp == 0:
                    a(f'v_lshlrev_b32 v{72+2*i}, 16, v{b+i}')
                    a(f'v_and_b32 v{73+2*i}, s30, v{b+i}')
                else:
                    a(f'v_lshlrev_b32 v4, 16, v{b+i}')
                    a(f'v_and_b32 v5, s30, v{b+i}')
                    a(f'v_pk_add_f32 {vr(72+2*i,2)}, {vr(72+2*i,2)}, v[4:5]')
        for i in range(4): a(f'v_cvt_pk_bf16_f32 v{80+i}, v{72+2*i}, v{73+2*i}')
        a('s_nop 1')
        a('v_permlane16_swap_b32 v80, v82')
        a('v_permlane16_swap_b32 v81, v83')
        a('s_nop 1')
        a('buffer_store_dwordx4 v[80:83], v2, s[8:11], 0 offen')
        a.label('L_REND')
        a('s_endpgm')

    def build(s):
        a = s.a; o = s.o
        kn = o.kname
        hdr = open('cdna_kernels/' + NAME + '.s.ref').read().split('\n')
        for ln in hdr:
            if ln.startswith('; @launch'): break
            a.raw(ln)
        for ch in o.list:
            if ch == 'm': a.raw(f'; @launch kernel={kn} grid=(256,1,1) block=(512,1,1) lds=163840')
            if ch == 'r': a.raw(f'; @launch kernel=red_kernel grid=(24,16,1) block=(256,1,1) lds=0')
            if ch == 'n': a.raw(f'; @launch kernel=nop_kernel grid=(256,1,1) block=(64,1,1) lds=0')
        a.raw('.amdgcn_target "amdgcn-amd-amdhsa--gfx950"')
        a.raw('.text')
        a.raw(f'.globl {kn}'); a.raw('.p2align 8'); a.raw(f'.type {kn},@function'); a.label(kn)
        s.prologue()
        s.loader()
        s.compute()
        a.label('L_END'); a('s_endpgm')
        a.raw('.globl red_kernel')
        s.reduce()
        kl = [(kn, 256, 0), ('red_kernel', 104 if o.dbg else 88, 1)]
        if 'n' in o.list:
            a.raw('.globl nop_kernel'); a.raw('.p2align 8'); a.raw('.type nop_kernel,@function'); a.label('nop_kernel'); a('s_endpgm')
            kl.append(('nop_kernel', 8, 0))
        a.raw('.section .rodata,"a"')
        for k, nv, y in kl:
            a.raw('.p2align 6')
            a.raw(f'.amdhsa_kernel {k}')
            a.raw(f'  .amdhsa_next_free_vgpr {nv}')
            a.raw('  .amdhsa_next_free_sgpr 102')
            a.raw(f'  .amdhsa_accum_offset {nv}')
            a.raw('  .amdhsa_group_segment_fixed_size 0')
            a.raw('  .amdhsa_kernarg_size 104')
            a.raw('  .amdhsa_user_sgpr_count 2')
            a.raw('  .amdhsa_user_sgpr_kernarg_segment_ptr 1')
            a.raw('  .amdhsa_system_sgpr_workgroup_id_x 1')
            if y: a.raw('  .amdhsa_system_sgpr_workgroup_id_y 1')
            a.raw('.end_amdhsa_kernel')
        return a.text()

if __name__ == '__main__':
    p = argparse.ArgumentParser()
    p.add_argument('-o', default='cdna_kernels/' + NAME + '.s')
    p.add_argument('--kname', default=NAME + '_kernel')
    p.add_argument('--stamps', action='store_true')
    p.add_argument('--lazy', type=float, default=0)
    p.add_argument('--stg', default='')
    p.add_argument('--nt', action='store_true')
    p.add_argument('--list', default='mr')
    p.add_argument('--fine', action='store_true')
    p.add_argument('--dbg', action='store_true')
    p.add_argument('--dbgwg', type=int, default=37)
    p.add_argument('--tlb', type=int, default=0)
    p.add_argument('--lprio', type=int, default=0)
    p.add_argument('--rot', type=int, default=1)
    p.add_argument('--map', type=int, default=0)
    p.add_argument('--init4', action='store_true')
    p.add_argument('--kvstag', default='')
    p.add_argument('--kvat', type=int, default=0)
    p.add_argument('--kvstep', type=int, default=1)
    p.add_argument('--cap', type=int, default=-1)
    p.add_argument('--o2', action='store_true')
    p.add_argument('--ldst', action='store_true')
    p.add_argument('--stflag', default='')
    p.add_argument('--ldflag', default='')
    o = p.parse_args()
    if o.o2:
        WSLOT = [[8, 0, 1, 9], [2, 7, 3, 6], [4, 8, 9, 5], [0, 2, 6, 1]]
    if o.stflag: o.stflag = ' ' + o.stflag
    if o.ldflag: o.ldflag = ' ' + o.ldflag
    open(o.o, 'w').write(Gen(o).build())
```

```python
import sys, math, argparse

NAME = 'concat_heads__mha_block_cached__gqa_block_cached__near_ridge'

class Asm:
    def __init__(s): s.l = []
    def __call__(s, x):
        for y in x.split('\n'):
            y = y.strip()
            if y: s.l.append(y if y.endswith(':') else '    ' + y)
    def label(s, x): s.l.append(x + ':')
    def raw(s, x): s.l.append(x)
    def text(s): return '\n'.join(s.l) + '\n'

def vr(b, n=1):
    return f'v{b}' if n == 1 else f'v[{b}:{b+n-1}]'
def sr(b, n=1):
    return f's{b}' if n == 1 else f's[{b}:{b+n-1}]'

sX, sK, sV, sWQ, sWO, sWS, sST = 36, 40, 44, 48, 52, 56, 92
S_WAVE, S_BLK, S_HP, S_B = 3, 4, 5, 6
S_16K, S_32K, S_CS, S_NCS, S_LOOP, S_H, S_QG = 60, 61, 62, 63, 64, 65, 66
S_OB = 68
S_OFF, S_C, S_M0B, S_W1K = 76, 77, 78, 79
S_IDX = 80
O0, AB = 0, 192
QFr = lambda j, qt: 96 + (j * 3 + qt) * 8
SR = lambda kt, qt: 96 + (kt * 3 + qt) * 8 + 4
QA = lambda dt, qt: 96 + ((dt >> 1) * 3 + qt) * 8 + (dt & 1) * 4
XR = lambda ks, qt: ((ks >> 1) & 1) * 24 + (ks & 1) * 12 + qt * 4
XLDS = 131072
S_R2, S_T = 81, 82
S_XW, S_KVP = 88, 89
S_JJ = 84
V_X0, V_X1 = 251, 252
V_AK, V_AV, V_AQ, V_AO = 224, 225, 226, 227
V_AD = 228
V_M, V_L, V_AL, V_NMC, V_T = 236, 239, 242, 248, 251
V_ST, V_XO = 254, 255
NB = 8

SLOT = lambda i: i * 16384
QSLOT = [65536, 98304, 131072, 0, 32768, 65536, 98304, 131072]
WSLOT = [[8, 9, 0, 1], [2, 6, 7, 3], [4, 5, 8, 9], [0, 1, 2, 6]]
XCH = 49152

class Gen:
    def __init__(s, opt):
        s.o = opt
        s.a = Asm()

    def dstamp(s, idx):
        if not s.o.dbg: return
        a = s.a
        a('s_memtime s[98:99]')
        a('s_waitcnt lgkmcnt(0)')
        a('s_sub_u32 s98, s98, s97')
        a(f'v_writelane_b32 v{V_ST}, s98, {idx}')

    def dflush(s):
        if not s.o.dbg: return
        a = s.a
        a('s_memrealtime s[98:99]')
        a('s_waitcnt lgkmcnt(0)')
        a(f'v_writelane_b32 v{V_ST}, s98, 1')
        a(f'v_writelane_b32 v{V_ST}, s96, 0')
        a(f's_cmp_lg_u32 s{S_WAVE}, 0')
        a('s_cbranch_scc1 L_DBG_SKIP')
        a('v_mbcnt_lo_u32_b32 v4, -1, 0')
        a('v_mbcnt_hi_u32_b32 v4, -1, v4')
        a('v_lshlrev_b32 v1, 2, v4')
        a('s_lshl_b32 s7, s2, 8')
        a(f'buffer_store_dword v{V_ST}, v1, s[{sST}:{sST+3}], s7 offen')
        a.label('L_DBG_SKIP')
        a('s_waitcnt vmcnt(0)')

    def stamp(s, vst):
        if not s.o.stamps: return
        a = s.a
        a('s_memtime s[98:99]')
        a('s_waitcnt lgkmcnt(0)')
        a(f's_mov_b32 m0, s{S_IDX}')
        a(f's_add_u32 s{S_IDX}, s{S_IDX}, 1')
        a(f'v_writelane_b32 v{vst}, s98, m0')

    def stamp_flush(s, vst):
        if not s.o.stamps: return
        a = s.a
        a('s_memrealtime s[98:99]')
        a('s_waitcnt lgkmcnt(0)')
        a(f's_mov_b32 m0, 63')
        a('s_nop 0')
        a(f'v_writelane_b32 v{vst}, s98, m0')
        a(f'v_mbcnt_lo_u32_b32 v1, -1, 0')
        a(f'v_mbcnt_hi_u32_b32 v1, -1, v1')
        a(f'v_lshlrev_b32 v1, 2, v1')
        a(f's_lshl_b32 s7, s2, 3')
        a(f's_add_u32 s7, s7, s{S_WAVE}')
        a(f's_lshl_b32 s7, s7, 8')
        a(f'buffer_store_dword v{vst}, v1, s[{sST}:{sST+3}], s7 offen')
        a('s_waitcnt vmcnt(0)')

    def stream(s, frags, nb=NB, pre=(), prebar=False, mid=()):
        a = s.a
        n = len(frags)
        buf = lambda i: AB + 4 * (i % nb)
        issued = []
        done = [0]
        def iss(tag, ins):
            a(ins); issued.append(tag)
        def wait(tags, vm=None):
            idx = max([k for k, t in enumerate(issued) if t in tags], default=-1)
            for t in tags: assert t in issued, t
            cnt = len(issued) - 1 - idx
            w = []
            if vm is not None: w.append(f'vmcnt({vm})')
            if idx + 1 > done[0]:
                c = min(cnt, 15)
                w.append(f'lgkmcnt({c})')
                done[0] = len(issued) - c
            if w: a('s_waitcnt ' + ' '.join(w))
        for tag, ins in pre: iss(tag, ins)
        for i in range(min(nb - 1, n)):
            for x in frags[i]['rd'](buf(i)): iss(('A', i), x)
        for x in mid: a(x)
        for i, f in enumerate(frags):
            wait([('A', i)] + list(f.get('need', [])), f.get('pre_vm'))
            if f.get('bar'):
                a('s_barrier')
                if f.get('stamp'):
                    s.stamp(V_ST); done[0] = len(issued) if s.o.stamps else done[0]
            mm = f['mm'](buf(i))
            nx = [(('A', i + nb - 1), x) for x in frags[i + nb - 1]['rd'](buf(i + nb - 1))] if i + nb - 1 < n else []
            nx = nx + list(f.get('xrd', []))
            if 'ext' in f:
                ext = list(f['ext'])
                sh = [[], [], []]
                for k, t_ in enumerate(nx): sh[min(k, 2)].append(t_)
                k = 0
                while ext:
                    cap = 3 if k < 2 else 99
                    while ext and len(sh[k]) < cap: sh[k].append(ext.pop(0))
                    k += 1
                for k, m in enumerate(mm):
                    a(m)
                    for e in sh[k]:
                        if isinstance(e, tuple): iss(*e)
                        else: a(e)
                for x in f.get('post', []): a(x)
                continue
            for k, m in enumerate(mm):
                a(m)
                if k < len(nx): iss(*nx[k])
            for t in nx[len(mm):]: iss(*t)
            for x in f.get('post', []): a(x)

    def srd(s, d, pb, offreg, nrec):
        a = s.a
        a(f's_add_u32 s{d}, s{pb}, s{offreg}')
        a(f's_addc_u32 s{d+1}, s{pb+1}, 0')
        if isinstance(nrec, int): a(f's_mov_b32 s{d+2}, {nrec}')
        else: a(nrec)
        a(f's_mov_b32 s{d+3}, 0x00020000')

    def srd_kv(s):
        a = s.a
        a(f's_lshl_b32 s7, s{S_B}, 22')
        a(f's_lshl_b32 s18, s{S_HP}, 18')
        a('s_add_u32 s7, s7, s18')
        s.srd(sK, 10, 7, 262144)
        s.srd(sV, 12, 7, 262144)

    def srd_st(s):
        if s.o.stamps or s.o.dbg:
            s.a('s_mov_b32 s7, 0x2000000')
            s.srd(sST, 30, 7, 1 << 20)

    def jj(s):
        a = s.a
        for j in range(4):
            if s.o.rot:
                a(f's_add_u32 s7, s{S_B}, {j}')
                a(f's_and_b32 s{S_JJ+j}, s7, 3')
            else: a(f's_mov_b32 s{S_JJ+j}, {j}')

    def prologue(s):
        a = s.a
        a('s_cmp_ge_u32 s2, 256')
        a('s_cbranch_scc1 L_END')
        a('s_load_dwordx8 s[8:15], s[0:1], 0')
        a('s_load_dwordx8 s[20:27], s[0:1], 40')
        a('s_load_dwordx2 s[16:17], s[0:1], 32')
        a('s_load_dwordx2 s[28:29], s[0:1], 72')
        a('s_load_dwordx2 s[30:31], s[0:1], 96')
        if s.o.dbg:
            a('s_memrealtime s[96:97]')
            a('s_memtime s[98:99]')
            a('s_waitcnt lgkmcnt(0)')
            a('s_mov_b32 s97, s98')
            a(f'v_mov_b32 v{V_ST}, 0')
        a('s_and_b32 s7, s2, 7')
        a('s_lshr_b32 s18, s2, 3')
        a('s_lshr_b32 s19, s18, 3')
        if s.o.map == 0:
            a('s_lshl_b32 s7, s7, 2')
            a('s_add_u32 s7, s7, s19')
            a(f's_lshr_b32 s{S_BLK}, s7, 4')
            a(f's_and_b32 s{S_HP}, s7, 15')
        elif s.o.map == 1:
            a('s_lshl_b32 s7, s7, 1')
            a(f's_lshr_b32 s{S_BLK}, s19, 1')
            a('s_and_b32 s19, s19, 1')
            a(f's_add_u32 s{S_HP}, s7, s19')
        elif s.o.map == 2:
            a('s_lshl_b32 s7, s7, 1')
            a(f's_and_b32 s{S_BLK}, s19, 1')
            a('s_lshr_b32 s19, s19, 1')
            a(f's_add_u32 s{S_HP}, s7, s19')
        a(f's_and_b32 s{S_B}, s18, 7')
        a('v_lshrrev_b32 v1, 6, v0')
        a('v_and_b32 v0, 63, v0')
        a(f'v_readfirstlane_b32 s{S_WAVE}, v1')
        if s.o.stamps:
            a(f's_mov_b32 s{S_IDX}, 0')
            a(f'v_mov_b32 v{V_ST}, 0')
            a('s_memrealtime s[98:99]')
            a('s_waitcnt lgkmcnt(0)')
            a('s_mov_b32 m0, 62')
            a('s_nop 0')
            a(f'v_writelane_b32 v{V_ST}, s98, m0')
            s.stamp(V_ST)
        a(f's_and_b32 s7, s{S_HP}, 3')
        a('s_lshl_b32 s7, s7, 1')
        if s.o.rot == 2:
            a(f's_lshr_b32 s18, s{S_B}, 1')
            a('s_lshl_b32 s18, s18, 1')
            a('s_add_u32 s7, s7, s18')
        elif s.o.rot == 3:
            a(f's_and_b32 s7, s{S_HP}, 2')
            a('s_lshl_b32 s7, s7, 1')
            a(f's_and_b32 s18, s{S_B}, 6')
            a('s_add_u32 s7, s7, s18')
        elif s.o.rot == 5:
            a(f's_and_b32 s7, s{S_B}, 6')
        else:
            a(f's_add_u32 s7, s7, s{S_B}')
        a(f's_and_b32 s{S_R2}, s7, {7 if s.o.rot else 0}')
        a(f's_and_b32 s7, s{S_WAVE}, 3')
        a(f's_lshl_b32 s{S_W1K}, s7, 10')
        a('v_lshrrev_b32 v1, 4, v0')
        a('v_and_b32 v2, 15, v0')
        a('s_lshl_b32 s18, s7, 2')
        a('v_add_u32 v3, s18, v1')
        a('v_and_b32 v4, 7, v3')
        a('v_lshlrev_b32 v4, 1, v4')
        a('v_lshrrev_b32 v5, 3, v3')
        a('v_or_b32 v4, v4, v5')
        a('v_xor_b32 v5, v2, v4')
        a('v_lshlrev_b32 v5, 4, v5')
        a(f'v_lshlrev_b32 v6, 8, v3')
        a(f'v_add_u32 v10, v6, v5')
        a('v_lshrrev_b32 v6, 3, v0')
        a('v_lshlrev_b32 v6, 10, v6')
        a('v_and_b32 v7, 7, v0')
        a('v_xor_b32 v7, v7, v1')
        a('v_lshlrev_b32 v7, 4, v7')
        a('v_add_u32 v6, v6, v7')
        a('s_mul_i32 s18, s7, 24576')
        a('v_add_u32 v6, s18, v6')
        a('s_and_b32 s18, s7, 1')
        a('s_lshl_b32 s18, s18, 6')
        a(f'v_xor_b32 v13, s18, v6')
        a(f'v_xor_b32 v14, 64, v13')
        a(f's_mul_i32 s{S_XW}, s7, 3072')
        a(f's_add_u32 s{S_XW}, s{S_XW}, {XLDS}')
        a('s_lshl_b32 s18, s7, 3')
        a('v_add_u32 v6, s18, v1')
        a('v_lshlrev_b32 v6, 13, v6')
        a(f'v_add_u32 v11, v6, v5')
        a(f's_mul_i32 s19, s{S_B}, 98304')
        a(f's_lshl_b32 s18, s{S_HP}, 9')
        a(f's_cmp_eq_u32 s{S_BLK}, 0')
        a('s_waitcnt lgkmcnt(0)')
        for i in range(8): a(f's_cselect_b32 s{8+i}, s{8+i}, s{20+i}')
        a('s_cselect_b32 s16, s16, s28')
        a('s_cselect_b32 s17, s17, s29')
        s.srd(sX, 8, 19, 98304)
        s.srd(sWQ, 14, 18, f's_sub_u32 s{sWQ+2}, 4194304, s18')
        a(f's_cmp_lt_u32 s{S_WAVE}, 4')
        a('s_cbranch_scc1 L_COMPUTE')

    def loader(s):
        a = s.a; o = s.o
        nt = ' nt' if o.nt else ''
        if o.lprio: a(f's_setprio {o.lprio}')
        VKV, VWQ, VWO, VXA, VXB = 10, 11, 12, 13, 14
        cnt = [0]
        mark = {}
        def piece(m0expr, offexpr, voff, srd, flag=''):
            a(m0expr); a(offexpr)
            a(f'buffer_load_dwordx4 v{voff}, s[{srd}:{srd+3}], s{S_OFF} offen{flag} lds')
            cnt[0] += 1
        def X(j):
            a(f's_add_u32 s{S_T}, s{S_R2}, {j}')
            a(f's_and_b32 s{S_T}, s{S_T}, 7')
            a(f's_lshl_b32 s{S_T}, s{S_T}, 7')
            for u in range(3):
                piece(f's_add_u32 m0, s{S_XW}, {(j&1)*12288 + u*1024}', f's_add_u32 s{S_OFF}, s{S_T}, {u*8192}', VXB if u == 1 else VXA, sX)
            mark[('X', j)] = cnt[0]
        def WQ(st):
            a(f's_lshl_b32 s{S_T}, s{S_R2}, 1')
            a(f's_add_u32 s{S_T}, s{S_T}, {st}')
            a(f's_and_b32 s{S_T}, s{S_T}, 15')
            a(f's_lshl_b32 s{S_T}, s{S_T}, 18')
            for aa in range(2):
                for h in range(2):
                    m0 = 65536 + (st & 3) * 16384 + h * 8192 + aa * 4096
                    piece(f's_add_u32 m0, s{S_W1K}, {m0}', f's_add_u32 s{S_OFF}, s{S_T}, {aa*32768 + h*256}', VWQ, sWQ)
            mark[('W', st)] = cnt[0]
        def KV(srd, c, isv, hs=(0, 1)):
            for h in hs:
                for m in range(4):
                    m0 = (c & 1) * 65536 + isv * 32768 + h * 16384 + m * 4096
                    off = h * 131072 + c * 16384 + m * 4096
                    piece(f's_add_u32 m0, s{S_W1K}, {m0}', f's_mov_b32 s{S_OFF}, {off}', VKV, srd, nt)
        def KVdyn(srd, isv):
            for h in range(2):
                for m in range(4):
                    m0 = isv * 32768 + h * 16384 + m * 4096
                    off = h * 131072 + m * 4096
                    piece(f's_add_u32 m0, s{S_M0B}, {m0}', f's_add_u32 s{S_OFF}, s{S_C}, {off}', VKV, srd, nt)
        VLA = 16
        VKV2, VWQ2 = 18, 19
        SBUF = [32, 96, 160]
        ALLP = [(h, m, z) for h in range(2) for m in range(4) for z in range(2)]
        def STG(buf, srd, c, pcs, tag):
            for (h, m, z) in pcs:
                a(f's_mov_b32 s{S_OFF}, {h * 131072 + c * 16384 + m * 4096}')
                a(f'buffer_load_dwordx4 {vr(buf + 4 * (8 * h + 2 * m + z), 4)}, v{VKV2 if z == 0 else VKV}, s[{srd}:{srd+3}], s{S_OFF} offen{nt}')
                cnt[0] += 1
                mark[tag] = cnt[0]
        def STW(buf, c, isv, tag, hs=(0, 1)):
            a(f's_waitcnt vmcnt({cnt[0] - mark[tag]})')
            for h in hs:
                for m in range(4):
                    for z in range(2):
                        a(f'ds_write_b128 v{VLA + (c & 1)}, {vr(buf + 4 * (8 * h + 2 * m + z), 4)} offset:{isv * 32768 + h * 16384 + m * 4096 + z * 2048}')
            a('s_waitcnt lgkmcnt(0)')
        def X2(j):
            a(f's_add_u32 s{S_T}, s{S_R2}, {j}')
            a(f's_and_b32 s{S_T}, s{S_T}, 7')
            a(f's_lshl_b32 s{S_T}, s{S_T}, 7')
            for z in range(2):
                for u in range(3):
                    piece(f's_add_u32 m0, s{S_XW}, {(j&1)*12288 + u*1024 + z*6144}', f's_add_u32 s{S_OFF}, s{S_T}, {u*8192 + z*49152}', VXB if u == 1 else VXA, sX)
            mark[('X', j)] = cnt[0]
        def WQ2(st):
            a(f's_lshl_b32 s{S_T}, s{S_R2}, 1')
            a(f's_add_u32 s{S_T}, s{S_T}, {st}')
            a(f's_and_b32 s{S_T}, s{S_T}, 15')
            a(f's_lshl_b32 s{S_T}, s{S_T}, 18')
            for aa in range(2):
                for h in range(2):
                    for z in range(2):
                        m0 = 65536 + (st & 3) * 16384 + h * 8192 + aa * 4096 + z * 2048
                        piece(f's_add_u32 m0, s{S_W1K}, {m0}', f's_add_u32 s{S_OFF}, s{S_T}, {aa*32768 + h*256 + z*131072}', VWQ2 if z else VWQ, sWQ)
            mark[('W', st)] = cnt[0]
        def W(j, t):
            nh, kh = t >> 1, t & 1
            a(f's_lshl_b32 s{S_T}, s{S_JJ+j}, 7')
            for u in range(4):
                m0 = SLOT(WSLOT[j][t]) + u * 4096
                off = (kh * 128 + 32 * u) * 1024 + (nh * 256) * 2
                piece(f's_add_u32 m0, s{S_W1K}, {m0}', f's_add_u32 s{S_OFF}, s{S_T}, {off}', VWO, sWO)
        def wb(n, pre=False):
            if n is not None: a(f's_waitcnt vmcnt({n})')
            if pre and o.ldst: s.stamp(V_ST)
            a('s_barrier'); s.stamp(V_ST)
        def wbt(tags):
            m = max(mark[t] for t in tags)
            wb(cnt[0] - m)

        if o.fine:
            s.stamp(V_ST); X(0); s.stamp(V_ST); WQ(0); s.stamp(V_ST); WQ(1); X(1); WQ(2); WQ(3); s.stamp(V_ST)
            for n in (21, 19, 15, 11, 8, 4, 0):
                a(f's_waitcnt vmcnt({n})'); s.stamp(V_ST)
        elif o.init4:
            X(0); WQ(0); WQ(1); X(1); WQ(2); WQ(3)
        else:
            X(0); WQ(0); WQ(1); X(1)
        a(f's_and_b32 s7, s{S_WAVE}, 3')
        s.srd_kv()
        s.srd(sWO, 16, 18, 262144)
        s.srd_st()
        s.jj()
        a(f's_and_b32 s7, s{S_WAVE}, 3')
        a('v_lshrrev_b32 v6, 3, v0')
        a('v_lshlrev_b32 v6, 10, v6')
        a('v_and_b32 v7, 7, v0')
        a('v_lshrrev_b32 v7, 1, v7')
        a('v_xor_b32 v7, v7, v1')
        a('v_lshlrev_b32 v7, 5, v7')
        a('v_and_b32 v8, 1, v0')
        a('v_lshlrev_b32 v8, 4, v8')
        a('v_add_u32 v6, v6, v7')
        a('v_add_u32 v6, v6, v8')
        a('s_lshl_b32 s18, s7, 13')
        a(f'v_add_u32 v{VWO}, s18, v6')
        if o.stg:
            s0, npp = [int(x) for x in o.stg.split(',')]
            a(f's_cmp_ge_u32 s{S_WAVE}, 6')
            a('s_cbranch_scc1 L_LD_S')
            c_fork, m_fork = cnt[0], dict(mark)
            a(f'v_xor_b32 v{VWQ2}, 16, v{VWQ}')
            for st in range(16):
                tags = [('W', st)] + ([('X', st // 2)] if st % 2 == 0 else [])
                wbt(tags)
                if st <= 13: WQ2(st + 2)
                if st % 2 == 1 and (st + 3) // 2 <= 7: X2((st + 3) // 2)
            for _ in range(5): wb(None)
            wb(None); KV(sK, 4, 0)
            wb(None); KV(sV, 4, 1)
            wb(None); KV(sK, 5, 0)
            a('s_branch L_LD_M')
            a.label('L_LD_S')
            cnt[0] = c_fork; mark.clear(); mark.update(m_fork)
            a(f'v_xor_b32 v{VKV2}, 16, v{VKV}')
            a(f'v_subrev_u32 v{VKV2}, 2048, v{VKV2}')
            a(f'v_lshlrev_b32 v{VLA}, 4, v0')
            a(f's_sub_u32 s7, s{S_W1K}, 2048')
            a(f'v_add_u32 v{VLA}, s7, v{VLA}')
            a(f'v_add_u32 v{VLA+1}, 0x10000, v{VLA}')
            stg = [(SBUF[0], sK, 1, pc, 'K1') for pc in ALLP] + [(SBUF[1], sV, 1, pc, 'V1') for pc in ALLP] + [(SBUF[2], sK, 2, pc, 'K2') for pc in ALLP]
            for st in range(16):
                if st <= 2:
                    tags = [('W', st)] if st < 2 else []
                    tags += [('X', st // 2)] if st % 2 == 0 else []
                    wbt(tags)
                else: wb(None)
                if st >= s0:
                    k = npp if st < 13 else 99
                    while stg and k > 0:
                        b_, srd_, c_, pc_, tg_ = stg.pop(0)
                        STG(b_, srd_, c_, [pc_], tg_); k -= 1
                if st == 14: STW(SBUF[0], 1, 0, 'K1', (0,))
                if st == 15:
                    STW(SBUF[0], 1, 0, 'K1', (1,))
                    STG(SBUF[0], sV, 2, ALLP, 'V2')
            wb(None); STW(SBUF[1], 1, 1, 'V1'); STG(SBUF[1], sK, 3, ALLP, 'K3')
            wb(None); STW(SBUF[2], 2, 0, 'K2'); STG(SBUF[2], sV, 3, ALLP, 'V3')
            wb(None)
            wb(None)
            wb(None); STW(SBUF[0], 2, 1, 'V2')
            wb(None); KV(sK, 4, 0); STW(SBUF[1], 3, 0, 'K3')
            wb(None); KV(sV, 4, 1); STW(SBUF[2], 3, 1, 'V3')
            wb(None); KV(sK, 5, 0)
            a.label('L_LD_M')
            a(f's_mov_b32 s{S_LOOP}, 2')
            a(f's_mov_b32 s{S_C}, {5*16384}')
            a(f's_add_u32 s{S_M0B}, s{S_W1K}, 65536')
        else:
            for st in range(16):
                tags = [('W', st)] + ([('X', st // 2)] if st % 2 == 0 else [])
                wbt(tags)
                if (2 if (o.init4 or o.fine) else 0) <= st <= 13: WQ(st + 2)
                if st % 2 == 1 and (st + 3) // 2 <= 7: X((st + 3) // 2)
                if st == 14: KV(sK, 1, 0, (0,))
                if st == 15: KV(sK, 1, 0, (1,))
            wb(None); KV(sV, 1, 1)
            wb(None); KV(sK, 2, 0)
            a(f's_mov_b32 s{S_LOOP}, 5')
            a(f's_mov_b32 s{S_C}, {2*16384}')
            a(f's_mov_b32 s{S_M0B}, s{S_W1K}')
        a.label('L_LD_LOOP')
        wb(16)
        if o.cap >= 0: a(f's_waitcnt vmcnt({o.cap})')
        KVdyn(sV, 1)
        a(f's_add_u32 s{S_C}, s{S_C}, 16384')
        a(f's_xor_b32 s{S_M0B}, s{S_M0B}, 65536')
        wb(16)
        if o.cap >= 0: a(f's_waitcnt vmcnt({o.cap})')
        KVdyn(sK, 0)
        a(f's_sub_u32 s{S_LOOP}, s{S_LOOP}, 1')
        a(f's_cmp_lg_u32 s{S_LOOP}, 0')
        a('s_cbranch_scc1 L_LD_LOOP')
        if o.o2:
            W(0, 0); W(0, 3)
            wb(24); KV(sV, 7, 1)
            wb(24); W(0, 1); W(0, 2)
            wb(24); W(1, 0)
            wb(12, True)
            wb(None); W(1, 3); W(1, 1)
            wb(12, True)
            wb(None)
            wb(None); W(1, 2); W(2, 0); W(2, 3); W(2, 1); W(2, 2)
            wb(24, True)
            wb(16, True); W(3, 0); W(3, 3)
            wb(16, True); W(3, 1); W(3, 2)
            wb(16, True)
            wb(8, True)
            wb(0, True)
        else:
            wb(16)
            if o.cap >= 0: a(f's_waitcnt vmcnt({o.cap})')
            KV(sV, 7, 1)
            wb(16)
            for t in range(4): W(0, t)
            wb(24); W(1, 0)
            wb(20)
            a('s_barrier'); s.stamp(V_ST)
            W(1, 1); W(1, 2)
            wb(12); W(1, 3); W(2, 0); W(2, 1)
            wb(8); W(2, 2); W(2, 3); W(3, 0); W(3, 1)
            wb(8); W(3, 2); W(3, 3)
            wb(0)
        s.stamp_flush(V_ST)
        a('s_endpgm')

    def compute(s):
        a = s.a; o = s.o
        cs = (128 ** -0.5) * math.log2(math.e)
        import struct
        fb = lambda x: struct.unpack('<I', struct.pack('<f', x))[0]
        a.label('L_COMPUTE')
        s.srd_kv()
        a(f's_lshl_b32 s7, s{S_BLK}, 4')
        a(f's_add_u32 s7, s7, s{S_HP}')
        a('s_lshl_b32 s7, s7, 3')
        a(f's_add_u32 s7, s7, s{S_B}')
        a('s_mul_i32 s7, s7, 98304')
        s.srd(sWS, 30, 7, 98304)
        s.srd_st()
        s.jj()
        a(f's_and_b32 s{S_H}, s{S_WAVE}, 1')
        a(f's_lshr_b32 s{S_QG}, s{S_WAVE}, 1')
        a(f's_mov_b32 s{S_KVP}, s{S_B}')
        a(f'v_mov_b32 v{V_XO}, v10')
        a('v_and_b32 v1, 15, v0')
        a('v_lshrrev_b32 v2, 4, v0')
        a(f's_mul_i32 s7, s{S_QG}, 48')
        a('v_add_u32 v3, s7, v1')
        a('v_lshlrev_b32 v3, 7, v3')
        a('v_lshrrev_b32 v4, 1, v1')
        a('v_xor_b32 v4, v4, v2')
        a('v_lshlrev_b32 v4, 4, v4')
        a('v_add_u32 v3, v3, v4')
        a(f'v_add_u32 v{V_X0}, {XLDS}, v3')
        a(f'v_xor_b32 v{V_X1}, 64, v{V_X0}')
        a(f's_mov_b32 s{S_CS}, {hex(fb(cs))}')
        a(f's_mov_b32 s{S_NCS}, {hex(fb(-cs))}')
        def ffun(dst, src, tmp):
            a(f'v_and_b32 v{dst}, 7, v{src}')
            a(f'v_lshlrev_b32 v{dst}, 1, v{dst}')
            a(f'v_lshrrev_b32 v{tmp}, 3, v{src}')
            a(f'v_or_b32 v{dst}, v{dst}, v{tmp}')
        ffun(5, 1, 6)
        a('v_lshrrev_b32 v6, 1, v2')
        a('v_xor_b32 v5, v5, v6')
        a('v_lshlrev_b32 v5, 4, v5')
        a('v_lshlrev_b32 v6, 8, v1')
        a('v_add_u32 v5, v5, v6')
        a('v_and_b32 v6, 1, v2')
        a('v_lshlrev_b32 v6, 3, v6')
        a('v_add_u32 v5, v5, v6')
        a(f's_lshl_b32 s7, s{S_H}, 14')
        a(f'v_add_u32 v{V_AK}, s7, v5')
        a('v_lshrrev_b32 v7, 2, v1')
        a('v_lshlrev_b32 v8, 2, v2')
        a('v_add_u32 v8, v8, v7')
        a('v_and_b32 v9, 3, v0')
        ffun(5, 8, 6)
        a('v_lshrrev_b32 v6, 1, v9')
        a('v_xor_b32 v5, v5, v6')
        a('v_lshlrev_b32 v5, 4, v5')
        a('v_lshlrev_b32 v6, 8, v8')
        a('v_add_u32 v5, v5, v6')
        a('v_and_b32 v6, 1, v9')
        a('v_lshlrev_b32 v6, 3, v6')
        a('v_add_u32 v5, v5, v6')
        a(f's_add_u32 s18, s7, 32768')
        a(f'v_add_u32 v{V_AV}, s18, v5')
        a(f's_lshl_b32 s7, s{S_H}, 13')
        a(f'v_add_u32 v{V_AQ}, s7, v5')
        a('v_lshrrev_b32 v5, 1, v8')
        a('v_and_b32 v5, 3, v5')
        a('v_lshlrev_b32 v5, 5, v5')
        a('v_lshlrev_b32 v6, 7, v8')
        a('v_add_u32 v5, v5, v6')
        a('v_lshlrev_b32 v6, 3, v9')
        a(f'v_add_u32 v{V_AO}, v5, v6')
        for j in range(4): a(f's_mul_i32 s{S_JJ+j}, s{S_JJ+j}, 6144')
        a(f's_cmp_eq_u32 s{S_H}, 0')
        for j in range(4):
            a(f's_cselect_b32 s{S_OB+2*j}, {WSLOT[j][0]}, {WSLOT[j][3]}')
            a(f's_cselect_b32 s{S_OB+2*j+1}, {WSLOT[j][1]}, {WSLOT[j][2]}')
        for j in range(8): a(f's_lshl_b32 s{S_OB+j}, s{S_OB+j}, 14')
        def addr8(base_v, add=None):
            if add is not None:
                a(f'v_add_u32 v{V_AD}, {add}, v{base_v}')
            else:
                a(f'v_mov_b32 v{V_AD}, v{base_v}')
            for u in range(1, 8): a(f'v_xor_b32 v{V_AD+u}, {u<<5}, v{V_AD}')
        MF = 'v_mfma_f32_16x16x32_bf16'
        nt = ' nt' if o.nt else ''
        addr8(V_AQ, 65536)
        def xrd(j):
            r = []
            for kk in range(2):
                for qt in range(3):
                    r.append((('X', j, kk), f'ds_read_b128 {vr(XR(2*j+kk,qt),4)}, v{V_X1 if kk else V_X0} offset:{(j&1)*12288+qt*2048}'))
            return r
        def kv0(isv, h, m):
            return [f's_add_u32 m0, s{S_W1K}, {isv*32768 + h*16384 + m*4096}', f's_mov_b32 s{S_OFF}, {h*131072 + m*4096}',
                    f'buffer_load_dwordx4 v{V_XO}, s[{(sV if isv else sK)}:{(sV if isv else sK)+3}], s{S_OFF} offen{nt} lds']
        frags = []
        for st in range(16):
            for dt in range(8):
                def rd(buf, dt=dt, st=st):
                    return [f'ds_read_b64_tr_b16 {vr(buf,2)}, v{V_AD+dt} offset:{(st&3)*16384}',
                            f'ds_read_b64_tr_b16 {vr(buf+2,2)}, v{V_AD+dt} offset:{(st&3)*16384+4096}']
                def mm(buf, dt=dt, st=st):
                    r = []
                    for qt in range(3):
                        d = vr(QA(dt, qt), 4)
                        c = '0' if st == 0 else d
                        r.append(f'{MF} {d}, {vr(buf,4)}, {vr(XR(st,qt),4)}, {c}')
                    return r
                f = dict(rd=rd, mm=mm, post=[], xrd=[])
                if dt == 0: f['need'] = [('X', st // 2, st & 1)]
                if dt == 1 and st < 15:
                    f['bar'] = True
                    if st in (3, 7, 11): f['stamp'] = True
                frags.append(f)
        for j in range(1, 8):
            xs = xrd(j)
            for k, t in enumerate(xs): frags[8 * (2 * j - 1) + 1 + k // 2]['xrd'].append(t)
            frags[8 * (2 * j) + 1]['need'] = [('X', j, 1)]
        preblk = []
        if o.kvstag:
            pos = [int(x) for x in o.kvstag.split(',')]
            assert len(pos) == 8
            for fr in sorted(set(pos)):
                mask = sum(1 << p for p in range(8) if pos[p] == fr)
                blk = [f's_lshr_b32 s7, {mask}, s{S_KVP}', 's_bitcmp1_b32 s7, 0', f's_cbranch_scc0 L_KVS{fr}']
                for isv in range(2):
                    for h in range(2):
                        for m in range(4): blk += kv0(isv, h, m)
                blk.append(f'L_KVS{fr}:')
                if fr >= 900: preblk += blk
                else: frags[fr]['post'] += blk
        else:
            k = o.kvat
            for isv in range(2):
                for h in range(2):
                    for m in range(4):
                        frags[k]['post'] += kv0(isv, h, m); k += o.kvstep
        zl = list(range(48, 96))
        for i, z in enumerate(zl): frags[24 + i]['post'].append(f'v_mov_b32 v{z}, 0')
        for i in range(24): frags[8 * 14 + 1 + (i // 2)]['post'].append(f'v_mov_b32 v{i}, 0')
        for i in range(12): frags[8 * 15 + 1 + (i // 2)]['post'].append(f'v_mov_b32 v{24+i}, 0')
        def qcvt(j):
            r = []
            for qt in range(3):
                b = QFr(j, qt)
                for i in range(4): r.append(f'v_cvt_pk_bf16_f32 v{b+i}, v{b+2*i}, v{b+2*i+1}')
            return r
        c0, c1, c2 = qcvt(0), qcvt(1), qcvt(2)
        frags[8*15+3]['post'] += c0[:6]; frags[8*15+4]['post'] += c0[6:]
        frags[8*15+5]['post'] += c1[:6]; frags[8*15+6]['post'] += c1[6:]
        frags[8*15+7]['post'] += c2[:6]
        for x in preblk: a(x)
        a('s_barrier'); s.stamp(V_ST); s.dstamp(2)
        s.stream(frags, pre=xrd(0))
        for x in c2[6:]: a(x)
        for i in range(12): a(f'v_mov_b32 v{36+i}, 0')
        for qt in range(3):
            a(f'v_mov_b32 v{V_M+qt}, 0xff800000')
            a(f'v_mov_b32 v{V_L+qt}, 0')
        for x in qcvt(3): a(x)
        if s.o.lazy:
            for qt in range(3): a(f'v_mov_b32 v{V_NMC+qt}, 0x7f800000')
        s.stamp(V_ST); s.dstamp(4)
        a('s_waitcnt vmcnt(8)')
        a(f's_mov_b32 s{S_LOOP}, 8')
        a.label('L_ATT')
        addr8(V_AK)
        a('s_barrier'); s.stamp(V_ST)
        if s.o.dbg:
            a(f's_cmp_lg_u32 s{S_LOOP}, 8'); a('s_cbranch_scc1 L_DB0'); s.dstamp(5); a.label('L_DB0')
            a(f's_cmp_lg_u32 s{S_LOOP}, 4'); a('s_cbranch_scc1 L_DB1'); s.dstamp(6); a.label('L_DB1')
        frags = []
        for j in range(4):
            for kt in range(4):
                def rd(buf, j=j, kt=kt):
                    return [f'ds_read_b64 {vr(buf,2)}, v{V_AD+2*j} offset:{kt*4096}',
                            f'ds_read_b64 {vr(buf+2,2)}, v{V_AD+2*j+1} offset:{kt*4096}']
                def mm(buf, j=j, kt=kt):
                    r = []
                    for qt in range(3):
                        d = vr(SR(kt, qt), 4)
                        c = '0' if j == 0 else d
                        r.append(f'{MF} {d}, {vr(buf,4)}, {vr(QFr(j,qt),4)}, {c}')
                    return r
                frags.append(dict(rd=rd, mm=mm))
        s.stream(frags)
        addr8(V_AV)
        a(f'v_xor_b32 v{V_AK}, 65536, v{V_AK}')
        a(f'v_xor_b32 v{V_AV}, 65536, v{V_AV}')
        SQ = lambda qt: [SR(kt, qt) + i for kt in range(4) for i in range(4)]
        lazy = s.o.lazy
        MX = [V_AL + 2 * q + 1 for q in range(3)] if lazy else [V_NMC + q for q in range(3)]
        for qt in range(3):
            r = SQ(qt)
            a(f'v_max3_f32 v{MX[qt]}, v{r[0]}, v{r[1]}, v{r[2]}')
        for i in range(6):
            for qt in range(3):
                r = SQ(qt)
                a(f'v_max3_f32 v{MX[qt]}, v{MX[qt]}, v{r[3+2*i]}, v{r[4+2*i]}')
        for qt in range(3):
            r = SQ(qt)
            if lazy: a(f'v_max_f32 v{MX[qt]}, v{MX[qt]}, v{r[15]}')
            else: a(f'v_max3_f32 v{MX[qt]}, v{MX[qt]}, v{r[15]}, v{V_M+qt}')
        def rescale():
            for dt in range(8):
                for qt in range(3):
                    b = O0 + (dt * 3 + qt) * 4
                    for hh in range(2):
                        a(f'v_pk_mul_f32 {vr(b+2*hh,2)}, {vr(b+2*hh,2)}, {vr(V_AL+2*qt,2)} op_sel_hi:[1,0]')
        if lazy:
            for qt in range(3): a(f'v_fma_f32 v{V_T+qt}, v{MX[qt]}, s{S_CS}, v{V_NMC+qt}')
            a(f'v_max3_f32 v{V_T}, v{V_T}, v{V_T+1}, v{V_T+2}')
            a(f'v_cmp_lt_f32 vcc, {hex(fb(float(lazy)))}, v{V_T}')
            a('s_cbranch_vccz L_FAST')
            for qt in range(3): a(f'v_max_f32 v{MX[qt]}, v{MX[qt]}, v{V_M+qt}')
        for sw in ('v_permlane16_swap_b32', 'v_permlane32_swap_b32'):
            for qt in range(3): a(f'v_mov_b32 v{V_T+qt}, v{MX[qt]}')
            a('s_nop 0')
            for qt in range(3): a(f'{sw} v{MX[qt]}, v{V_T+qt}')
            a('s_nop 0')
            for qt in range(3): a(f'v_max_f32 v{MX[qt]}, v{MX[qt]}, v{V_T+qt}')
        for qt in range(3): a(f'v_sub_f32 v{V_T+qt}, v{V_M+qt}, v{MX[qt]}')
        for qt in range(3): a(f'v_mul_f32 v{V_T+qt}, s{S_CS}, v{V_T+qt}')
        for qt in range(3): a(f'v_exp_f32 v{V_AL+2*qt}, v{V_T+qt}')
        for qt in range(3): a(f'v_mov_b32 v{V_M+qt}, v{MX[qt]}')
        for qt in range(3): a(f'v_mul_f32 v{V_NMC+qt}, s{S_NCS}, v{MX[qt]}')
        if lazy:
            for qt in range(3): a(f'v_mul_f32 v{V_L+qt}, v{V_L+qt}, v{V_AL+2*qt}')
            rescale()
            a.label('L_FAST')
        for qt in range(3):
            r = SQ(qt)
            for i in range(0, 16, 4):
                for k in range(4): a(f'v_fma_f32 v{r[i+k]}, v{r[i+k]}, s{S_CS}, v{V_NMC+qt}')
                for k in range(4): a(f'v_exp_f32 v{r[i+k]}, v{r[i+k]}')
        if not lazy: rescale()
        TP = V_AB_T = AB
        for qt in range(3):
            r = SQ(qt)
            a(f'v_pk_add_f32 {vr(TP+2*qt,2)}, {vr(r[0],2)}, {vr(r[2],2)}')
        for i in range(2, 8):
            for qt in range(3):
                r = SQ(qt)
                a(f'v_pk_add_f32 {vr(TP+2*qt,2)}, {vr(TP+2*qt,2)}, {vr(r[2*i],2)}')
        if lazy:
            for qt in range(3): a(f'v_add_f32 v{V_L+qt}, v{V_L+qt}, v{TP+2*qt}')
        else:
            for qt in range(3): a(f'v_fma_f32 v{V_L+qt}, v{V_L+qt}, v{V_AL+2*qt}, v{TP+2*qt}')
        for qt in range(3): a(f'v_add_f32 v{V_L+qt}, v{V_L+qt}, v{TP+2*qt+1}')
        for qt in range(3):
            for kk in range(2):
                b = SR(2 * kk, qt); b2 = SR(2 * kk + 1, qt)
                a(f'v_cvt_pk_bf16_f32 v{b}, v{b}, v{b+1}')
                a(f'v_cvt_pk_bf16_f32 v{b+1}, v{b+2}, v{b+3}')
                a(f'v_cvt_pk_bf16_f32 v{b+2}, v{b2}, v{b2+1}')
                a(f'v_cvt_pk_bf16_f32 v{b+3}, v{b2+2}, v{b2+3}')
        a('s_waitcnt vmcnt(0)')
        a('s_barrier'); s.stamp(V_ST)
        frags = []
        for dt in range(8):
            for kk in range(2):
                def rd(buf, dt=dt, kk=kk):
                    return [f'ds_read_b64_tr_b16 {vr(buf,2)}, v{V_AD+dt} offset:{kk*8192}',
                            f'ds_read_b64_tr_b16 {vr(buf+2,2)}, v{V_AD+dt} offset:{kk*8192+4096}']
                def mm(buf, dt=dt, kk=kk):
                    r = []
                    for qt in range(3):
                        d = vr(O0 + (dt * 3 + qt) * 4, 4)
                        r.append(f'{MF} {d}, {vr(buf,4)}, {vr(SR(2*kk,qt),4)}, {d}')
                    return r
                frags.append(dict(rd=rd, mm=mm))
        s.stream(frags)
        a(f's_sub_u32 s{S_LOOP}, s{S_LOOP}, 1')
        a(f's_cmp_lg_u32 s{S_LOOP}, 0')
        a('s_cbranch_scc1 L_ATT')
        s.stamp(V_ST); s.dstamp(7)
        if o.o2: s.ophase2()
        else:
            for sw in ('v_permlane16_swap_b32', 'v_permlane32_swap_b32'):
                for qt in range(3): a(f'v_mov_b32 v{V_T+qt}, v{V_L+qt}')
                a('s_nop 0')
                for qt in range(3): a(f'{sw} v{V_L+qt}, v{V_T+qt}')
                a('s_nop 0')
                for qt in range(3): a(f'v_add_f32 v{V_L+qt}, v{V_L+qt}, v{V_T+qt}')
            for qt in range(3): a(f'v_rcp_f32 v{V_AL+2*qt}, v{V_L+qt}')
            a('s_nop 0')
            a('v_mbcnt_lo_u32_b32 v251, -1, 0')
            a('v_mbcnt_hi_u32_b32 v251, -1, v251')
            a('v_lshlrev_b32 v251, 4, v251')
            a(f's_mul_i32 s7, s{S_WAVE}, 12288')
            a(f's_add_u32 s7, s7, {XCH}')
            a('v_add_u32 v252, s7, v251')
            a(f's_xor_b32 s18, s{S_WAVE}, 1')
            a(f's_mul_i32 s18, s18, 12288')
            a(f's_add_u32 s18, s18, {XCH}')
            a('v_add_u32 v253, s18, v251')
            a(f's_mul_i32 s7, s{S_WAVE}, 24576')
            a(f'v_add_u32 v{V_XO}, s7, v251')
            for j in range(4):
                for qt in range(3):
                    for t in range(2):
                        b = O0 + ((2 * j + t) * 3 + qt) * 4
                        for hh in range(2):
                            a(f'v_pk_mul_f32 {vr(b+2*hh,2)}, {vr(b+2*hh,2)}, {vr(V_AL+2*qt,2)} op_sel_hi:[1,0]')
                    for t in range(2):
                        src = O0 + ((2 * j + t) * 3 + qt) * 4
                        dst = QFr(j, qt) + 2 * t
                        a(f'v_cvt_pk_bf16_f32 v{dst}, v{src}, v{src+1}')
                        a(f'v_cvt_pk_bf16_f32 v{dst+1}, v{src+2}, v{src+3}')
                    a(f'ds_write_b128 v252, {vr(QFr(j,qt),4)} offset:{(j*3+qt)*1024}')
            a('s_waitcnt lgkmcnt(0)')
            a('s_barrier'); s.stamp(V_ST); s.dstamp(8)
            for i in range(12): a(f'ds_read_b128 {vr(96+8*i+4,4)}, v253 offset:{i*1024}')
            a('s_waitcnt lgkmcnt(0)')
            stf = o.stflag
            def epi(j):
                r = []
                base = 48 * (j & 1)
                for u in range(2):
                    for qt in range(3):
                        b = base + (u * 3 + qt) * 8
                        grp = [f'v_cvt_pk_bf16_f32 v{b+i}, v{b+2*i}, v{b+2*i+1}' for i in range(4)]
                        off = (u * 3 + qt) * 1024
                        grp.append(f's_add_u32 s7, s{S_JJ+j}, {off}')
                        grp.append(f'buffer_store_dwordx4 {vr(b,4)}, v{V_XO}, s[{sWS}:{sWS+3}], s7 offen{stf}')
                        r.append(grp)
                return r
            for j in range(4):
                for half in range(2):
                    a(f'v_add_u32 v{V_AD+4*half}, s{S_OB+2*j+half}, v{V_AO}')
                    for nt_ in range(1, 4): a(f'v_xor_b32 v{V_AD+4*half+nt_}, {nt_<<5}, v{V_AD+4*half}')
                a('s_barrier'); s.stamp(V_ST); s.dstamp(9 + j)
                base = 48 * (j & 1)
                frags = []
                for half in range(2):
                    for jj in range(4):
                        for nt_ in range(4):
                            def rd(buf, half=half, jj=jj, nt_=nt_):
                                return [f'ds_read_b64_tr_b16 {vr(buf,2)}, v{V_AD+4*half+nt_} offset:{jj*4096}',
                                        f'ds_read_b64_tr_b16 {vr(buf+2,2)}, v{V_AD+4*half+nt_} offset:{jj*4096+2048}']
                            def mm(buf, half=half, jj=jj, nt_=nt_):
                                r = []
                                for qt in range(3):
                                    d = vr(base + ((nt_ >> 1) * 3 + qt) * 8 + (nt_ & 1) * 4, 4)
                                    c = '0' if (half == 0 and jj == 0) else d
                                    bsrc = QFr(jj, qt) + 4 * half
                                    r.append(f'{MF} {d}, {vr(buf,4)}, {vr(bsrc,4)}, {c}')
                                return r
                            frags.append(dict(rd=rd, mm=mm))
                if j > 0:
                    for k, grp in enumerate(epi(j - 1)):
                        frags[3 + 4 * k]['post'] = grp
                s.stream(frags)
            s.stamp(V_ST)
            a('s_nop 7')
            for grp in epi(3):
                for x in grp: a(x)
        s.stamp(V_ST); s.dstamp(13)
        if s.o.dbg:
            a('s_waitcnt vmcnt(0)'); s.dstamp(14)
        s.dflush()
        s.stamp_flush(V_ST)
        a('s_endpgm')


    def ophase2(s):
        a = s.a; o = s.o
        MF = 'v_mfma_f32_16x16x32_bf16'
        stf = o.stflag
        a('s_barrier'); s.stamp(V_ST)
        def aset(hs):
            st_ = V_AD + 4 * (hs & 1)
            return [f'v_add_u32 v{st_}, s{S_OB+hs}, v{V_AO}'] + [f'v_xor_b32 v{st_+k}, {k<<5}, v{st_}' for k in range(1, 4)]
        for x in aset(0) + aset(1): a(x)
        mid = []
        for sw in ('v_permlane16_swap_b32', 'v_permlane32_swap_b32'):
            for qt in range(3): mid.append(f'v_mov_b32 v{V_T+qt}, v{V_L+qt}')
            mid.append('s_nop 0')
            for qt in range(3): mid.append(f'{sw} v{V_L+qt}, v{V_T+qt}')
            mid.append('s_nop 0')
            for qt in range(3): mid.append(f'v_add_f32 v{V_L+qt}, v{V_L+qt}, v{V_T+qt}')
        for qt in range(3): mid.append(f'v_rcp_f32 v{V_AL+2*qt}, v{V_L+qt}')
        mid += ['v_mbcnt_lo_u32_b32 v251, -1, 0', 'v_mbcnt_hi_u32_b32 v251, -1, v251', 'v_lshlrev_b32 v251, 4, v251',
                f's_mul_i32 s7, s{S_WAVE}, 12288', f's_add_u32 s7, s7, {XCH}', 'v_add_u32 v252, s7, v251',
                f's_xor_b32 s18, s{S_WAVE}, 1', 's_mul_i32 s18, s18, 12288', f's_add_u32 s18, s18, {XCH}', 'v_add_u32 v253, s18, v251',
                f's_mul_i32 s7, s{S_WAVE}, 24576', f'v_add_u32 v{V_XO}, s7, v251']
        def grp(j):
            r = []
            for qt in range(3):
                for t in range(2):
                    b = O0 + ((2 * j + t) * 3 + qt) * 4
                    for hh in range(2):
                        r.append(f'v_pk_mul_f32 {vr(b+2*hh,2)}, {vr(b+2*hh,2)}, {vr(V_AL+2*qt,2)} op_sel_hi:[1,0]')
                for t in range(2):
                    src = O0 + ((2 * j + t) * 3 + qt) * 4
                    dst = QFr(j, qt) + 2 * t
                    r.append(f'v_cvt_pk_bf16_f32 v{dst}, v{src}, v{src+1}')
                    r.append(f'v_cvt_pk_bf16_f32 v{dst+1}, v{src+2}, v{src+3}')
            return r
        def xw(j): return [(('XW', j, qt), f'ds_write_b128 v252, {vr(QFr(j,qt),4)} offset:{(j*3+qt)*1024}') for qt in range(3)]
        mid += grp(0) + grp(1) + ['s_nop 1']
        L = grp(2) + xw(0) + xw(1) + xw(2) + grp(3) + xw(3)
        assert len(L) == 60
        def epi(j, us=(0, 1)):
            r = []
            base = 48 * (j & 1)
            for u in us:
                for qt in range(3):
                    b = base + (u * 3 + qt) * 8
                    r += [f'v_cvt_pk_bf16_f32 v{b+i}, v{b+2*i}, v{b+2*i+1}' for i in range(4)]
                    r.append(f's_add_u32 s7, s{S_JJ+j}, {(u * 3 + qt) * 1024}')
                    r.append(f'buffer_store_dwordx4 {vr(b,4)}, v{V_XO}, s[{sWS}:{sWS+3}], s7 offen{stf}')
            return r
        frags = []
        for hs in range(8):
            j, half = hs >> 1, hs & 1
            base = 48 * (j & 1)
            order = [(jj, n_) for jj in range(4) for n_ in range(4)]
            if hs == 7: order = [(jj, n_) for n_ in range(4) for jj in range(4)]
            for jj, nt_ in order:
                def rd(buf, half=half, jj=jj, nt_=nt_):
                    return [f'ds_read_b64_tr_b16 {vr(buf,2)}, v{V_AD+4*half+nt_} offset:{jj*4096}',
                            f'ds_read_b64_tr_b16 {vr(buf+2,2)}, v{V_AD+4*half+nt_} offset:{jj*4096+2048}']
                def mm(buf, half=half, jj=jj, nt_=nt_, base=base):
                    r = []
                    for qt in range(3):
                        d = vr(base + ((nt_ >> 1) * 3 + qt) * 8 + (nt_ & 1) * 4, 4)
                        c = '0' if (half == 0 and jj == 0) else d
                        r.append(f'{MF} {d}, {vr(buf,4)}, {vr(QFr(jj, qt) + 4 * half,4)}, {c}')
                    return r
                frags.append(dict(rd=rd, mm=mm, ext=[], need=[]))
        for i in range(10): frags[i]['ext'] += L[6 * i:6 * i + 6]
        for i in (9, 11, 18, 25, 41, 57, 73, 89, 105):
            frags[i]['bar'] = True
            if i in (25, 57, 89): frags[i]['stamp'] = True
        frags[11]['need'] += [('XW', j, qt) for j in range(4) for qt in range(3)]
        for j in range(4):
            frags[11 + j]['ext'] += [(('XR', j, qt), f'ds_read_b128 {vr(QFr(j,qt)+4,4)}, v253 offset:{(j*3+qt)*1024}') for qt in range(3)]
            frags[16 + 4 * j]['need'] += [('XR', j, qt) for qt in range(3)]
        frags[18]['need'] += [('XR', j, qt) for j in range(4) for qt in range(3)]
        for hs in range(2, 8): frags[16 * hs - 12]['ext'] += aset(hs)
        for j in range(3):
            e = epi(j)
            for k in range(12): frags[32 * (j + 1) + 5 + k]['ext'] += e[3 * k:3 * k + 3]
        e = epi(3, (0,))
        for k in range(6): frags[122 + k]['ext'] += e[3 * k:3 * k + 3]
        s.stream(frags, mid=mid)
        s.stamp(V_ST)
        a('s_nop 7')
        for x in epi(3, (1,)): a(x)

    def reduce(s):
        a = s.a; o = s.o
        a.raw('.p2align 8'); a.raw('.type red_kernel,@function'); a.label('red_kernel')
        a(f's_cmp_ge_u32 s2, {96//o.redw}')
        a('s_cbranch_scc1 L_REND')
        a('s_load_dwordx2 s[4:5], s[0:1], 80')
        a('s_load_dwordx2 s[6:7], s[0:1], 96')
        a('v_lshrrev_b32 v1, 6, v0')
        a('v_and_b32 v0, 63, v0')
        a('v_readfirstlane_b32 s8, v1')
        a('s_nop 3')
        if o.dbg:
            a('s_load_dwordx2 s[32:33], s[0:1], 88')
            a('s_memrealtime s[34:35]')
            a('s_or_b32 s9, s2, s3'); a('s_or_b32 s9, s9, s8')
            a('s_cmp_lg_u32 s9, 0')
            a('s_cbranch_scc1 L_RNODBG')
            a('s_waitcnt lgkmcnt(0)')
            a('s_add_u32 s40, s6, 0x2000000'); a('s_addc_u32 s41, s7, 0'); a('s_mov_b32 s42, 0x100000'); a('s_mov_b32 s43, 0x00020000')
            a('s_mov_b32 s44, s32'); a('s_mov_b32 s45, s33'); a('s_mov_b32 s46, 256'); a('s_mov_b32 s47, 0x00020000')
            a('v_lshlrev_b32 v90, 8, v0')
            for k in range(4):
                a(f's_mov_b32 s9, {k*16384}')
                a(f'buffer_load_dwordx2 v[{92+2*k}:{93+2*k}], v90, s[40:43], s9 offen')
            a('v_lshlrev_b32 v91, 2, v0')
            a(f's_mov_b32 s9, {o.dbgwg*256}')
            a('buffer_load_dword v100, v91, s[40:43], s9 offen')
            a('s_waitcnt vmcnt(0)')
            a('v_min_u32 v92, v92, v94'); a('v_min_u32 v96, v96, v98'); a('v_min_u32 v102, v92, v96')
            a('v_max_u32 v93, v93, v95'); a('v_max_u32 v97, v97, v99'); a('v_max_u32 v103, v93, v97')
            a('v_readlane_b32 s36, v102, 0'); a('v_readlane_b32 s37, v103, 0')
            for l in range(1, 64):
                a(f'v_readlane_b32 s38, v102, {l}'); a(f'v_readlane_b32 s39, v103, {l}')
                a('s_min_u32 s36, s36, s38'); a('s_max_u32 s37, s37, s39')
            a('s_sub_u32 s38, s37, s36'); a('s_sub_u32 s39, s34, s37')
            a('v_writelane_b32 v100, s38, 0'); a('v_writelane_b32 v100, s39, 1')
            a('v_cmp_gt_u32 vcc, 16, v0'); a('s_and_saveexec_b64 s[48:49], vcc')
            a('buffer_store_dword v100, v91, s[44:47], 0 offen')
            a('s_mov_b64 exec, s[48:49]')
            a.label('L_RNODBG')
        a('s_lshl_b32 s9, s2, 2') if o.redw == 4 else a(f's_mul_i32 s9, s2, {o.redw}')
        a('s_add_u32 s8, s8, s9')
        a('s_lshr_b32 s10, s3, 3')
        a('s_and_b32 s11, s3, 7')
        a('s_lshl_b32 s12, s10, 7')
        a('s_add_u32 s12, s12, s11')
        a('s_mul_i32 s12, s12, 98304')
        a('s_lshl_b32 s13, s8, 10')
        a('s_add_u32 s12, s12, s13')
        a('v_lshlrev_b32 v1, 4, v0')
        a('s_waitcnt lgkmcnt(0)')
        a('s_add_u32 s16, s6, s12')
        a('s_addc_u32 s17, s7, 0')
        a(f's_mov_b32 s18, {15*786432+1024}')
        a('s_mov_b32 s19, 0x00020000')
        a('s_mov_b32 s14, 0')
        for hp in range(16):
            a(f'buffer_load_dwordx4 {vr(8+4*hp,4)}, v1, s[16:19], s14 offen{o.ldflag}')
            if hp < 15: a('s_add_u32 s14, s14, 786432')
        a('s_mul_i32 s20, s8, 43')
        a('s_lshr_b32 s20, s20, 8')
        a('s_mul_i32 s21, s20, 6')
        a('s_sub_u32 s21, s8, s21')
        a('s_cmp_ge_u32 s21, 3')
        a('s_cselect_b32 s22, 1, 0')
        a('s_mul_i32 s23, s22, 3')
        a('s_sub_u32 s23, s21, s23')
        a('s_lshr_b32 s24, s20, 2')
        a('s_and_b32 s25, s20, 3')
        a('s_and_b32 s26, s24, 1')
        a('s_lshr_b32 s27, s24, 1')
        a('s_mul_i32 s28, s11, 96')
        a('s_mul_i32 s29, s27, 48')
        a('s_add_u32 s28, s28, s29')
        a('s_lshl_b32 s29, s23, 4')
        a('s_add_u32 s28, s28, s29')
        a('s_lshl_b32 s28, s28, 11')
        a('s_lshl_b32 s29, s10, 10')
        a('s_add_u32 s28, s28, s29')
        a('s_lshl_b32 s29, s26, 9')
        a('s_add_u32 s28, s28, s29')
        a('s_lshl_b32 s29, s25, 7')
        a('s_add_u32 s28, s28, s29')
        a('s_lshl_b32 s29, s22, 6')
        a('s_add_u32 s28, s28, s29')
        a('v_and_b32 v2, 15, v0')
        a('v_lshlrev_b32 v2, 11, v2')
        a('v_lshrrev_b32 v3, 4, v0')
        a('v_and_b32 v4, 1, v3')
        a('v_lshlrev_b32 v4, 5, v4')
        a('v_lshrrev_b32 v3, 1, v3')
        a('v_lshlrev_b32 v3, 4, v3')
        a('v_add_u32 v2, v2, v3')
        a('v_add_u32 v2, v2, v4')
        a('v_add_u32 v2, s28, v2')
        a('s_mov_b32 s8, s4')
        a('s_mov_b32 s9, s5')
        a(f's_mov_b32 s10, {8*96*1024*2}')
        a('s_mov_b32 s11, 0x00020000')
        a('s_mov_b32 s30, 0xffff0000')
        for hp in range(16):
            a(f's_waitcnt vmcnt({15-hp})')
            b = 8 + 4 * hp
            for i in range(4):
                if hp == 0:
                    a(f'v_lshlrev_b32 v{72+2*i}, 16, v{b+i}')
                    a(f'v_and_b32 v{73+2*i}, s30, v{b+i}')
                else:
                    a(f'v_lshlrev_b32 v4, 16, v{b+i}')
                    a(f'v_and_b32 v5, s30, v{b+i}')
                    a(f'v_pk_add_f32 {vr(72+2*i,2)}, {vr(72+2*i,2)}, v[4:5]')
        for i in range(4): a(f'v_cvt_pk_bf16_f32 v{80+i}, v{72+2*i}, v{73+2*i}')
        a('s_nop 1')
        a('v_permlane16_swap_b32 v80, v82')
        a('v_permlane16_swap_b32 v81, v83')
        a('s_nop 1')
        a('buffer_store_dwordx4 v[80:83], v2, s[8:11], 0 offen')
        a.label('L_REND')
        a('s_endpgm')

    def build(s):
        a = s.a; o = s.o
        kn = o.kname
        hdr = open('cdna_kernels/' + NAME + '.s.ref').read().split('\n')
        for ln in hdr:
            if ln.startswith('; @launch'): break
            a.raw(ln)
        for ch in o.list:
            if ch == 'm': a.raw(f'; @launch kernel={kn} grid=(256,1,1) block=(512,1,1) lds=163840')
            if ch == 'r': a.raw(f'; @launch kernel=red_kernel grid=({96//o.redw},16,1) block=({64*o.redw},1,1) lds=0')
            if ch == 'n': a.raw(f'; @launch kernel=nop_kernel grid=(256,1,1) block=(64,1,1) lds=0')
        a.raw('.amdgcn_target "amdgcn-amd-amdhsa--gfx950"')
        a.raw('.text')
        a.raw(f'.globl {kn}'); a.raw('.p2align 8'); a.raw(f'.type {kn},@function'); a.label(kn)
        s.prologue()
        s.loader()
        s.compute()
        a.label('L_END'); a('s_endpgm')
        a.raw('.globl red_kernel')
        s.reduce()
        kl = [(kn, 256, 0), ('red_kernel', 104 if o.dbg else 88, 1)]
        if 'n' in o.list:
            a.raw('.globl nop_kernel'); a.raw('.p2align 8'); a.raw('.type nop_kernel,@function'); a.label('nop_kernel'); a('s_endpgm')
            kl.append(('nop_kernel', 8, 0))
        a.raw('.section .rodata,"a"')
        for k, nv, y in kl:
            a.raw('.p2align 6')
            a.raw(f'.amdhsa_kernel {k}')
            a.raw(f'  .amdhsa_next_free_vgpr {nv}')
            a.raw('  .amdhsa_next_free_sgpr 102')
            a.raw(f'  .amdhsa_accum_offset {nv}')
            a.raw('  .amdhsa_group_segment_fixed_size 0')
            a.raw('  .amdhsa_kernarg_size 104')
            a.raw('  .amdhsa_user_sgpr_count 2')
            a.raw('  .amdhsa_user_sgpr_kernarg_segment_ptr 1')
            a.raw('  .amdhsa_system_sgpr_workgroup_id_x 1')
            if y: a.raw('  .amdhsa_system_sgpr_workgroup_id_y 1')
            a.raw('.end_amdhsa_kernel')
        return a.text()

if __name__ == '__main__':
    p = argparse.ArgumentParser()
    p.add_argument('-o', default='cdna_kernels/' + NAME + '.s')
    p.add_argument('--kname', default=NAME + '_kernel')
    p.add_argument('--stamps', action='store_true')
    p.add_argument('--lazy', type=float, default=0)
    p.add_argument('--stg', default='')
    p.add_argument('--nt', action='store_true')
    p.add_argument('--list', default='mr')
    p.add_argument('--fine', action='store_true')
    p.add_argument('--dbg', action='store_true')
    p.add_argument('--dbgwg', type=int, default=37)
    p.add_argument('--tlb', type=int, default=0)
    p.add_argument('--lprio', type=int, default=0)
    p.add_argument('--rot', type=int, default=1)
    p.add_argument('--map', type=int, default=0)
    p.add_argument('--redw', type=int, default=4)
    p.add_argument('--init4', action='store_true')
    p.add_argument('--kvstag', default='')
    p.add_argument('--kvat', type=int, default=0)
    p.add_argument('--kvstep', type=int, default=1)
    p.add_argument('--cap', type=int, default=-1)
    p.add_argument('--o2', action='store_true')
    p.add_argument('--ldst', action='store_true')
    p.add_argument('--stflag', default='')
    p.add_argument('--ldflag', default='')
    o = p.parse_args()
    if o.o2:
        WSLOT = [[8, 0, 1, 9], [2, 7, 3, 6], [4, 8, 9, 5], [0, 2, 6, 1]]
    if o.stflag: o.stflag = ' ' + o.stflag
    if o.ldflag: o.ldflag = ' ' + o.ldflag
    open(o.o, 'w').write(Gen(o).build())
```

```python
import sys, math, argparse

NAME = 'concat_heads__mha_block_cached__gqa_block_cached__near_ridge'

class Asm:
    def __init__(s): s.l = []
    def __call__(s, x):
        for y in x.split('\n'):
            y = y.strip()
            if y: s.l.append(y if y.endswith(':') else '    ' + y)
    def label(s, x): s.l.append(x + ':')
    def raw(s, x): s.l.append(x)
    def text(s): return '\n'.join(s.l) + '\n'

def vr(b, n=1):
    return f'v{b}' if n == 1 else f'v[{b}:{b+n-1}]'
def sr(b, n=1):
    return f's{b}' if n == 1 else f's[{b}:{b+n-1}]'

sX, sK, sV, sWQ, sWO, sWS, sST = 36, 40, 44, 48, 52, 56, 92
S_WAVE, S_BLK, S_HP, S_B = 3, 4, 5, 6
S_16K, S_32K, S_CS, S_NCS, S_LOOP, S_H, S_QG = 60, 61, 62, 63, 64, 65, 66
S_OB = 68
S_OFF, S_C, S_M0B, S_W1K = 76, 77, 78, 79
S_IDX = 80
O0, AB = 0, 192
QFr = lambda j, qt: 96 + (j * 3 + qt) * 8
SR = lambda kt, qt: 96 + (kt * 3 + qt) * 8 + 4
QA = lambda dt, qt: 96 + ((dt >> 1) * 3 + qt) * 8 + (dt & 1) * 4
XR = lambda ks, qt: ((ks >> 1) & 1) * 24 + (ks & 1) * 12 + qt * 4
XLDS = 131072
S_R2, S_T = 81, 82
S_XW, S_KVP = 88, 89
S_JJ = 84
V_X0, V_X1 = 251, 252
V_AK, V_AV, V_AQ, V_AO = 224, 225, 226, 227
V_AD = 228
V_M, V_L, V_AL, V_NMC, V_T = 236, 239, 242, 248, 251
V_ST, V_XO = 254, 255
NB = 8

SLOT = lambda i: i * 16384
QSLOT = [65536, 98304, 131072, 0, 32768, 65536, 98304, 131072]
WSLOT = [[8, 9, 0, 1], [2, 6, 7, 3], [4, 5, 8, 9], [0, 1, 2, 6]]
XCH = 49152

class Gen:
    def __init__(s, opt):
        s.o = opt
        s.a = Asm()

    def dstamp(s, idx):
        if not s.o.dbg: return
        a = s.a
        a('s_memtime s[98:99]')
        a('s_waitcnt lgkmcnt(0)')
        a('s_sub_u32 s98, s98, s97')
        a(f'v_writelane_b32 v{V_ST}, s98, {idx}')

    def dflush(s):
        if not s.o.dbg: return
        a = s.a
        a('s_memrealtime s[98:99]')
        a('s_waitcnt lgkmcnt(0)')
        a(f'v_writelane_b32 v{V_ST}, s98, 1')
        a(f'v_writelane_b32 v{V_ST}, s96, 0')
        a(f's_cmp_lg_u32 s{S_WAVE}, 0')
        a('s_cbranch_scc1 L_DBG_SKIP')
        a('v_mbcnt_lo_u32_b32 v4, -1, 0')
        a('v_mbcnt_hi_u32_b32 v4, -1, v4')
        a('v_lshlrev_b32 v1, 2, v4')
        a('s_lshl_b32 s7, s2, 8')
        a(f'buffer_store_dword v{V_ST}, v1, s[{sST}:{sST+3}], s7 offen')
        a.label('L_DBG_SKIP')
        a('s_waitcnt vmcnt(0)')

    def stamp(s, vst):
        if not s.o.stamps: return
        a = s.a
        a('s_memtime s[98:99]')
        a('s_waitcnt lgkmcnt(0)')
        a(f's_mov_b32 m0, s{S_IDX}')
        a(f's_add_u32 s{S_IDX}, s{S_IDX}, 1')
        a(f'v_writelane_b32 v{vst}, s98, m0')

    def stamp_flush(s, vst):
        if not s.o.stamps: return
        a = s.a
        a('s_memrealtime s[98:99]')
        a('s_waitcnt lgkmcnt(0)')
        a(f's_mov_b32 m0, 63')
        a('s_nop 0')
        a(f'v_writelane_b32 v{vst}, s98, m0')
        a(f'v_mbcnt_lo_u32_b32 v1, -1, 0')
        a(f'v_mbcnt_hi_u32_b32 v1, -1, v1')
        a(f'v_lshlrev_b32 v1, 2, v1')
        a(f's_lshl_b32 s7, s2, 3')
        a(f's_add_u32 s7, s7, s{S_WAVE}')
        a(f's_lshl_b32 s7, s7, 8')
        a(f'buffer_store_dword v{vst}, v1, s[{sST}:{sST+3}], s7 offen')
        a('s_waitcnt vmcnt(0)')

    def stream(s, frags, nb=NB, pre=(), prebar=False, mid=()):
        a = s.a
        n = len(frags)
        buf = lambda i: AB + 4 * (i % nb)
        issued = []
        done = [0]
        def iss(tag, ins):
            a(ins); issued.append(tag)
        def wait(tags, vm=None):
            idx = max([k for k, t in enumerate(issued) if t in tags], default=-1)
            for t in tags: assert t in issued, t
            cnt = len(issued) - 1 - idx
            w = []
            if vm is not None: w.append(f'vmcnt({vm})')
            if idx + 1 > done[0]:
                c = min(cnt, 15)
                w.append(f'lgkmcnt({c})')
                done[0] = len(issued) - c
            if w: a('s_waitcnt ' + ' '.join(w))
        for tag, ins in pre: iss(tag, ins)
        for i in range(min(nb - 1, n)):
            for x in frags[i]['rd'](buf(i)): iss(('A', i), x)
        for x in mid: a(x)
        for i, f in enumerate(frags):
            wait([('A', i)] + list(f.get('need', [])), f.get('pre_vm'))
            if f.get('bar'):
                a('s_barrier')
                if f.get('stamp'):
                    s.stamp(V_ST); done[0] = len(issued) if s.o.stamps else done[0]
            mm = f['mm'](buf(i))
            nx = [(('A', i + nb - 1), x) for x in frags[i + nb - 1]['rd'](buf(i + nb - 1))] if i + nb - 1 < n else []
            nx = nx + list(f.get('xrd', []))
            if 'ext' in f:
                ext = list(f['ext'])
                sh = [[], [], []]
                for k, t_ in enumerate(nx): sh[min(k, 2)].append(t_)
                k = 0
                while ext:
                    cap = 3 if k < 2 else 99
                    while ext and len(sh[k]) < cap: sh[k].append(ext.pop(0))
                    k += 1
                for k, m in enumerate(mm):
                    a(m)
                    for e in sh[k]:
                        if isinstance(e, tuple): iss(*e)
                        else: a(e)
                for x in f.get('post', []): a(x)
                continue
            for k, m in enumerate(mm):
                a(m)
                if k < len(nx): iss(*nx[k])
                for e in f.get('shv', ((), (), ()))[k]: a(e)
            for t in nx[len(mm):]: iss(*t)
            for x in f.get('post', []): a(x)

    def srd(s, d, pb, offreg, nrec):
        a = s.a
        a(f's_add_u32 s{d}, s{pb}, s{offreg}')
        a(f's_addc_u32 s{d+1}, s{pb+1}, 0')
        if isinstance(nrec, int): a(f's_mov_b32 s{d+2}, {nrec}')
        else: a(nrec)
        a(f's_mov_b32 s{d+3}, 0x00020000')

    def srd_kv(s):
        a = s.a
        a(f's_lshl_b32 s7, s{S_B}, 22')
        a(f's_lshl_b32 s18, s{S_HP}, 18')
        a('s_add_u32 s7, s7, s18')
        s.srd(sK, 10, 7, 262144)
        s.srd(sV, 12, 7, 262144)

    def srd_st(s):
        if s.o.stamps or s.o.dbg:
            s.a('s_mov_b32 s7, 0x2000000')
            s.srd(sST, 30, 7, 1 << 20)

    def jj(s):
        a = s.a
        for j in range(4):
            if s.o.rot:
                a(f's_add_u32 s7, s{S_B}, {j}')
                a(f's_and_b32 s{S_JJ+j}, s7, 3')
            else: a(f's_mov_b32 s{S_JJ+j}, {j}')

    def prologue(s):
        a = s.a
        a('s_cmp_ge_u32 s2, 256')
        a('s_cbranch_scc1 L_END')
        a('s_load_dwordx8 s[8:15], s[0:1], 0')
        a('s_load_dwordx8 s[20:27], s[0:1], 40')
        a('s_load_dwordx2 s[16:17], s[0:1], 32')
        a('s_load_dwordx2 s[28:29], s[0:1], 72')
        a('s_load_dwordx2 s[30:31], s[0:1], 96')
        if s.o.dbg:
            a('s_memrealtime s[96:97]')
            a('s_memtime s[98:99]')
            a('s_waitcnt lgkmcnt(0)')
            a('s_mov_b32 s97, s98')
            a(f'v_mov_b32 v{V_ST}, 0')
        a('s_and_b32 s7, s2, 7')
        a('s_lshr_b32 s18, s2, 3')
        a('s_lshr_b32 s19, s18, 3')
        if s.o.map == 0:
            a('s_lshl_b32 s7, s7, 2')
            a('s_add_u32 s7, s7, s19')
            a(f's_lshr_b32 s{S_BLK}, s7, 4')
            a(f's_and_b32 s{S_HP}, s7, 15')
        elif s.o.map == 1:
            a('s_lshl_b32 s7, s7, 1')
            a(f's_lshr_b32 s{S_BLK}, s19, 1')
            a('s_and_b32 s19, s19, 1')
            a(f's_add_u32 s{S_HP}, s7, s19')
        elif s.o.map == 2:
            a('s_lshl_b32 s7, s7, 1')
            a(f's_and_b32 s{S_BLK}, s19, 1')
            a('s_lshr_b32 s19, s19, 1')
            a(f's_add_u32 s{S_HP}, s7, s19')
        a(f's_and_b32 s{S_B}, s18, 7')
        a('v_lshrrev_b32 v1, 6, v0')
        a('v_and_b32 v0, 63, v0')
        a(f'v_readfirstlane_b32 s{S_WAVE}, v1')
        if s.o.stamps:
            a(f's_mov_b32 s{S_IDX}, 0')
            a(f'v_mov_b32 v{V_ST}, 0')
            a('s_memrealtime s[98:99]')
            a('s_waitcnt lgkmcnt(0)')
            a('s_mov_b32 m0, 62')
            a('s_nop 0')
            a(f'v_writelane_b32 v{V_ST}, s98, m0')
            s.stamp(V_ST)
        a(f's_and_b32 s7, s{S_HP}, 3')
        a('s_lshl_b32 s7, s7, 1')
        if s.o.rot == 2:
            a(f's_lshr_b32 s18, s{S_B}, 1')
            a('s_lshl_b32 s18, s18, 1')
            a('s_add_u32 s7, s7, s18')
        elif s.o.rot == 3:
            a(f's_and_b32 s7, s{S_HP}, 2')
            a('s_lshl_b32 s7, s7, 1')
            a(f's_and_b32 s18, s{S_B}, 6')
            a('s_add_u32 s7, s7, s18')
        elif s.o.rot == 5:
            a(f's_and_b32 s7, s{S_B}, 6')
        else:
            a(f's_add_u32 s7, s7, s{S_B}')
        a(f's_and_b32 s{S_R2}, s7, {7 if s.o.rot else 0}')
        a(f's_and_b32 s7, s{S_WAVE}, 3')
        a(f's_lshl_b32 s{S_W1K}, s7, 10')
        a('v_lshrrev_b32 v1, 4, v0')
        a('v_and_b32 v2, 15, v0')
        a('s_lshl_b32 s18, s7, 2')
        a('v_add_u32 v3, s18, v1')
        a('v_and_b32 v4, 7, v3')
        a('v_lshlrev_b32 v4, 1, v4')
        a('v_lshrrev_b32 v5, 3, v3')
        a('v_or_b32 v4, v4, v5')
        a('v_xor_b32 v5, v2, v4')
        a('v_lshlrev_b32 v5, 4, v5')
        a(f'v_lshlrev_b32 v6, 8, v3')
        a(f'v_add_u32 v10, v6, v5')
        a('v_lshrrev_b32 v6, 3, v0')
        a('v_lshlrev_b32 v6, 10, v6')
        a('v_and_b32 v7, 7, v0')
        a('v_xor_b32 v7, v7, v1')
        a('v_lshlrev_b32 v7, 4, v7')
        a('v_add_u32 v6, v6, v7')
        a('s_mul_i32 s18, s7, 24576')
        a('v_add_u32 v6, s18, v6')
        a('s_and_b32 s18, s7, 1')
        a('s_lshl_b32 s18, s18, 6')
        a(f'v_xor_b32 v13, s18, v6')
        a(f'v_xor_b32 v14, 64, v13')
        a(f's_mul_i32 s{S_XW}, s7, 3072')
        a(f's_add_u32 s{S_XW}, s{S_XW}, {XLDS}')
        a('s_lshl_b32 s18, s7, 3')
        a('v_add_u32 v6, s18, v1')
        a('v_lshlrev_b32 v6, 13, v6')
        a(f'v_add_u32 v11, v6, v5')
        a(f's_mul_i32 s19, s{S_B}, 98304')
        a(f's_lshl_b32 s18, s{S_HP}, 9')
        a(f's_cmp_eq_u32 s{S_BLK}, 0')
        a('s_waitcnt lgkmcnt(0)')
        for i in range(8): a(f's_cselect_b32 s{8+i}, s{8+i}, s{20+i}')
        a('s_cselect_b32 s16, s16, s28')
        a('s_cselect_b32 s17, s17, s29')
        s.srd(sX, 8, 19, 98304)
        s.srd(sWQ, 14, 18, f's_sub_u32 s{sWQ+2}, 4194304, s18')
        a(f's_cmp_lt_u32 s{S_WAVE}, 4')
        a('s_cbranch_scc1 L_COMPUTE')

    def loader(s):
        a = s.a; o = s.o
        nt = ' nt' if o.nt else ''
        if o.lprio: a(f's_setprio {o.lprio}')
        VKV, VWQ, VWO, VXA, VXB = 10, 11, 12, 13, 14
        cnt = [0]
        mark = {}
        def piece(m0expr, offexpr, voff, srd, flag=''):
            a(m0expr); a(offexpr)
            a(f'buffer_load_dwordx4 v{voff}, s[{srd}:{srd+3}], s{S_OFF} offen{flag} lds')
            cnt[0] += 1
        def X(j):
            a(f's_add_u32 s{S_T}, s{S_R2}, {j}')
            a(f's_and_b32 s{S_T}, s{S_T}, 7')
            a(f's_lshl_b32 s{S_T}, s{S_T}, 7')
            for u in range(3):
                piece(f's_add_u32 m0, s{S_XW}, {(j&1)*12288 + u*1024}', f's_add_u32 s{S_OFF}, s{S_T}, {u*8192}', VXB if u == 1 else VXA, sX)
            mark[('X', j)] = cnt[0]
        def WQ(st):
            a(f's_lshl_b32 s{S_T}, s{S_R2}, 1')
            a(f's_add_u32 s{S_T}, s{S_T}, {st}')
            a(f's_and_b32 s{S_T}, s{S_T}, 15')
            a(f's_lshl_b32 s{S_T}, s{S_T}, 18')
            for aa in range(2):
                for h in range(2):
                    m0 = 65536 + (st & 3) * 16384 + h * 8192 + aa * 4096
                    piece(f's_add_u32 m0, s{S_W1K}, {m0}', f's_add_u32 s{S_OFF}, s{S_T}, {aa*32768 + h*256}', VWQ, sWQ)
            mark[('W', st)] = cnt[0]
        def KV(srd, c, isv, hs=(0, 1)):
            for h in hs:
                for m in range(4):
                    m0 = (c & 1) * 65536 + isv * 32768 + h * 16384 + m * 4096
                    off = h * 131072 + c * 16384 + m * 4096
                    piece(f's_add_u32 m0, s{S_W1K}, {m0}', f's_mov_b32 s{S_OFF}, {off}', VKV, srd, nt)
        def KVdyn(srd, isv):
            for h in range(2):
                for m in range(4):
                    m0 = isv * 32768 + h * 16384 + m * 4096
                    off = h * 131072 + m * 4096
                    piece(f's_add_u32 m0, s{S_M0B}, {m0}', f's_add_u32 s{S_OFF}, s{S_C}, {off}', VKV, srd, nt)
        VLA = 16
        VKV2, VWQ2 = 18, 19
        SBUF = [32, 96, 160]
        ALLP = [(h, m, z) for h in range(2) for m in range(4) for z in range(2)]
        def STG(buf, srd, c, pcs, tag):
            for (h, m, z) in pcs:
                a(f's_mov_b32 s{S_OFF}, {h * 131072 + c * 16384 + m * 4096}')
                a(f'buffer_load_dwordx4 {vr(buf + 4 * (8 * h + 2 * m + z), 4)}, v{VKV2 if z == 0 else VKV}, s[{srd}:{srd+3}], s{S_OFF} offen{nt}')
                cnt[0] += 1
                mark[tag] = cnt[0]
        def STW(buf, c, isv, tag, hs=(0, 1)):
            a(f's_waitcnt vmcnt({cnt[0] - mark[tag]})')
            for h in hs:
                for m in range(4):
                    for z in range(2):
                        a(f'ds_write_b128 v{VLA + (c & 1)}, {vr(buf + 4 * (8 * h + 2 * m + z), 4)} offset:{isv * 32768 + h * 16384 + m * 4096 + z * 2048}')
            a('s_waitcnt lgkmcnt(0)')
        def X2(j):
            a(f's_add_u32 s{S_T}, s{S_R2}, {j}')
            a(f's_and_b32 s{S_T}, s{S_T}, 7')
            a(f's_lshl_b32 s{S_T}, s{S_T}, 7')
            for z in range(2):
                for u in range(3):
                    piece(f's_add_u32 m0, s{S_XW}, {(j&1)*12288 + u*1024 + z*6144}', f's_add_u32 s{S_OFF}, s{S_T}, {u*8192 + z*49152}', VXB if u == 1 else VXA, sX)
            mark[('X', j)] = cnt[0]
        def WQ2(st):
            a(f's_lshl_b32 s{S_T}, s{S_R2}, 1')
            a(f's_add_u32 s{S_T}, s{S_T}, {st}')
            a(f's_and_b32 s{S_T}, s{S_T}, 15')
            a(f's_lshl_b32 s{S_T}, s{S_T}, 18')
            for aa in range(2):
                for h in range(2):
                    for z in range(2):
                        m0 = 65536 + (st & 3) * 16384 + h * 8192 + aa * 4096 + z * 2048
                        piece(f's_add_u32 m0, s{S_W1K}, {m0}', f's_add_u32 s{S_OFF}, s{S_T}, {aa*32768 + h*256 + z*131072}', VWQ2 if z else VWQ, sWQ)
            mark[('W', st)] = cnt[0]
        def W(j, t):
            nh, kh = t >> 1, t & 1
            a(f's_lshl_b32 s{S_T}, s{S_JJ+j}, 7')
            for u in range(4):
                m0 = SLOT(WSLOT[j][t]) + u * 4096
                off = (kh * 128 + 32 * u) * 1024 + (nh * 256) * 2
                piece(f's_add_u32 m0, s{S_W1K}, {m0}', f's_add_u32 s{S_OFF}, s{S_T}, {off}', VWO, sWO)
        def wb(n, pre=False):
            if n is not None: a(f's_waitcnt vmcnt({n})')
            if pre and o.ldst: s.stamp(V_ST)
            a('s_barrier'); s.stamp(V_ST)
        def wbt(tags):
            m = max(mark[t] for t in tags)
            wb(cnt[0] - m)

        if o.fine:
            s.stamp(V_ST); X(0); s.stamp(V_ST); WQ(0); s.stamp(V_ST); WQ(1); X(1); WQ(2); WQ(3); s.stamp(V_ST)
            for n in (21, 19, 15, 11, 8, 4, 0):
                a(f's_waitcnt vmcnt({n})'); s.stamp(V_ST)
        elif o.init4:
            X(0); WQ(0); WQ(1); X(1); WQ(2); WQ(3)
        else:
            X(0); WQ(0); WQ(1); X(1)
        a(f's_and_b32 s7, s{S_WAVE}, 3')
        s.srd_kv()
        s.srd(sWO, 16, 18, 262144)
        s.srd_st()
        s.jj()
        a(f's_and_b32 s7, s{S_WAVE}, 3')
        a('v_lshrrev_b32 v6, 3, v0')
        a('v_lshlrev_b32 v6, 10, v6')
        a('v_and_b32 v7, 7, v0')
        a('v_lshrrev_b32 v7, 1, v7')
        a('v_xor_b32 v7, v7, v1')
        a('v_lshlrev_b32 v7, 5, v7')
        a('v_and_b32 v8, 1, v0')
        a('v_lshlrev_b32 v8, 4, v8')
        a('v_add_u32 v6, v6, v7')
        a('v_add_u32 v6, v6, v8')
        a('s_lshl_b32 s18, s7, 13')
        a(f'v_add_u32 v{VWO}, s18, v6')
        if o.stg:
            s0, npp = [int(x) for x in o.stg.split(',')]
            a(f's_cmp_ge_u32 s{S_WAVE}, 6')
            a('s_cbranch_scc1 L_LD_S')
            c_fork, m_fork = cnt[0], dict(mark)
            a(f'v_xor_b32 v{VWQ2}, 16, v{VWQ}')
            for st in range(16):
                tags = [('W', st)] + ([('X', st // 2)] if st % 2 == 0 else [])
                wbt(tags)
                if st <= 13: WQ2(st + 2)
                if st % 2 == 1 and (st + 3) // 2 <= 7: X2((st + 3) // 2)
            for _ in range(5): wb(None)
            wb(None); KV(sK, 4, 0)
            wb(None); KV(sV, 4, 1)
            wb(None); KV(sK, 5, 0)
            a('s_branch L_LD_M')
            a.label('L_LD_S')
            cnt[0] = c_fork; mark.clear(); mark.update(m_fork)
            a(f'v_xor_b32 v{VKV2}, 16, v{VKV}')
            a(f'v_subrev_u32 v{VKV2}, 2048, v{VKV2}')
            a(f'v_lshlrev_b32 v{VLA}, 4, v0')
            a(f's_sub_u32 s7, s{S_W1K}, 2048')
            a(f'v_add_u32 v{VLA}, s7, v{VLA}')
            a(f'v_add_u32 v{VLA+1}, 0x10000, v{VLA}')
            stg = [(SBUF[0], sK, 1, pc, 'K1') for pc in ALLP] + [(SBUF[1], sV, 1, pc, 'V1') for pc in ALLP] + [(SBUF[2], sK, 2, pc, 'K2') for pc in ALLP]
            for st in range(16):
                if st <= 2:
                    tags = [('W', st)] if st < 2 else []
                    tags += [('X', st // 2)] if st % 2 == 0 else []
                    wbt(tags)
                else: wb(None)
                if st >= s0:
                    k = npp if st < 13 else 99
                    while stg and k > 0:
                        b_, srd_, c_, pc_, tg_ = stg.pop(0)
                        STG(b_, srd_, c_, [pc_], tg_); k -= 1
                if st == 14: STW(SBUF[0], 1, 0, 'K1', (0,))
                if st == 15:
                    STW(SBUF[0], 1, 0, 'K1', (1,))
                    STG(SBUF[0], sV, 2, ALLP, 'V2')
            wb(None); STW(SBUF[1], 1, 1, 'V1'); STG(SBUF[1], sK, 3, ALLP, 'K3')
            wb(None); STW(SBUF[2], 2, 0, 'K2'); STG(SBUF[2], sV, 3, ALLP, 'V3')
            wb(None)
            wb(None)
            wb(None); STW(SBUF[0], 2, 1, 'V2')
            wb(None); KV(sK, 4, 0); STW(SBUF[1], 3, 0, 'K3')
            wb(None); KV(sV, 4, 1); STW(SBUF[2], 3, 1, 'V3')
            wb(None); KV(sK, 5, 0)
            a.label('L_LD_M')
            a(f's_mov_b32 s{S_LOOP}, 2')
            a(f's_mov_b32 s{S_C}, {5*16384}')
            a(f's_add_u32 s{S_M0B}, s{S_W1K}, 65536')
        else:
            for st in range(16):
                tags = [('W', st)] + ([('X', st // 2)] if st % 2 == 0 else [])
                wbt(tags)
                if (2 if (o.init4 or o.fine) else 0) <= st <= 13: WQ(st + 2)
                if st % 2 == 1 and (st + 3) // 2 <= 7: X((st + 3) // 2)
                if st == 14: KV(sK, 1, 0, (0,))
                if st == 15: KV(sK, 1, 0, (1,))
            wb(None); KV(sV, 1, 1)
            wb(None); KV(sK, 2, 0)
            a(f's_mov_b32 s{S_LOOP}, 5')
            a(f's_mov_b32 s{S_C}, {2*16384}')
            a(f's_mov_b32 s{S_M0B}, s{S_W1K}')
        a.label('L_LD_LOOP')
        wb(16)
        if o.cap >= 0: a(f's_waitcnt vmcnt({o.cap})')
        KVdyn(sV, 1)
        a(f's_add_u32 s{S_C}, s{S_C}, 16384')
        a(f's_xor_b32 s{S_M0B}, s{S_M0B}, 65536')
        wb(16)
        if o.cap >= 0: a(f's_waitcnt vmcnt({o.cap})')
        KVdyn(sK, 0)
        a(f's_sub_u32 s{S_LOOP}, s{S_LOOP}, 1')
        a(f's_cmp_lg_u32 s{S_LOOP}, 0')
        a('s_cbranch_scc1 L_LD_LOOP')
        if o.o2:
            W(0, 0); W(0, 3)
            wb(24); KV(sV, 7, 1)
            wb(24); W(0, 1); W(0, 2)
            wb(24); W(1, 0)
            wb(12, True)
            wb(None); W(1, 3); W(1, 1)
            wb(12, True)
            wb(None)
            wb(None); W(1, 2); W(2, 0); W(2, 3); W(2, 1); W(2, 2)
            wb(24, True)
            wb(16, True); W(3, 0); W(3, 3)
            wb(16, True); W(3, 1); W(3, 2)
            wb(16, True)
            wb(8, True)
            wb(0, True)
        else:
            wb(16)
            if o.cap >= 0: a(f's_waitcnt vmcnt({o.cap})')
            KV(sV, 7, 1)
            wb(16)
            for t in range(4): W(0, t)
            wb(24); W(1, 0)
            wb(20)
            a('s_barrier'); s.stamp(V_ST)
            W(1, 1); W(1, 2)
            wb(12); W(1, 3); W(2, 0); W(2, 1)
            wb(8); W(2, 2); W(2, 3); W(3, 0); W(3, 1)
            wb(8); W(3, 2); W(3, 3)
            wb(0)
        s.stamp_flush(V_ST)
        a('s_endpgm')

    def compute(s):
        a = s.a; o = s.o
        cs = (128 ** -0.5) * math.log2(math.e)
        import struct
        fb = lambda x: struct.unpack('<I', struct.pack('<f', x))[0]
        a.label('L_COMPUTE')
        s.srd_kv()
        a(f's_lshl_b32 s7, s{S_BLK}, 4')
        a(f's_add_u32 s7, s7, s{S_HP}')
        a('s_lshl_b32 s7, s7, 3')
        a(f's_add_u32 s7, s7, s{S_B}')
        a('s_mul_i32 s7, s7, 98304')
        s.srd(sWS, 30, 7, 98304)
        s.srd_st()
        s.jj()
        a(f's_and_b32 s{S_H}, s{S_WAVE}, 1')
        a(f's_lshr_b32 s{S_QG}, s{S_WAVE}, 1')
        a(f's_mov_b32 s{S_KVP}, s{S_B}')
        a(f'v_mov_b32 v{V_XO}, v10')
        a('v_and_b32 v1, 15, v0')
        a('v_lshrrev_b32 v2, 4, v0')
        a(f's_mul_i32 s7, s{S_QG}, 48')
        a('v_add_u32 v3, s7, v1')
        a('v_lshlrev_b32 v3, 7, v3')
        a('v_lshrrev_b32 v4, 1, v1')
        a('v_xor_b32 v4, v4, v2')
        a('v_lshlrev_b32 v4, 4, v4')
        a('v_add_u32 v3, v3, v4')
        a(f'v_add_u32 v{V_X0}, {XLDS}, v3')
        a(f'v_xor_b32 v{V_X1}, 64, v{V_X0}')
        a(f's_mov_b32 s{S_CS}, {hex(fb(cs))}')
        a(f's_mov_b32 s{S_NCS}, {hex(fb(-cs))}')
        def ffun(dst, src, tmp):
            a(f'v_and_b32 v{dst}, 7, v{src}')
            a(f'v_lshlrev_b32 v{dst}, 1, v{dst}')
            a(f'v_lshrrev_b32 v{tmp}, 3, v{src}')
            a(f'v_or_b32 v{dst}, v{dst}, v{tmp}')
        ffun(5, 1, 6)
        a('v_lshrrev_b32 v6, 1, v2')
        a('v_xor_b32 v5, v5, v6')
        a('v_lshlrev_b32 v5, 4, v5')
        a('v_lshlrev_b32 v6, 8, v1')
        a('v_add_u32 v5, v5, v6')
        a('v_and_b32 v6, 1, v2')
        a('v_lshlrev_b32 v6, 3, v6')
        a('v_add_u32 v5, v5, v6')
        a(f's_lshl_b32 s7, s{S_H}, 14')
        a(f'v_add_u32 v{V_AK}, s7, v5')
        a('v_lshrrev_b32 v7, 2, v1')
        a('v_lshlrev_b32 v8, 2, v2')
        a('v_add_u32 v8, v8, v7')
        a('v_and_b32 v9, 3, v0')
        ffun(5, 8, 6)
        a('v_lshrrev_b32 v6, 1, v9')
        a('v_xor_b32 v5, v5, v6')
        a('v_lshlrev_b32 v5, 4, v5')
        a('v_lshlrev_b32 v6, 8, v8')
        a('v_add_u32 v5, v5, v6')
        a('v_and_b32 v6, 1, v9')
        a('v_lshlrev_b32 v6, 3, v6')
        a('v_add_u32 v5, v5, v6')
        a(f's_add_u32 s18, s7, 32768')
        a(f'v_add_u32 v{V_AV}, s18, v5')
        a(f's_lshl_b32 s7, s{S_H}, 13')
        a(f'v_add_u32 v{V_AQ}, s7, v5')
        a('v_lshrrev_b32 v5, 1, v8')
        a('v_and_b32 v5, 3, v5')
        a('v_lshlrev_b32 v5, 5, v5')
        a('v_lshlrev_b32 v6, 7, v8')
        a('v_add_u32 v5, v5, v6')
        a('v_lshlrev_b32 v6, 3, v9')
        a(f'v_add_u32 v{V_AO}, v5, v6')
        for j in range(4): a(f's_mul_i32 s{S_JJ+j}, s{S_JJ+j}, 6144')
        a(f's_cmp_eq_u32 s{S_H}, 0')
        for j in range(4):
            a(f's_cselect_b32 s{S_OB+2*j}, {WSLOT[j][0]}, {WSLOT[j][3]}')
            a(f's_cselect_b32 s{S_OB+2*j+1}, {WSLOT[j][1]}, {WSLOT[j][2]}')
        for j in range(8): a(f's_lshl_b32 s{S_OB+j}, s{S_OB+j}, 14')
        def addr8(base_v, add=None):
            if add is not None:
                a(f'v_add_u32 v{V_AD}, {add}, v{base_v}')
            else:
                a(f'v_mov_b32 v{V_AD}, v{base_v}')
            for u in range(1, 8): a(f'v_xor_b32 v{V_AD+u}, {u<<5}, v{V_AD}')
        MF = 'v_mfma_f32_16x16x32_bf16'
        nt = ' nt' if o.nt else ''
        addr8(V_AQ, 65536)
        def xrd(j):
            r = []
            for kk in range(2):
                for qt in range(3):
                    r.append((('X', j, kk), f'ds_read_b128 {vr(XR(2*j+kk,qt),4)}, v{V_X1 if kk else V_X0} offset:{(j&1)*12288+qt*2048}'))
            return r
        def kv0(isv, h, m):
            return [f's_add_u32 m0, s{S_W1K}, {isv*32768 + h*16384 + m*4096}', f's_mov_b32 s{S_OFF}, {h*131072 + m*4096}',
                    f'buffer_load_dwordx4 v{V_XO}, s[{(sV if isv else sK)}:{(sV if isv else sK)+3}], s{S_OFF} offen{nt} lds']
        frags = []
        for st in range(16):
            for dt in range(8):
                def rd(buf, dt=dt, st=st):
                    return [f'ds_read_b64_tr_b16 {vr(buf,2)}, v{V_AD+dt} offset:{(st&3)*16384}',
                            f'ds_read_b64_tr_b16 {vr(buf+2,2)}, v{V_AD+dt} offset:{(st&3)*16384+4096}']
                def mm(buf, dt=dt, st=st):
                    r = []
                    for qt in range(3):
                        d = vr(QA(dt, qt), 4)
                        c = '0' if st == 0 else d
                        r.append(f'{MF} {d}, {vr(buf,4)}, {vr(XR(st,qt),4)}, {c}')
                    return r
                f = dict(rd=rd, mm=mm, post=[], xrd=[])
                if dt == 0: f['need'] = [('X', st // 2, st & 1)]
                if dt == 1 and st < 15:
                    f['bar'] = True
                    if st in (3, 7, 11): f['stamp'] = True
                frags.append(f)
        for j in range(1, 8):
            xs = xrd(j)
            for k, t in enumerate(xs): frags[8 * (2 * j - 1) + 1 + k // 2]['xrd'].append(t)
            frags[8 * (2 * j) + 1]['need'] = [('X', j, 1)]
        preblk = []
        if o.kvstag:
            pos = [int(x) for x in o.kvstag.split(',')]
            assert len(pos) == 8
            for fr in sorted(set(pos)):
                mask = sum(1 << p for p in range(8) if pos[p] == fr)
                blk = [f's_lshr_b32 s7, {mask}, s{S_KVP}', 's_bitcmp1_b32 s7, 0', f's_cbranch_scc0 L_KVS{fr}']
                for isv in range(2):
                    for h in range(2):
                        for m in range(4): blk += kv0(isv, h, m)
                blk.append(f'L_KVS{fr}:')
                if fr >= 900: preblk += blk
                else: frags[fr]['post'] += blk
        else:
            k = o.kvat
            for isv in range(2):
                for h in range(2):
                    for m in range(4):
                        frags[k]['post'] += kv0(isv, h, m); k += o.kvstep
        zl = list(range(48, 96))
        for i, z in enumerate(zl): frags[24 + i]['post'].append(f'v_mov_b32 v{z}, 0')
        for i in range(24): frags[8 * 14 + 1 + (i // 2)]['post'].append(f'v_mov_b32 v{i}, 0')
        for i in range(12): frags[8 * 15 + 1 + (i // 2)]['post'].append(f'v_mov_b32 v{24+i}, 0')
        def qcvt(j):
            r = []
            for qt in range(3):
                b = QFr(j, qt)
                for i in range(4): r.append(f'v_cvt_pk_bf16_f32 v{b+i}, v{b+2*i}, v{b+2*i+1}')
            return r
        c0, c1, c2 = qcvt(0), qcvt(1), qcvt(2)
        frags[8*15+3]['post'] += c0[:6]; frags[8*15+4]['post'] += c0[6:]
        frags[8*15+5]['post'] += c1[:6]; frags[8*15+6]['post'] += c1[6:]
        frags[8*15+7]['post'] += c2[:6]
        for x in preblk: a(x)
        a('s_barrier'); s.stamp(V_ST); s.dstamp(2)
        s.stream(frags, pre=xrd(0))
        for x in c2[6:]: a(x)
        for i in range(12): a(f'v_mov_b32 v{36+i}, 0')
        for qt in range(3):
            a(f'v_mov_b32 v{V_M+qt}, 0xff800000')
            a(f'v_mov_b32 v{V_L+qt}, 0')
        for x in qcvt(3): a(x)
        if s.o.lazy:
            for qt in range(3): a(f'v_mov_b32 v{V_NMC+qt}, 0x7f800000')
        s.stamp(V_ST); s.dstamp(4)
        a('s_waitcnt vmcnt(8)')
        a(f's_mov_b32 s{S_LOOP}, 8')
        a.label('L_ATT')
        addr8(V_AK)
        a('s_barrier'); s.stamp(V_ST)
        if s.o.dbg:
            a(f's_cmp_lg_u32 s{S_LOOP}, 8'); a('s_cbranch_scc1 L_DB0'); s.dstamp(5); a.label('L_DB0')
            a(f's_cmp_lg_u32 s{S_LOOP}, 4'); a('s_cbranch_scc1 L_DB1'); s.dstamp(6); a.label('L_DB1')
        frags = []
        shd = s.o.shd if s.o.lazy else 0
        MXs = [V_AL + 2 * q + 1 for q in range(3)]
        def mxops(kt):
            r_ = []
            for half in range(2):
                for qt in range(3):
                    b = SR(kt, qt); m = MXs[qt]
                    if kt == 0: r_.append(f'v_max3_f32 v{m}, v{b}, v{b+1}, v{b+2}' if half == 0 else f'v_max_f32 v{m}, v{m}, v{b+3}')
                    else: r_.append(f'v_max3_f32 v{m}, v{m}, v{b+2*half}, v{b+2*half+1}')
            return r_
        for j, kt in ([(j, kt) for kt in range(4) for j in range(4)] if shd & 2 else [(j, kt) for j in range(4) for kt in range(4)]):
            if True:
                def rd(buf, j=j, kt=kt):
                    return [f'ds_read_b64 {vr(buf,2)}, v{V_AD+2*j} offset:{kt*4096}',
                            f'ds_read_b64 {vr(buf+2,2)}, v{V_AD+2*j+1} offset:{kt*4096}']
                def mm(buf, j=j, kt=kt):
                    r = []
                    for qt in range(3):
                        d = vr(SR(kt, qt), 4)
                        c = '0' if j == 0 else d
                        r.append(f'{MF} {d}, {vr(buf,4)}, {vr(QFr(j,qt),4)}, {c}')
                    return r
                frags.append(dict(rd=rd, mm=mm))
                if shd & 2 and kt > 0 and j >= 2:
                    ops = mxops(kt - 1)[3 * (j - 2):3 * (j - 2) + 3]
                    frags[-1]['shv'] = [[ops[0]], [ops[1]], [ops[2]]]
        s.stream(frags)
        addr8(V_AV)
        a(f'v_xor_b32 v{V_AK}, 65536, v{V_AK}')
        a(f'v_xor_b32 v{V_AV}, 65536, v{V_AV}')
        SQ = lambda qt: [SR(kt, qt) + i for kt in range(4) for i in range(4)]
        lazy = s.o.lazy
        MX = [V_AL + 2 * q + 1 for q in range(3)] if lazy else [V_NMC + q for q in range(3)]
        if shd & 2:
            for x in mxops(3): a(x)
        for qt in range(3 if not shd & 2 else 0):
            r = SQ(qt)
            a(f'v_max3_f32 v{MX[qt]}, v{r[0]}, v{r[1]}, v{r[2]}')
        for i in range(6 if not shd & 2 else 0):
            for qt in range(3):
                r = SQ(qt)
                a(f'v_max3_f32 v{MX[qt]}, v{MX[qt]}, v{r[3+2*i]}, v{r[4+2*i]}')
        for qt in range(3 if not shd & 2 else 0):
            r = SQ(qt)
            if lazy: a(f'v_max_f32 v{MX[qt]}, v{MX[qt]}, v{r[15]}')
            else: a(f'v_max3_f32 v{MX[qt]}, v{MX[qt]}, v{r[15]}, v{V_M+qt}')
        def rescale():
            for dt in range(8):
                for qt in range(3):
                    b = O0 + (dt * 3 + qt) * 4
                    for hh in range(2):
                        a(f'v_pk_mul_f32 {vr(b+2*hh,2)}, {vr(b+2*hh,2)}, {vr(V_AL+2*qt,2)} op_sel_hi:[1,0]')
        if lazy:
            for qt in range(3): a(f'v_fma_f32 v{V_T+qt}, v{MX[qt]}, s{S_CS}, v{V_NMC+qt}')
            a(f'v_max3_f32 v{V_T}, v{V_T}, v{V_T+1}, v{V_T+2}')
            a(f'v_cmp_lt_f32 vcc, {hex(fb(float(lazy)))}, v{V_T}')
            a('s_cbranch_vccz L_FAST')
            for qt in range(3): a(f'v_max_f32 v{MX[qt]}, v{MX[qt]}, v{V_M+qt}')
        for sw in ('v_permlane16_swap_b32', 'v_permlane32_swap_b32'):
            for qt in range(3): a(f'v_mov_b32 v{V_T+qt}, v{MX[qt]}')
            a('s_nop 0')
            for qt in range(3): a(f'{sw} v{MX[qt]}, v{V_T+qt}')
            a('s_nop 0')
            for qt in range(3): a(f'v_max_f32 v{MX[qt]}, v{MX[qt]}, v{V_T+qt}')
        for qt in range(3): a(f'v_sub_f32 v{V_T+qt}, v{V_M+qt}, v{MX[qt]}')
        for qt in range(3): a(f'v_mul_f32 v{V_T+qt}, s{S_CS}, v{V_T+qt}')
        for qt in range(3): a(f'v_exp_f32 v{V_AL+2*qt}, v{V_T+qt}')
        for qt in range(3): a(f'v_mov_b32 v{V_M+qt}, v{MX[qt]}')
        for qt in range(3): a(f'v_mul_f32 v{V_NMC+qt}, s{S_NCS}, v{MX[qt]}')
        if lazy:
            for qt in range(3): a(f'v_mul_f32 v{V_L+qt}, v{V_L+qt}, v{V_AL+2*qt}')
            rescale()
            a.label('L_FAST')
        NH = 8 if shd & 1 else 16
        for qt in range(3):
            r = SQ(qt)
            for i in range(0, NH, 4):
                for k in range(4): a(f'v_fma_f32 v{r[i+k]}, v{r[i+k]}, s{S_CS}, v{V_NMC+qt}')
                for k in range(4): a(f'v_exp_f32 v{r[i+k]}, v{r[i+k]}')
        if not lazy: rescale()
        TP = V_AB_T = AB
        for qt in range(3):
            r = SQ(qt)
            a(f'v_pk_add_f32 {vr(TP+2*qt,2)}, {vr(r[0],2)}, {vr(r[2],2)}')
        for i in range(2, NH // 2):
            for qt in range(3):
                r = SQ(qt)
                a(f'v_pk_add_f32 {vr(TP+2*qt,2)}, {vr(TP+2*qt,2)}, {vr(r[2*i],2)}')
        if lazy:
            for qt in range(3): a(f'v_add_f32 v{V_L+qt}, v{V_L+qt}, v{TP+2*qt}')
        else:
            for qt in range(3): a(f'v_fma_f32 v{V_L+qt}, v{V_L+qt}, v{V_AL+2*qt}, v{TP+2*qt}')
        for qt in range(3): a(f'v_add_f32 v{V_L+qt}, v{V_L+qt}, v{TP+2*qt+1}')
        for qt in range(3):
            for kk in range(1 if shd & 1 else 2):
                b = SR(2 * kk, qt); b2 = SR(2 * kk + 1, qt)
                a(f'v_cvt_pk_bf16_f32 v{b}, v{b}, v{b+1}')
                a(f'v_cvt_pk_bf16_f32 v{b+1}, v{b+2}, v{b+3}')
                a(f'v_cvt_pk_bf16_f32 v{b+2}, v{b2}, v{b2+1}')
                a(f'v_cvt_pk_bf16_f32 v{b+3}, v{b2+2}, v{b2+3}')
        a('s_waitcnt vmcnt(0)')
        a('s_barrier'); s.stamp(V_ST)
        frags = []
        for dt, kk in ([(dt, kk) for kk in range(2) for dt in range(8)] if shd & 1 else [(dt, kk) for dt in range(8) for kk in range(2)]):
            if True:
                def rd(buf, dt=dt, kk=kk):
                    return [f'ds_read_b64_tr_b16 {vr(buf,2)}, v{V_AD+dt} offset:{kk*8192}',
                            f'ds_read_b64_tr_b16 {vr(buf+2,2)}, v{V_AD+dt} offset:{kk*8192+4096}']
                def mm(buf, dt=dt, kk=kk):
                    r = []
                    for qt in range(3):
                        d = vr(O0 + (dt * 3 + qt) * 4, 4)
                        r.append(f'{MF} {d}, {vr(buf,4)}, {vr(SR(2*kk,qt),4)}, {d}')
                    return r
                frags.append(dict(rd=rd, mm=mm))
        midv = []
        if shd & 1:
            L = []
            for kt in (2, 3):
                for qt in range(3):
                    b = SR(kt, qt)
                    for k in range(4): L.append((4, f'v_fma_f32 v{b+k}, v{b+k}, s{S_CS}, v{V_NMC+qt}'))
                    for k in range(4): L.append((8, f'v_exp_f32 v{b+k}, v{b+k}'))
            for kt in (2, 3):
                for k in range(4):
                    for qt in range(3): L.append((4, f'v_add_f32 v{V_L+qt}, v{V_L+qt}, v{SR(kt,qt)+k}'))
            for qt in range(3):
                b = SR(2, qt); b2 = SR(3, qt)
                L.append((4, f'v_cvt_pk_bf16_f32 v{b}, v{b}, v{b+1}'))
                L.append((4, f'v_cvt_pk_bf16_f32 v{b+1}, v{b+2}, v{b+3}'))
                L.append((4, f'v_cvt_pk_bf16_f32 v{b+2}, v{b2}, v{b2+1}'))
                L.append((4, f'v_cvt_pk_bf16_f32 v{b+3}, v{b2+2}, v{b2+3}'))
            c = 0
            while c < s.o.shmid:
                c += L[0][0]; midv.append(L.pop(0)[1])
            for i in range(8):
                sh = []
                for k in range(3):
                    c = 0; e = []
                    while L and c + L[0][0] <= s.o.shcap:
                        c += L[0][0]; e.append(L.pop(0)[1])
                    sh.append(e)
                frags[i]['shv'] = sh
            frags[7]['post'] = [x for _, x in L] + ['s_nop 1']
        s.stream(frags, mid=midv)
        a(f's_sub_u32 s{S_LOOP}, s{S_LOOP}, 1')
        a(f's_cmp_lg_u32 s{S_LOOP}, 0')
        a('s_cbranch_scc1 L_ATT')
        s.stamp(V_ST); s.dstamp(7)
        if o.o2: s.ophase2()
        else:
            for sw in ('v_permlane16_swap_b32', 'v_permlane32_swap_b32'):
                for qt in range(3): a(f'v_mov_b32 v{V_T+qt}, v{V_L+qt}')
                a('s_nop 0')
                for qt in range(3): a(f'{sw} v{V_L+qt}, v{V_T+qt}')
                a('s_nop 0')
                for qt in range(3): a(f'v_add_f32 v{V_L+qt}, v{V_L+qt}, v{V_T+qt}')
            for qt in range(3): a(f'v_rcp_f32 v{V_AL+2*qt}, v{V_L+qt}')
            a('s_nop 0')
            a('v_mbcnt_lo_u32_b32 v251, -1, 0')
            a('v_mbcnt_hi_u32_b32 v251, -1, v251')
            a('v_lshlrev_b32 v251, 4, v251')
            a(f's_mul_i32 s7, s{S_WAVE}, 12288')
            a(f's_add_u32 s7, s7, {XCH}')
            a('v_add_u32 v252, s7, v251')
            a(f's_xor_b32 s18, s{S_WAVE}, 1')
            a(f's_mul_i32 s18, s18, 12288')
            a(f's_add_u32 s18, s18, {XCH}')
            a('v_add_u32 v253, s18, v251')
            a(f's_mul_i32 s7, s{S_WAVE}, 24576')
            a(f'v_add_u32 v{V_XO}, s7, v251')
            for j in range(4):
                for qt in range(3):
                    for t in range(2):
                        b = O0 + ((2 * j + t) * 3 + qt) * 4
                        for hh in range(2):
                            a(f'v_pk_mul_f32 {vr(b+2*hh,2)}, {vr(b+2*hh,2)}, {vr(V_AL+2*qt,2)} op_sel_hi:[1,0]')
                    for t in range(2):
                        src = O0 + ((2 * j + t) * 3 + qt) * 4
                        dst = QFr(j, qt) + 2 * t
                        a(f'v_cvt_pk_bf16_f32 v{dst}, v{src}, v{src+1}')
                        a(f'v_cvt_pk_bf16_f32 v{dst+1}, v{src+2}, v{src+3}')
                    a(f'ds_write_b128 v252, {vr(QFr(j,qt),4)} offset:{(j*3+qt)*1024}')
            a('s_waitcnt lgkmcnt(0)')
            a('s_barrier'); s.stamp(V_ST); s.dstamp(8)
            for i in range(12): a(f'ds_read_b128 {vr(96+8*i+4,4)}, v253 offset:{i*1024}')
            a('s_waitcnt lgkmcnt(0)')
            stf = o.stflag
            def epi(j):
                r = []
                base = 48 * (j & 1)
                for u in range(2):
                    for qt in range(3):
                        b = base + (u * 3 + qt) * 8
                        grp = [f'v_cvt_pk_bf16_f32 v{b+i}, v{b+2*i}, v{b+2*i+1}' for i in range(4)]
                        off = (u * 3 + qt) * 1024
                        grp.append(f's_add_u32 s7, s{S_JJ+j}, {off}')
                        grp.append(f'buffer_store_dwordx4 {vr(b,4)}, v{V_XO}, s[{sWS}:{sWS+3}], s7 offen{stf}')
                        r.append(grp)
                return r
            for j in range(4):
                for half in range(2):
                    a(f'v_add_u32 v{V_AD+4*half}, s{S_OB+2*j+half}, v{V_AO}')
                    for nt_ in range(1, 4): a(f'v_xor_b32 v{V_AD+4*half+nt_}, {nt_<<5}, v{V_AD+4*half}')
                a('s_barrier'); s.stamp(V_ST); s.dstamp(9 + j)
                base = 48 * (j & 1)
                frags = []
                for half in range(2):
                    for jj in range(4):
                        for nt_ in range(4):
                            def rd(buf, half=half, jj=jj, nt_=nt_):
                                return [f'ds_read_b64_tr_b16 {vr(buf,2)}, v{V_AD+4*half+nt_} offset:{jj*4096}',
                                        f'ds_read_b64_tr_b16 {vr(buf+2,2)}, v{V_AD+4*half+nt_} offset:{jj*4096+2048}']
                            def mm(buf, half=half, jj=jj, nt_=nt_):
                                r = []
                                for qt in range(3):
                                    d = vr(base + ((nt_ >> 1) * 3 + qt) * 8 + (nt_ & 1) * 4, 4)
                                    c = '0' if (half == 0 and jj == 0) else d
                                    bsrc = QFr(jj, qt) + 4 * half
                                    r.append(f'{MF} {d}, {vr(buf,4)}, {vr(bsrc,4)}, {c}')
                                return r
                            frags.append(dict(rd=rd, mm=mm))
                if j > 0:
                    for k, grp in enumerate(epi(j - 1)):
                        frags[3 + 4 * k]['post'] = grp
                s.stream(frags)
            s.stamp(V_ST)
            a('s_nop 7')
            for grp in epi(3):
                for x in grp: a(x)
        s.stamp(V_ST); s.dstamp(13)
        if s.o.dbg:
            a('s_waitcnt vmcnt(0)'); s.dstamp(14)
        s.dflush()
        s.stamp_flush(V_ST)
        a('s_endpgm')


    def ophase2(s):
        a = s.a; o = s.o
        MF = 'v_mfma_f32_16x16x32_bf16'
        stf = o.stflag
        a('s_barrier'); s.stamp(V_ST)
        def aset(hs):
            st_ = V_AD + 4 * (hs & 1)
            return [f'v_add_u32 v{st_}, s{S_OB+hs}, v{V_AO}'] + [f'v_xor_b32 v{st_+k}, {k<<5}, v{st_}' for k in range(1, 4)]
        for x in aset(0) + aset(1): a(x)
        mid = []
        for sw in ('v_permlane16_swap_b32', 'v_permlane32_swap_b32'):
            for qt in range(3): mid.append(f'v_mov_b32 v{V_T+qt}, v{V_L+qt}')
            mid.append('s_nop 0')
            for qt in range(3): mid.append(f'{sw} v{V_L+qt}, v{V_T+qt}')
            mid.append('s_nop 0')
            for qt in range(3): mid.append(f'v_add_f32 v{V_L+qt}, v{V_L+qt}, v{V_T+qt}')
        for qt in range(3): mid.append(f'v_rcp_f32 v{V_AL+2*qt}, v{V_L+qt}')
        mid += ['v_mbcnt_lo_u32_b32 v251, -1, 0', 'v_mbcnt_hi_u32_b32 v251, -1, v251', 'v_lshlrev_b32 v251, 4, v251',
                f's_mul_i32 s7, s{S_WAVE}, 12288', f's_add_u32 s7, s7, {XCH}', 'v_add_u32 v252, s7, v251',
                f's_xor_b32 s18, s{S_WAVE}, 1', 's_mul_i32 s18, s18, 12288', f's_add_u32 s18, s18, {XCH}', 'v_add_u32 v253, s18, v251',
                f's_mul_i32 s7, s{S_WAVE}, 24576', f'v_add_u32 v{V_XO}, s7, v251']
        def grp(j):
            r = []
            for qt in range(3):
                for t in range(2):
                    b = O0 + ((2 * j + t) * 3 + qt) * 4
                    for hh in range(2):
                        r.append(f'v_pk_mul_f32 {vr(b+2*hh,2)}, {vr(b+2*hh,2)}, {vr(V_AL+2*qt,2)} op_sel_hi:[1,0]')
                for t in range(2):
                    src = O0 + ((2 * j + t) * 3 + qt) * 4
                    dst = QFr(j, qt) + 2 * t
                    r.append(f'v_cvt_pk_bf16_f32 v{dst}, v{src}, v{src+1}')
                    r.append(f'v_cvt_pk_bf16_f32 v{dst+1}, v{src+2}, v{src+3}')
            return r
        def xw(j): return [(('XW', j, qt), f'ds_write_b128 v252, {vr(QFr(j,qt),4)} offset:{(j*3+qt)*1024}') for qt in range(3)]
        mid += grp(0) + grp(1) + ['s_nop 1']
        L = grp(2) + xw(0) + xw(1) + xw(2) + grp(3) + xw(3)
        assert len(L) == 60
        def epi(j, us=(0, 1)):
            r = []
            base = 48 * (j & 1)
            for u in us:
                for qt in range(3):
                    b = base + (u * 3 + qt) * 8
                    r += [f'v_cvt_pk_bf16_f32 v{b+i}, v{b+2*i}, v{b+2*i+1}' for i in range(4)]
                    r.append(f's_add_u32 s7, s{S_JJ+j}, {(u * 3 + qt) * 1024}')
                    r.append(f'buffer_store_dwordx4 {vr(b,4)}, v{V_XO}, s[{sWS}:{sWS+3}], s7 offen{stf}')
            return r
        frags = []
        for hs in range(8):
            j, half = hs >> 1, hs & 1
            base = 48 * (j & 1)
            order = [(jj, n_) for jj in range(4) for n_ in range(4)]
            if hs == 7: order = [(jj, n_) for n_ in range(4) for jj in range(4)]
            for jj, nt_ in order:
                def rd(buf, half=half, jj=jj, nt_=nt_):
                    return [f'ds_read_b64_tr_b16 {vr(buf,2)}, v{V_AD+4*half+nt_} offset:{jj*4096}',
                            f'ds_read_b64_tr_b16 {vr(buf+2,2)}, v{V_AD+4*half+nt_} offset:{jj*4096+2048}']
                def mm(buf, half=half, jj=jj, nt_=nt_, base=base):
                    r = []
                    for qt in range(3):
                        d = vr(base + ((nt_ >> 1) * 3 + qt) * 8 + (nt_ & 1) * 4, 4)
                        c = '0' if (half == 0 and jj == 0) else d
                        r.append(f'{MF} {d}, {vr(buf,4)}, {vr(QFr(jj, qt) + 4 * half,4)}, {c}')
                    return r
                frags.append(dict(rd=rd, mm=mm, ext=[], need=[]))
        for i in range(10): frags[i]['ext'] += L[6 * i:6 * i + 6]
        for i in (9, 11, 18, 25, 41, 57, 73, 89, 105):
            frags[i]['bar'] = True
            if i in (25, 57, 89): frags[i]['stamp'] = True
        frags[11]['need'] += [('XW', j, qt) for j in range(4) for qt in range(3)]
        for j in range(4):
            frags[11 + j]['ext'] += [(('XR', j, qt), f'ds_read_b128 {vr(QFr(j,qt)+4,4)}, v253 offset:{(j*3+qt)*1024}') for qt in range(3)]
            frags[16 + 4 * j]['need'] += [('XR', j, qt) for qt in range(3)]
        frags[18]['need'] += [('XR', j, qt) for j in range(4) for qt in range(3)]
        for hs in range(2, 8): frags[16 * hs - 12]['ext'] += aset(hs)
        for j in range(3):
            e = epi(j)
            for k in range(12): frags[32 * (j + 1) + 5 + k]['ext'] += e[3 * k:3 * k + 3]
        e = epi(3, (0,))
        for k in range(6): frags[122 + k]['ext'] += e[3 * k:3 * k + 3]
        s.stream(frags, mid=mid)
        s.stamp(V_ST)
        a('s_nop 7')
        for x in epi(3, (1,)): a(x)

    def reduce(s):
        a = s.a; o = s.o
        a.raw('.p2align 8'); a.raw('.type red_kernel,@function'); a.label('red_kernel')
        a(f's_cmp_ge_u32 s2, {96//o.redw}')
        a('s_cbranch_scc1 L_REND')
        a('s_load_dwordx2 s[4:5], s[0:1], 80')
        a('s_load_dwordx2 s[6:7], s[0:1], 96')
        a('v_lshrrev_b32 v1, 6, v0')
        a('v_and_b32 v0, 63, v0')
        a('v_readfirstlane_b32 s8, v1')
        a('s_nop 3')
        if o.dbg:
            a('s_load_dwordx2 s[32:33], s[0:1], 88')
            a('s_memrealtime s[34:35]')
            a('s_or_b32 s9, s2, s3'); a('s_or_b32 s9, s9, s8')
            a('s_cmp_lg_u32 s9, 0')
            a('s_cbranch_scc1 L_RNODBG')
            a('s_waitcnt lgkmcnt(0)')
            a('s_add_u32 s40, s6, 0x2000000'); a('s_addc_u32 s41, s7, 0'); a('s_mov_b32 s42, 0x100000'); a('s_mov_b32 s43, 0x00020000')
            a('s_mov_b32 s44, s32'); a('s_mov_b32 s45, s33'); a('s_mov_b32 s46, 256'); a('s_mov_b32 s47, 0x00020000')
            a('v_lshlrev_b32 v90, 8, v0')
            for k in range(4):
                a(f's_mov_b32 s9, {k*16384}')
                a(f'buffer_load_dwordx2 v[{92+2*k}:{93+2*k}], v90, s[40:43], s9 offen')
            a('v_lshlrev_b32 v91, 2, v0')
            a(f's_mov_b32 s9, {o.dbgwg*256}')
            a('buffer_load_dword v100, v91, s[40:43], s9 offen')
            a('s_waitcnt vmcnt(0)')
            a('v_min_u32 v92, v92, v94'); a('v_min_u32 v96, v96, v98'); a('v_min_u32 v102, v92, v96')
            a('v_max_u32 v93, v93, v95'); a('v_max_u32 v97, v97, v99'); a('v_max_u32 v103, v93, v97')
            a('v_readlane_b32 s36, v102, 0'); a('v_readlane_b32 s37, v103, 0')
            for l in range(1, 64):
                a(f'v_readlane_b32 s38, v102, {l}'); a(f'v_readlane_b32 s39, v103, {l}')
                a('s_min_u32 s36, s36, s38'); a('s_max_u32 s37, s37, s39')
            a('s_sub_u32 s38, s37, s36'); a('s_sub_u32 s39, s34, s37')
            a('v_writelane_b32 v100, s38, 0'); a('v_writelane_b32 v100, s39, 1')
            a('v_cmp_gt_u32 vcc, 16, v0'); a('s_and_saveexec_b64 s[48:49], vcc')
            a('buffer_store_dword v100, v91, s[44:47], 0 offen')
            a('s_mov_b64 exec, s[48:49]')
            a.label('L_RNODBG')
        a('s_lshl_b32 s9, s2, 2') if o.redw == 4 else a(f's_mul_i32 s9, s2, {o.redw}')
        a('s_add_u32 s8, s8, s9')
        a('s_lshr_b32 s10, s3, 3')
        a('s_and_b32 s11, s3, 7')
        a('s_lshl_b32 s12, s10, 7')
        a('s_add_u32 s12, s12, s11')
        a('s_mul_i32 s12, s12, 98304')
        a('s_lshl_b32 s13, s8, 10')
        a('s_add_u32 s12, s12, s13')
        a('v_lshlrev_b32 v1, 4, v0')
        a('s_waitcnt lgkmcnt(0)')
        a('s_add_u32 s16, s6, s12')
        a('s_addc_u32 s17, s7, 0')
        a(f's_mov_b32 s18, {15*786432+1024}')
        a('s_mov_b32 s19, 0x00020000')
        a('s_mov_b32 s14, 0')
        for hp in range(16):
            a(f'buffer_load_dwordx4 {vr(8+4*hp,4)}, v1, s[16:19], s14 offen{o.ldflag}')
            if hp < 15: a('s_add_u32 s14, s14, 786432')
        a('s_mul_i32 s20, s8, 43')
        a('s_lshr_b32 s20, s20, 8')
        a('s_mul_i32 s21, s20, 6')
        a('s_sub_u32 s21, s8, s21')
        a('s_cmp_ge_u32 s21, 3')
        a('s_cselect_b32 s22, 1, 0')
        a('s_mul_i32 s23, s22, 3')
        a('s_sub_u32 s23, s21, s23')
        a('s_lshr_b32 s24, s20, 2')
        a('s_and_b32 s25, s20, 3')
        a('s_and_b32 s26, s24, 1')
        a('s_lshr_b32 s27, s24, 1')
        a('s_mul_i32 s28, s11, 96')
        a('s_mul_i32 s29, s27, 48')
        a('s_add_u32 s28, s28, s29')
        a('s_lshl_b32 s29, s23, 4')
        a('s_add_u32 s28, s28, s29')
        a('s_lshl_b32 s28, s28, 11')
        a('s_lshl_b32 s29, s10, 10')
        a('s_add_u32 s28, s28, s29')
        a('s_lshl_b32 s29, s26, 9')
        a('s_add_u32 s28, s28, s29')
        a('s_lshl_b32 s29, s25, 7')
        a('s_add_u32 s28, s28, s29')
        a('s_lshl_b32 s29, s22, 6')
        a('s_add_u32 s28, s28, s29')
        a('v_and_b32 v2, 15, v0')
        a('v_lshlrev_b32 v2, 11, v2')
        a('v_lshrrev_b32 v3, 4, v0')
        a('v_and_b32 v4, 1, v3')
        a('v_lshlrev_b32 v4, 5, v4')
        a('v_lshrrev_b32 v3, 1, v3')
        a('v_lshlrev_b32 v3, 4, v3')
        a('v_add_u32 v2, v2, v3')
        a('v_add_u32 v2, v2, v4')
        a('v_add_u32 v2, s28, v2')
        a('s_mov_b32 s8, s4')
        a('s_mov_b32 s9, s5')
        a(f's_mov_b32 s10, {8*96*1024*2}')
        a('s_mov_b32 s11, 0x00020000')
        a('s_mov_b32 s30, 0xffff0000')
        for hp in range(16):
            a(f's_waitcnt vmcnt({15-hp})')
            b = 8 + 4 * hp
            for i in range(4):
                if hp == 0:
                    a(f'v_lshlrev_b32 v{72+2*i}, 16, v{b+i}')
                    a(f'v_and_b32 v{73+2*i}, s30, v{b+i}')
                else:
                    a(f'v_lshlrev_b32 v4, 16, v{b+i}')
                    a(f'v_and_b32 v5, s30, v{b+i}')
                    a(f'v_pk_add_f32 {vr(72+2*i,2)}, {vr(72+2*i,2)}, v[4:5]')
        for i in range(4): a(f'v_cvt_pk_bf16_f32 v{80+i}, v{72+2*i}, v{73+2*i}')
        a('s_nop 1')
        a('v_permlane16_swap_b32 v80, v82')
        a('v_permlane16_swap_b32 v81, v83')
        a('s_nop 1')
        a('buffer_store_dwordx4 v[80:83], v2, s[8:11], 0 offen')
        a.label('L_REND')
        a('s_endpgm')

    def build(s):
        a = s.a; o = s.o
        kn = o.kname
        hdr = open('cdna_kernels/' + NAME + '.s.ref').read().split('\n')
        for ln in hdr:
            if ln.startswith('; @launch'): break
            a.raw(ln)
        for ch in o.list:
            if ch == 'm': a.raw(f'; @launch kernel={kn} grid=(256,1,1) block=(512,1,1) lds=163840')
            if ch == 'r': a.raw(f'; @launch kernel=red_kernel grid=({96//o.redw},16,1) block=({64*o.redw},1,1) lds=0')
            if ch == 'n': a.raw(f'; @launch kernel=nop_kernel grid=(256,1,1) block=(64,1,1) lds=0')
        a.raw('.amdgcn_target "amdgcn-amd-amdhsa--gfx950"')
        a.raw('.text')
        a.raw(f'.globl {kn}'); a.raw('.p2align 8'); a.raw(f'.type {kn},@function'); a.label(kn)
        s.prologue()
        s.loader()
        s.compute()
        a.label('L_END'); a('s_endpgm')
        a.raw('.globl red_kernel')
        s.reduce()
        kl = [(kn, 256, 0), ('red_kernel', 104 if o.dbg else 88, 1)]
        if 'n' in o.list:
            a.raw('.globl nop_kernel'); a.raw('.p2align 8'); a.raw('.type nop_kernel,@function'); a.label('nop_kernel'); a('s_endpgm')
            kl.append(('nop_kernel', 8, 0))
        a.raw('.section .rodata,"a"')
        for k, nv, y in kl:
            a.raw('.p2align 6')
            a.raw(f'.amdhsa_kernel {k}')
            a.raw(f'  .amdhsa_next_free_vgpr {nv}')
            a.raw('  .amdhsa_next_free_sgpr 102')
            a.raw(f'  .amdhsa_accum_offset {nv}')
            a.raw('  .amdhsa_group_segment_fixed_size 0')
            a.raw('  .amdhsa_kernarg_size 104')
            a.raw('  .amdhsa_user_sgpr_count 2')
            a.raw('  .amdhsa_user_sgpr_kernarg_segment_ptr 1')
            a.raw('  .amdhsa_system_sgpr_workgroup_id_x 1')
            if y: a.raw('  .amdhsa_system_sgpr_workgroup_id_y 1')
            a.raw('.end_amdhsa_kernel')
        return a.text()

if __name__ == '__main__':
    p = argparse.ArgumentParser()
    p.add_argument('-o', default='cdna_kernels/' + NAME + '.s')
    p.add_argument('--kname', default=NAME + '_kernel')
    p.add_argument('--stamps', action='store_true')
    p.add_argument('--lazy', type=float, default=0)
    p.add_argument('--stg', default='')
    p.add_argument('--nt', action='store_true')
    p.add_argument('--list', default='mr')
    p.add_argument('--fine', action='store_true')
    p.add_argument('--dbg', action='store_true')
    p.add_argument('--dbgwg', type=int, default=37)
    p.add_argument('--tlb', type=int, default=0)
    p.add_argument('--lprio', type=int, default=0)
    p.add_argument('--rot', type=int, default=1)
    p.add_argument('--map', type=int, default=0)
    p.add_argument('--shd', type=int, default=0)
    p.add_argument('--shmid', type=int, default=128)
    p.add_argument('--shcap', type=int, default=8)
    p.add_argument('--redw', type=int, default=4)
    p.add_argument('--init4', action='store_true')
    p.add_argument('--kvstag', default='')
    p.add_argument('--kvat', type=int, default=0)
    p.add_argument('--kvstep', type=int, default=1)
    p.add_argument('--cap', type=int, default=-1)
    p.add_argument('--o2', action='store_true')
    p.add_argument('--ldst', action='store_true')
    p.add_argument('--stflag', default='')
    p.add_argument('--ldflag', default='')
    o = p.parse_args()
    if o.o2:
        WSLOT = [[8, 0, 1, 9], [2, 7, 3, 6], [4, 8, 9, 5], [0, 2, 6, 1]]
    if o.stflag: o.stflag = ' ' + o.stflag
    if o.ldflag: o.ldflag = ' ' + o.ldflag
    open(o.o, 'w').write(Gen(o).build())
```
